```python
import torch

def _softmax(x, axis=-1):
    return torch.softmax(x, dim=axis)

def _gelu(x):
    return torch.nn.functional.gelu(x, approximate='tanh')

def _silu(x):
    return torch.nn.functional.silu(x)

def _sigmoid(x):
    return torch.sigmoid(x)

def _layernorm(x, axis=-1, eps=1e-05):
    m = x.mean(dim=axis, keepdim=True)
    v = x.var(dim=axis, keepdim=True, unbiased=False)
    return (x - m) / torch.sqrt(v + eps)

def _scatter_add(tgt, idx, src, axis=0):
    return tgt.clone().index_add_(axis, idx, src)

def _segment_sum(src, seg, n):
    out = torch.zeros((n,) + src.shape[1:], dtype=src.dtype)
    return out.index_add_(0, seg, src)

def _pad(x, pw):
    flat = tuple((v for pair in reversed(pw) for v in pair))
    return torch.nn.functional.pad(x, flat)
kernel_name = 'interleave_layers__memory_aug_recurrent_mem_tr__mixer_token_mlp__prompt'

def setup_inputs():

    _w = lambda a: (lambda t: t.to(torch.bfloat16) if t.is_floating_point() else t)(torch.as_tensor(a))

    def _A_setup():
        B, S, Dm = (1, 2048, 640)
        H, Dh = (32, 128)
        M, seg = (8, 32)
        seg = min(seg, S)
        S = S // seg * seg
        return {'x': _w((lambda *s: torch.randn(*s, dtype=torch.bfloat16) * 0.05)(B, S, Dm)), 'mem0': _w((lambda *s: torch.randn(*s, dtype=torch.bfloat16) * 0.2)(B, M, Dm)), 'Wq': _w((lambda *s: torch.randn(*s, dtype=torch.bfloat16) * 0.8)(Dm, H, Dh) * Dm ** (-0.5)), 'Wk': _w((lambda *s: torch.randn(*s, dtype=torch.bfloat16) * 0.8)(Dm, H, Dh) * Dm ** (-0.5)), 'Wv': _w((lambda *s: torch.randn(*s, dtype=torch.bfloat16) * 0.2)(Dm, H, Dh) * Dm ** (-0.5)), 'Wo': _w((lambda *s: torch.randn(*s, dtype=torch.bfloat16) * 0.2)(H, Dh, Dm) * (H * Dh) ** (-0.5)), 'seg_len': seg}
    _A_in = _A_setup()

    def _B_setup():
        B, S, D, F = (1, 2048, 640, 1728)
        return {'x': _w((lambda *s: torch.randn(*s, dtype=torch.bfloat16) * 0.05)(B, S, D)), 'w1': _w((lambda *s: torch.randn(*s, dtype=torch.bfloat16) * 0.2)(S, F) * S ** (-0.5)), 'b1': _w((lambda *s: torch.randn(*s, dtype=torch.bfloat16) * 3.2)(F) * 0.02), 'w2': _w((lambda *s: torch.randn(*s, dtype=torch.bfloat16) * 0.1)(F, S) * F ** (-0.5)), 'b2': _w((lambda *s: torch.randn(*s, dtype=torch.bfloat16) * 0.2)(S) * 0.02)}
    _B_in = _B_setup()
    return {'A_x': _A_in['x'], 'A_mem0': _A_in['mem0'], 'A_Wq': _A_in['Wq'], 'A_Wk': _A_in['Wk'], 'A_Wv': _A_in['Wv'], 'A_Wo': _A_in['Wo'], 'A_seg_len': _A_in['seg_len'], 'B_x': _B_in['x'], 'B_w1': _B_in['w1'], 'B_b1': _B_in['b1'], 'B_w2': _B_in['w2'], 'B_b2': _B_in['b2']}

def reference(A_x, A_mem0, A_Wq, A_Wk, A_Wv, A_Wo, A_seg_len, B_x, B_w1, B_b1, B_w2, B_b2):

    def _A_ref(x, mem0, Wq, Wk, Wv, Wo, seg_len):
        B, S, Dm = x.shape
        H, Dh = (Wq.shape[1], Wq.shape[2])
        M = mem0.shape[1]
        scale = Dh ** (-0.5)
        n_seg = S // seg_len
        L = M + seg_len
        idx = torch.arange(L)
        mask = (idx[:, None] < M) | (idx[:, None] >= idx[None, :])
        mem = mem0
        outs = []
        for s in range(n_seg):
            xs = x[:, s * seg_len:(s + 1) * seg_len, :].clone()
            h = torch.concatenate([mem, xs], axis=1)
            q = torch.einsum('btd,dhe->bhte', h, Wq)
            k = torch.einsum('btd,dhe->bhte', h, Wk)
            v = torch.einsum('btd,dhe->bhte', h, Wv)
            scores = torch.einsum('bhqe,bhke->bhqk', q, k) * scale
            scores = torch.where(mask[None, None], scores, -1000000000.0)
            p = _softmax(scores, axis=-1)
            o = torch.einsum('bhqk,bhke->bhqe', p, v)
            o = torch.einsum('bhte,hed->btd', o, Wo)
            mem = o[:, :M, :].clone()
            outs.append(o[:, M:, :])
        return torch.concatenate(outs, axis=1)

    def _B_ref(x, w1, b1, w2, b2):
        B, S, D = x.shape
        h = _layernorm(x, axis=-1)
        u = torch.einsum('bsd,sf->bdf', h, w1) + b1
        u = _gelu(u)
        y = torch.einsum('bdf,fs->bds', u, w2) + b2
        return (lambda x, *d: x.permute(*d))(y, 0, 2, 1)
    x = A_x
    x = x + _A_ref(_layernorm(x, axis=-1), A_mem0, A_Wq, A_Wk, A_Wv, A_Wo, A_seg_len)
    x = x + _B_ref(_layernorm(x, axis=-1), B_w1, B_b1, B_w2, B_b2)
    x = x + _A_ref(_layernorm(x, axis=-1), A_mem0, A_Wq, A_Wk, A_Wv, A_Wo, A_seg_len)
    x = x + _B_ref(_layernorm(x, axis=-1), B_w1, B_b1, B_w2, B_b2)
    return x
```

```python
from emit import *
from layout import *

SWS, SDBG, SWQ, SWK, SWV, SWO, SM0 = 4, 8, 12, 16, 20, 24, 28
sH, sW, sT, sS, sLayer = 40, 41, 42, 43, 44
sMemRd, sMemWr, sMemRst, sPart, sT0, sT1 = 45, 46, 47, 48, 49, 50
sBase = [None, 51, 52, 53]
sStream, sKV, sKM, sVM, sReady, sIsRed = 54, 55, 56, 57, 58, 59
sMaskHi8, sMaskLo32, sC = 60, 62, 64
sOXw = 65
sOXr = [None, 66, 67, 68]
sSpin, sKm0, sFlag, sT2 = 69, 72, 73, 74
sTime = 76
SPIN_LIMIT = 1 << 20

vL16, vIdx, vLW, vPartSt, vPartLd, vMemSt, vTr, vQXw, vTA = 1, 2, 3, 4, 5, 6, 7, 8, 9
T0, T1 = 10, 11
SB = [12, 20, 28]
LB = [36, 44]
AB = [52, 56, 60, 64]
accQ, accK, accV = 68, 72, 76
S0, S1, S2, X4 = 80, 84, 88, 92
RBASE = 96

NFR = 80
OPT = {}
KVF = 'sc1'
FR = []
for m_ in 'qkv':
    for j in range(20):
        FR.append((m_, j))
for p in range(5):
    for x in range(4):
        FR.append(('o', p, x))
FID = {d: i for i, d in enumerate(FR)}
VEARLY = list(range(16))
PH1 = []
for j in range(20):
    PH1 += [('q', j), ('k', j)] + ([('v', j)] if j in VEARLY else [])
SL_ = [[('k', 0), ('k', 6), ('k', 15), ('v', 17), ('o', 2, 2)],
       [('v', 0), ('k', 9), ('o', 3, 1)],
       [('k', 1), ('k', 12), ('o', 3, 3)],
       [('q', 0)]]
LEND = [('k', 9), ('k', 12)]
LF_ = [('q', 2), ('v', 3), ('k', 5), ('v', 7), ('q', 10), ('v', 11),
       ('o', 4, 0), ('o', 0, 0), ('o', 1, 0), ('o', 4, 2), ('o', 0, 1), ('o', 0, 3), ('o', 1, 2), ('o', 2, 1), ('o', 2, 3), ('o', 3, 2)]
NL1 = 6
SLIST = [[FID[d] for d in l] for l in SL_]
LFR = [FID[d] for d in LF_]
SFR = sum(SLIST, [])
assert len(LFR) == 16 and not set(LFR) & set(SFR)
RFR = [i for i in range(NFR) if i not in LFR and i not in SFR]
assert RBASE + 8 * len(RFR) <= 512, len(RFR)
RREG = {f: RBASE + 8 * n for n, f in enumerate(RFR)}
LSLOT = {f: n for n, f in enumerate(LFR)}
SSLOT = {f: n for n, f in enumerate(SFR)}
SBUF = {f: b for b, l in enumerate(SLIST) for f in l}
SBR = SB + [LB[1]]
sSB = 80
sTag = 33
sPP = 30

WSR = s(SWS, 4)


def srd(em, d, ka, nbytes, tmp=None):
    em(f's_load_dwordx2 {s(d, 2)}, s[0:1], {ka}')
    em(f's_mov_b32 {s(d + 2)}, {nbytes}')
    em(f's_mov_b32 {s(d + 3)}, 0x20000')


def chain_init(em, hist=False):
    srd(em, SWQ, KA_WQ, DM * H * DH * 2)
    srd(em, SWK, KA_WK, DM * H * DH * 2)
    srd(em, SWV, KA_WV, DM * H * DH * 2)
    srd(em, SWO, KA_WO, DM * H * DH * 2)
    srd(em, SM0, KA_MEM0, M * DM * 2)
    L, G, A_, B_, C_ = 80, 81, 82, 83, 84
    em(f'v_lshrrev_b32 v{A_}, 6, v0')
    em(f'v_and_b32 v{L}, 63, v0')
    em(f'v_readfirstlane_b32 s{sW}, v{A_}')
    em(f'v_lshrrev_b32 v{G}, 4, v{L}')
    em(f'v_lshlrev_b32 v{vL16}, 4, v{L}')
    em(f's_mov_b32 s{sMaskHi8}, 0xff00ff00')
    em(f's_mov_b32 s{sMaskHi8 + 1}, 0xff00ff00')
    em(f's_mov_b32 s{sMaskLo32}, -1')
    em(f's_mov_b32 s{sMaskLo32 + 1}, 0')
    import struct, math
    c = struct.unpack('<I', struct.pack('<f', (DH ** -0.5) * math.log2(math.e)))[0]
    em(f's_mov_b32 s{sC}, {hex(c)}')
    em(f'v_mov_b32 v{A_}, 0x4444')
    em(f'v_mov_b32 v{B_}, 0xeeee')
    em(f'v_cndmask_b32 v{vIdx}, v{A_}, v{B_}, {s(sMaskHi8, 2)}')
    em(f's_lshl_b32 s{sT0}, s{sW}, 15')
    em(f's_add_u32 s{sT0}, s{sT0}, {L_W}')
    em(f'v_add_u32 v{vLW}, s{sT0}, v{vL16}')
    em(f's_mul_i32 s{sT0}, s{sW}, {20 * 4096}')
    em(f's_lshl_b32 s{sT1}, s{sH}, 7')
    em(f's_add_u32 s{sT0}, s{sT0}, s{sT1}')
    em(f'v_lshrrev_b32 v{A_}, 3, v{L}')
    em(f'v_lshlrev_b32 v{A_}, 12, v{A_}')
    em(f'v_and_b32 v{B_}, 7, v{L}')
    em(f'v_lshl_add_u32 v{A_}, v{B_}, 4, v{A_}')
    em(f'v_add_u32 v{vPartSt}, s{sT0}, v{A_}')
    em(f's_lshl_b32 s{sT2}, s{sH}, 1')
    em(f's_add_u32 s{sT2}, s{sT2}, s{sW}')
    em(f's_mov_b32 s{sIsRed}, 1')
    em(f's_cmp_lt_u32 s{sW}, 2')
    em(f's_cbranch_scc1 CH_U_OK')
    em(f's_add_u32 s{sT2}, s{sH}, 64')
    em(f's_cmp_eq_u32 s{sW}, 2')
    em(f's_cselect_b32 s{sT0}, 1, 0')
    em(f's_cmp_lt_u32 s{sH}, 16')
    em(f's_cselect_b32 s{sT1}, 1, 0')
    em(f's_and_b32 s{sIsRed}, s{sT0}, s{sT1}')
    em(f's_mul_i32 s{sT2}, s{sT2}, s{sIsRed}')
    em.label('CH_U_OK')
    em(f'v_bfe_u32 v{A_}, v{L}, 3, 1')
    em(f'v_lshl_add_u32 v{B_}, v{A_}, 2, v{G}')
    em(f'v_lshlrev_b32 v{B_}, 7, v{B_}')
    em(f'v_and_b32 v{C_}, 7, v{L}')
    em(f'v_lshl_add_u32 v{B_}, v{C_}, 4, v{B_}')
    em(f's_lshl_b32 s{sT0}, s{sT2}, 12')
    em(f'v_add_u32 v{vPartLd}, s{sT0}, v{B_}')
    em(f's_lshr_b32 s{sT0}, s{sT2}, 2')
    em(f's_lshl_b32 s{sT0}, s{sT0}, 9')
    em(f's_and_b32 s{sT1}, s{sT2}, 1')
    em(f's_lshl_b32 s{sT1}, s{sT1}, 8')
    em(f's_add_u32 s{sT0}, s{sT0}, s{sT1}')
    em(f's_bfe_u32 s{sT1}, s{sT2}, 0x10001')
    em(f's_lshl_b32 s{sT1}, s{sT1}, 6')
    em(f's_add_u32 s{sT0}, s{sT0}, s{sT1}')
    em(f'v_lshl_add_u32 v{A_}, v{G}, 1, v{A_}')
    em(f'v_lshlrev_b32 v{A_}, 4, v{A_}')
    em(f'v_lshrrev_b32 v{B_}, 2, v{C_}')
    em(f'v_lshl_add_u32 v{A_}, v{B_}, 7, v{A_}')
    em(f'v_and_b32 v{B_}, 3, v{C_}')
    em(f'v_lshl_add_u32 v{A_}, v{B_}, 2, v{A_}')
    em(f'v_add_u32 v{A_}, s{sT0}, v{A_}')
    em(f'v_mov_b32 v{B_}, 0x40000000')
    em(f'v_cndmask_b32 v{vMemSt}, v{B_}, v{A_}, {s(sMaskLo32, 2)}')
    em(f'v_lshrrev_b32 v{A_}, 2, v{L}')
    em(f'v_lshlrev_b32 v{A_}, 4, v{A_}')
    em(f'v_and_b32 v{B_}, 1, v{L}')
    em(f'v_lshl_add_u32 v{vTr}, v{B_}, 3, v{A_}')
    em(f'v_lshrrev_b32 v{A_}, 5, v{L}')
    em(f'v_lshlrev_b32 v{A_}, 8, v{A_}')
    em(f'v_and_b32 v{B_}, 15, v{L}')
    em(f'v_lshl_add_u32 v{A_}, v{B_}, 4, v{A_}')
    em(f'v_and_b32 v{B_}, 1, v{G}')
    em(f'v_lshl_add_u32 v{A_}, v{B_}, 3, v{A_}')
    em(f's_lshl_b32 s{sT0}, s{sW}, 9')
    em(f'v_add_u32 v{vQXw}, s{sT0}, v{A_}')
    em(f'v_and_b32 v{B_}, 7, v{L}')
    em(f'v_lshlrev_b32 v{A_}, 7, v{G}')
    em(f'v_lshl_add_u32 v{A_}, v{B_}, 4, v{A_}')
    em(f's_mul_i32 s{sT0}, s{sW}, 2560')
    em(f'v_add_u32 v{vTA}, s{sT0}, v{A_}')
    for x in (1, 2, 3):
        em(f's_add_u32 s{sT1}, s{sW}, {x}')
        em(f's_and_b32 s{sT1}, s{sT1}, 3')
        em(f's_mul_i32 s{sBase[x]}, s{sT1}, 2560')
        em(f's_sub_u32 s{sBase[x]}, s{sBase[x]}, s{sT0}')
        em(f's_lshl_b32 s{sOXr[x]}, s{sT1}, 9')
        em(f's_add_u32 s{sOXr[x]}, s{sOXr[x]}, {L_MEM}')
        em(f's_sub_u32 s{sOXr[x]}, s{sOXr[x]}, s{sT0}')
    em(f's_lshl_b32 s{sT1}, s{sW}, 11')
    em(f's_sub_u32 s{sOXw}, {L_MEM}, s{sT1}')
    em(f's_add_u32 s{sKm0}, s{sT1}, {L_KS}')
    em(f's_lshl_b32 s{sT0}, s{sH}, 2')
    em(f's_add_u32 s{sT0}, s{sT0}, s{sW}')
    em(f's_mul_i32 s{sT0}, s{sT0}, {len(SFR) * 2048}')
    em(f's_add_u32 s{sStream}, s{sT0}, {WS_STREAM}')
    em(f's_lshl_b32 s{sFlag}, s{sH}, 7')
    em(f's_add_u32 s{sFlag}, s{sFlag}, {WS_HFLAG}')
    em('s_waitcnt lgkmcnt(0)')

    P = 52
    for i in range(4):
        em(f'v_mov_b32 v{P + i}, -1')
    em(f's_cmp_eq_u32 s{sIsRed}, 0')
    em('s_cbranch_scc1 CH_NOPOISON')
    em(f's_mov_b32 s{sT0}, {WS_PART}')
    for n in range(4):
        em(f'buffer_store_dwordx4 {v(P, 4)}, v{vPartLd}, {WSR}, s{sT0} offen offset:{1024 * n}')
    for slot in range(2):
        em(f's_mov_b32 s{sT0}, {WS_MEMB + slot * 10240}')
        em(f'buffer_store_dword v{P}, v{vMemSt}, {WSR}, s{sT0} offen')
    em.label('CH_NOPOISON')
    em(f's_mul_i32 s{sT0}, s{sH}, 10240')
    em(f's_add_u32 s{sT0}, s{sT0}, {WS_MEMB0}')
    em(f'v_bfe_u32 v{A_}, v0, 2, 3')
    em(f'v_mul_u32_u24 v{A_}, 1280, v{A_}')
    em(f'v_bfe_u32 v{B_}, v0, 5, 2')
    em(f'v_and_b32 v{C_}, 3, v0')
    em(f'v_lshl_add_u32 v{B_}, v{B_}, 2, v{C_}')
    em(f'v_lshl_add_u32 v{A_}, v{B_}, 1, v{A_}')
    em(f'v_cmp_gt_u32 vcc, 128, v0')
    em(f'v_lshlrev_b32 v{C_}, 2, v0')

    def colbase(kb):
        wp, jj = divmod(kb, 5)
        return (160 * wp + 64 * (jj >> 1) + 16 * (jj & 1), 32) if jj < 4 else (160 * wp + 128, 16)
    for it in range(10):
        (c0, d0), (c1, d1) = colbase(2 * it), colbase(2 * it + 1)
        for k, (x0, x1) in enumerate(((c0, c1), (c0 + d0, c1 + d1))):
            em(f'v_mov_b32 v{90 + k}, {2 * x0}')
            em(f'v_mov_b32 v{B_}, {2 * x1}')
            em(f'v_cndmask_b32 v{90 + k}, v{B_}, v{90 + k}, vcc')
            em(f'v_add_u32 v{90 + k}, v{90 + k}, v{A_}')
        em(f'buffer_load_ushort v{56 + 2 * it}, v90, {s(SM0, 4)}, 0 offen')
        em(f'buffer_load_ushort v{57 + 2 * it}, v91, {s(SM0, 4)}, 0 offen')
    em('s_waitcnt vmcnt(0)')
    for it in range(10):
        em(f'v_lshl_or_b32 v{56 + 2 * it}, v{57 + 2 * it}, 16, v{56 + 2 * it}')
        em(f's_add_u32 s{sT1}, s{sT0}, {1024 * it}')
        em(f'buffer_store_dword v{56 + 2 * it}, v{C_}, {WSR}, s{sT1} offen')
    em('s_nop 1')
    em(f'v_and_b32 v{A_}, 15, v{L}')
    em(f'v_and_b32 v{B_}, 1, v{A_}')
    em(f'v_lshrrev_b32 v{C_}, 1, v{A_}')
    em(f'v_lshl_add_u32 v{B_}, v{B_}, 2, v{C_}')
    em(f'v_mov_b32 v{C_}, 99')
    em(f'v_cndmask_b32 v{B_}, v{B_}, v{C_}, {s(sMaskHi8, 2)}')
    em(f'v_mov_b32 v{A_}, 0x3f80')
    em(f'v_mov_b32 v{C_}, 0x3f800000')
    for dd in range(4):
        em(f'v_mov_b32 v{56 + dd}, 0')
        em(f'v_cmp_eq_u32 vcc, {2 * dd}, v{B_}')
        em(f'v_cndmask_b32 v{56 + dd}, v{56 + dd}, v{A_}, vcc')
        em(f'v_cmp_eq_u32 vcc, {2 * dd + 1}, v{B_}')
        em(f'v_cndmask_b32 v{56 + dd}, v{56 + dd}, v{C_}, vcc')
    em(f'v_add_u32 v{A_}, {L_SEL}, v{vL16}')
    em(f'ds_write_b128 v{A_}, {v(56, 4)}')
    em.wait_all()


def chain_load_weights(em):
    L, G = 80, 81
    vSq, vSo, vTq, vTo = 82, 83, 84, 85
    A_, B_ = 86, 87
    em(f'v_and_b32 v{L}, 63, v0')
    em(f'v_lshrrev_b32 v{G}, 4, v{L}')
    em(f'v_lshrrev_b32 v{A_}, 2, v{L}')
    em(f'v_and_b32 v{B_}, 3, v{L}')
    vSq2 = 88
    em(f'v_lshrrev_b32 v{vSq}, 3, v{L}')
    em(f'v_lshlrev_b32 v{vSq}, 13, v{vSq}')
    em(f'v_lshl_add_u32 v{vSq}, v{B_}, 4, v{vSq}')
    em(f'v_and_b32 v{vSq2}, 1, v{A_}')
    em(f'v_lshl_add_u32 v{89}, v{vSq2}, 17, v{vSq}')
    em(f'v_lshl_add_u32 v{vSq}, v{vSq2}, 18, v{vSq}')
    em(f'v_mov_b32 v{vSq2}, v89')
    em(f'v_mul_u32_u24 v{vSo}, 1280, v{A_}')
    em(f'v_lshl_add_u32 v{vSo}, v{B_}, 4, v{vSo}')
    em(f'v_bfe_u32 v{vTq}, v{L}, 3, 1')
    em(f'v_lshlrev_b32 v{vTq}, 5, v{vTq}')
    em(f'v_lshl_add_u32 v{vTq}, v{B_}, 3, v{vTq}')
    em(f'v_bfe_u32 v{A_}, v{L}, 2, 1')
    em(f'v_lshl_add_u32 v{vTq}, v{A_}, 6, v{vTq}')
    em(f's_lshl_b32 s{sT2}, s{sW}, 15')
    em(f's_add_u32 s{sT2}, s{sT2}, {L_W}')
    em(f'v_add_u32 v{vTq}, s{sT2}, v{vTq}')
    em(f'v_and_b32 v{A_}, 1, v{G}')
    em(f'v_lshl_add_u32 v{vTo}, v{A_}, 10, v{vTq}')
    em(f'v_lshrrev_b32 v{A_}, 1, v{G}')
    em(f'v_lshl_add_u32 v{vTo}, v{A_}, 8, v{vTo}')
    em(f'v_lshl_add_u32 v{vTq}, v{G}, 8, v{vTq}')
    sColQ, sColO, sK5, sA, sB_ = 80, 81, 82, 83, 84
    em(f's_lshl_b32 s{sColQ}, s{sH}, 8')
    em(f's_lshl_b32 s{sA}, s{sW}, 6')
    em(f's_add_u32 s{sColQ}, s{sColQ}, s{sA}')
    em(f's_mul_i32 s{sColO}, s{sH}, {128 * 1280}')
    em(f's_mul_i32 s{sA}, s{sW}, 320')
    em(f's_add_u32 s{sColO}, s{sColO}, s{sA}')
    em(f's_mul_i32 s{sK5}, s{sW}, 5')

    order = [f for f in range(NFR) if f not in LSLOT] + LFR
    n_nl = NFR - len(LFR)

    def slot_of(pos):
        f = order[pos]
        return LSLOT[f] if f in LSLOT else pos % 16

    def issue(pos):
        f = order[pos]
        d = FR[f]
        sl = slot_of(pos)
        if d[0] in 'qkv':
            j = d[1]
            em(f's_add_u32 s{sA}, s{sW}, {j // 5}')
            em(f's_and_b32 s{sA}, s{sA}, 3')
            em(f's_mul_i32 s{sA}, s{sA}, {160 * 8192}')
            em(f's_add_u32 s{sA}, s{sA}, s{sColQ}')
            jj = j % 5
            rb = 64 * (jj >> 1) + 16 * (jj & 1) if jj < 4 else 128
            if rb:
                em(f's_add_u32 s{sA}, s{sA}, {rb * 8192}')
            step = 8 * 8192
            sr = {'q': SWQ, 'k': SWK, 'v': SWV}[d[0]]
            va = vSq if jj < 4 else vSq2
        else:
            p, x = d[1], d[2]
            em(f's_add_u32 s{sA}, s{sW}, {x}')
            em(f's_and_b32 s{sA}, s{sA}, 3')
            em(f's_mul_i32 s{sA}, s{sA}, {32 * 1280}')
            em(f's_add_u32 s{sA}, s{sA}, s{sColO}')
            if p:
                em(f's_add_u32 s{sA}, s{sA}, {64 * p}')
            step = 16 * 1280
            sr = SWO
            va = vSo
        em(f's_add_u32 m0, s{sT2}, {sl * 2048}')
        em(f's_add_u32 s{sB_}, s{sA}, {step}')
        em.vm(f'buffer_load_dwordx4 v{va}, {s(sr, 4)}, s{sA} offen lds')
        em(f's_add_u32 m0, s{sT2}, {sl * 2048 + 1024}')
        em('s_nop 0')
        return em.vm(f'buffer_load_dwordx4 v{va}, {s(sr, 4)}, s{sB_} offen lds')

    tok = {}
    for pos in range(16):
        tok[pos] = issue(pos)
    TMP = [12, 20, 28, 36]
    pend = None
    ntmp = 0

    def finish(pd):
        pos, ltok, tmp = pd
        f = order[pos]
        em.wait(l=ltok)
        if f in SSLOT:
            em(f's_add_u32 s{sA}, s{sStream}, {SSLOT[f] * 2048}')
            em.vm(f'buffer_store_dwordx4 {v(tmp, 4)}, v{vL16}, {WSR}, s{sA} offen')
            em.vm(f'buffer_store_dwordx4 {v(tmp + 4, 4)}, v{vL16}, {WSR}, s{sA} offen offset:1024')
        elif f in LSLOT:
            em.ds(f'ds_write_b128 v{vLW}, {v(tmp, 4)} offset:{LSLOT[f] * 2048}')
            em.ds(f'ds_write_b128 v{vLW}, {v(tmp + 4, 4)} offset:{LSLOT[f] * 2048 + 1024}')
        nxt = pos + 16
        if nxt < NFR:
            tok[nxt] = issue(nxt)

    assert n_nl % 16 == 0
    for pos in range(NFR):
        f = order[pos]
        d = FR[f]
        sl = slot_of(pos)
        em.wait(v=tok[pos])
        if f in RREG:
            dst = RREG[f]
        else:
            dst = TMP[ntmp % 4]; ntmp += 1
        va = vTq if d[0] in 'qkv' else vTo
        hs = 1024 if d[0] in 'qkv' else 512
        for q in range(4):
            lt = em.ds(f'ds_read_b64_tr_b16 {r(dst + 2 * q, 2)}, v{va} offset:{sl * 2048 + (q >> 1) * hs + (q & 1) * 128}')
        if pend is not None:
            finish(pend)
        pend = (pos, lt, dst)
    finish(pend)
    em.wait_all()


class Op:
    def __init__(self, text):
        self.text = text
        self.tok = None


class Q:
    def __init__(self, em):
        self.em = em
        self.q = []

    def push(self, *texts):
        o = None
        for t in texts:
            o = Op(t)
            self.q.append(o)
        return o

    def issue(self, o):
        t = o.text
        if t.startswith('ds_'):
            o.tok = ('l', self.em.ds(t))
        elif t.startswith('buffer_'):
            k = self.em.vm(t)
            o.tok = ('v', k) if k is not None else ('x', 0)
        else:
            self.em(t)
            o.tok = ('x', 0)

    def drain(self, n=99):
        while n > 0 and self.q:
            self.issue(self.q.pop(0))
            n -= 1

    def now(self, *texts):
        o = None
        for t in texts:
            o = Op(t)
            self.issue(o)
        return o

    def need(self, *ops):
        l = v_ = None
        for o in ops:
            if o is None:
                continue
            while o.tok is None:
                self.drain(1)
            if o.tok[0] == 'l':
                l = max(l or 0, o.tok[1])
            elif o.tok[0] == 'v':
                v_ = max(v_ or 0, o.tok[1])
        self.em.wait(l=l, v=v_)


def sl_txt(f):
    b = SBR[SBUF[f]]
    sl = SSLOT[f]
    o = (sl & 1) * 2048
    if OPT.get('nosl'):
        return ['s_nop 0']
    return [f'buffer_load_dwordx4 {v(b, 4)}, v{vL16}, {WSR}, s{sSB + sl // 2} offen offset:{o}',
            f'buffer_load_dwordx4 {v(b + 4, 4)}, v{vL16}, {WSR}, s{sSB + sl // 2} offen offset:{o + 1024}']


def ll_txt(f, buf):
    return [f'ds_read_b128 {v(buf, 4)}, v{vLW} offset:{LSLOT[f] * 2048}',
            f'ds_read_b128 {v(buf + 4, 4)}, v{vLW} offset:{LSLOT[f] * 2048 + 1024}']


def kv_check(em, out_of_line):
    lab = em.newlabel('CH_KVOK')
    lp = em.newlabel('CH_KVPOLL')
    em(f's_cmp_lt_u32 s{sReady}, s{sT0}')
    em(f's_cbranch_scc1 {lp}')
    em.label(lab)
    out_of_line.append((lab, lp))


def kv_slow(em, lab, lp):
    em.label(lp)
    em(f's_mov_b32 s{sSpin}, 0')
    em(f'v_and_b32 v0, 48, v{vL16}')
    em(f'v_lshrrev_b32 v0, 2, v0')
    em.label(lp + 'L')
    em(f'buffer_load_dword v{X4}, v0, {WSR}, s{sFlag} offen offset:8 sc1')
    em(f's_add_u32 s{sSpin}, s{sSpin}, 1')
    em(f's_cmp_gt_u32 s{sSpin}, {SPIN_LIMIT}')
    em('s_cbranch_scc1 ABORT')
    em('s_waitcnt vmcnt(0)')
    em(f'v_min_u32_dpp v{X4}, v{X4}, v{X4} quad_perm:[1,0,3,2] row_mask:0xf bank_mask:0xf')
    em(f'v_min_u32_dpp v{X4}, v{X4}, v{X4} quad_perm:[2,3,0,1] row_mask:0xf bank_mask:0xf')
    em(f'v_readfirstlane_b32 s{sReady}, v{X4}')
    em('s_nop 1')
    em(f's_cmp_lt_u32 s{sReady}, s{sT0}')
    em(f's_cbranch_scc1 {lp}L')
    em(f's_branch {lab}')


def kv_txt():
    if OPT.get('nokv'):
        return ['s_nop 0']
    KVF = 'sc1 nt' if OPT.get('nt') else ('sc0 sc1' if OPT.get('sys') else 'sc1')
    return [f's_mov_b32 m0, s{sKm0}',
            f's_add_u32 s{sT1}, s{sKV}, {WS_K}',
            f'buffer_load_dwordx4 v{vL16}, {WSR}, s{sT1} offen {KVF} lds',
            f'buffer_load_dwordx4 v{vL16}, {WSR}, s{sT1} offen offset:1024 {KVF} lds',
            f's_add_u32 m0, s{sKm0}, {L_VS - L_KS}',
            f's_add_u32 s{sT1}, s{sKV}, {WS_V}',
            f'buffer_load_dwordx4 v{vL16}, {WSR}, s{sT1} offen {KVF} lds',
            f'buffer_load_dwordx4 v{vL16}, {WSR}, s{sT1} offen offset:1024 {KVF} lds',
            f's_add_u32 s{sKV}, s{sKV}, {32 * 8192}']


def pub_kv(em):
    for i in range(4):
        em(f'ds_read_b128 {v(60 + 4 * i, 4)}, v{vL16} offset:{(L_KX, L_KX + 1024, L_VX, L_VX + 1024)[i]}')
    em('s_waitcnt lgkmcnt(0)')
    for i in range(4):
        em(f'buffer_store_dwordx4 {v(60 + 4 * i, 4)}, v{vL16}, {WSR}, s{sKM} offen offset:{1024 * i} sc1')
    em(f's_add_u32 s{sKM}, s{sKM}, {32 * 4096}')


NST = 8
sAcc = 86


def stamp(em, i, on):
    if not on:
        return
    em('s_memtime s[96:97]')
    em('s_waitcnt lgkmcnt(0)')
    em.l_done = em.l_iss
    if OPT.get('abs'):
        em(f's_cmp_eq_u32 s{sT}, {OPT["abs"] + (1 if i == 0 and False else 0)}')
        em(f's_cselect_b32 s{sAcc + i}, s96, s{sAcc + i}')
        return
    em('s_sub_u32 s98, s96, s94')
    em(f's_add_u32 s{sAcc + i}, s{sAcc + i}, s98')
    em('s_mov_b32 s94, s96')


def zero_txt(reg, n):
    return [f'v_mov_b64 {v(reg + i, 2)}, 0' for i in range(0, n, 2)]


def chain_main(em, hist=False, nlayers=2, stamps=False, ph=False):
    SM = 'v_smfmac_f32_16x16x64_bf16'
    MF = 'v_mfma_f32_16x16x32_bf16'
    MF16 = 'v_mfma_f32_16x16x16_bf16'
    ool = []
    q = Q(em)
    em(f's_mov_b32 s{sT}, 0')
    em(f's_mov_b32 s{sLayer}, 0')
    em(f's_mov_b32 s{sReady}, 0')
    em(f's_mov_b32 s{sPart}, {WS_PART}')
    em(f's_mov_b32 s{sPP}, {WS_PART + 32768}')
    em(f's_mov_b32 s{sPP + 1}, {WS_PART + 65536}')
    em(f's_lshl_b32 s{sKV}, s{sH}, 13')
    em(f's_lshl_b32 s{sT0}, s{sW}, 11')
    em(f's_add_u32 s{sKV}, s{sKV}, s{sT0}')
    em(f's_lshl_b32 s{sKM}, s{sH}, 12')
    em(f's_add_u32 s{sKM}, s{sKM}, {WS_KM}')
    if OPT.get('alias'):
        em(f's_mul_i32 s{sStream}, s{sW}, {len(SFR) * 2048}')
        em(f's_add_u32 s{sStream}, s{sStream}, {WS_STREAM}')
    for i in range((len(SFR) + 1) // 2):
        em(f's_add_u32 s{sSB + i}, s{sStream}, {4096 * i}')
    if ph:
        for i in range(NST):
            em(f's_mov_b32 s{sAcc + i}, 0')
        em('s_memtime s[94:95]')
        em('s_waitcnt lgkmcnt(0)')
    em.label('CH_LAYER')
    em(f's_mov_b32 s{sS}, 0')
    em(f's_mul_i32 s{sMemRd}, s{sH}, 10240')
    em(f's_add_u32 s{sMemRd}, s{sMemRd}, {WS_MEMB0}')
    em(f's_lshl_b32 s{sT0}, s{sLayer}, 6')
    em(f's_add_u32 s{sT0}, s{sT0}, 1')
    kv_check(em, ool)
    q.now(*kv_txt())
    q.now(*sl_txt(SLIST[3][0]))
    q.now(*sl_txt(SLIST[0][0]))
    if stamps:
        em(f's_memtime {s(sTime, 2)}')
        em('s_waitcnt lgkmcnt(0)')
    em.label('CH_STEP')
    em.forget()
    for b in (1, 2):
        q.now(*sl_txt(SLIST[b][0]))
    W0 = X4
    TW = S0
    em(f's_mul_i32 s{sT0}, s{sW}, 2560')
    em(f'v_add_u32 v{T0}, s{sT0}, v{vL16}')
    em(f'v_lshrrev_b32 v{T1}, 1, v{vL16}')
    em(f'v_add_u32 v{T1}, s{sT0}, v{T1}')
    em(f's_mov_b32 s{sSpin}, 0')
    op = {}
    lbuf = {}

    def polls():
        em(f'buffer_load_dwordx4 {v(S1, 4)}, v{vTA}, {WSR}, s{sMemRd} offen sc1')
        em(f'buffer_load_dwordx4 {v(S2, 4)}, v{vTA}, {WSR}, s{sMemRd} offen offset:512 sc1')
        em(f'buffer_load_dwordx4 {v(AB[2], 4)}, v{T0}, {WSR}, s{sMemRd} offen offset:1024 sc1')
        em(f'buffer_load_dwordx2 {v(AB[3], 2)}, v{T1}, {WSR}, s{sMemRd} offen offset:2048 sc1')

    polls()
    em(f's_and_b32 s{sT0}, s{sT}, 1')
    em(f's_mov_b32 s{sTag}, s{sT0}')
    em(f's_mul_i32 s{sMemRst}, s{sT0}, 10240')
    em(f's_sub_u32 s{sMemWr}, {WS_MEMB + 10240}, s{sMemRst}')
    em(f's_add_u32 s{sMemRst}, s{sMemRst}, {WS_MEMB}')
    em('s_waitcnt vmcnt(%d)' % (4 if OPT.get('nosl') else 8))
    q.now(*zero_txt(accQ, 12))
    em(f'v_add_u32 v{TW}, 512, v{vTA}')
    em(f'v_cndmask_b32 v{TW}, v{vTA}, v{TW}, {s(sMaskHi8, 2)}')
    op[LFR[0]] = q.now(*ll_txt(LFR[0], LB[0])); lbuf[LFR[0]] = LB[0]
    em('s_branch CH_POLL2C')
    em.label('CH_POLL2')
    polls()
    em(f's_add_u32 s{sSpin}, s{sSpin}, 1')
    em(f's_cmp_gt_u32 s{sSpin}, {SPIN_LIMIT}')
    em('s_cbranch_scc1 ABORT')
    em.label('CH_POLL2C')
    em('s_waitcnt vmcnt(2)')
    m = AB[0]
    em(f'v_max3_u32 v{m}, v{S1}, v{S1 + 1}, v{S1 + 2}')
    em(f'v_max3_u32 v{m + 1}, v{S1 + 3}, v{S2}, v{S2 + 1}')
    em(f'v_max3_u32 v{m}, v{m}, v{S2 + 2}, v{S2 + 3}')
    for i in range(4):
        em(f'v_cndmask_b32 v{W0 + i}, v{S1 + i}, v{S2 + i}, {s(sMaskHi8, 2)}')
    em('s_waitcnt vmcnt(0)')
    em(f'v_max3_u32 v{m + 1}, v{m + 1}, v{AB[2]}, v{AB[2] + 1}')
    em(f'v_max3_u32 v{m}, v{m}, v{AB[2] + 2}, v{AB[2] + 3}')
    em(f'v_max3_u32 v{m}, v{m}, v{AB[3]}, v{AB[3] + 1}')
    em(f'v_max_u32 v{m}, v{m}, v{m + 1}')
    em(f'v_cmp_eq_u32 vcc, -1, v{m}')
    em('s_cbranch_vccnz CH_POLL2')
    em.v_done = em.v_iss
    stamp(em, 0, ph)
    ACC = {'q': accQ, 'k': accK, 'v': accV}

    def smf(acc, areg, f, aop=None, reload=True, nd=2):
        if f in RREG:
            b = r(RREG[f], 8)
            q.need(aop)
        elif f in SSLOT:
            q.need(aop, None if OPT.get('nosw') else op.get(f))
            b = v(SBR[SBUF[f]], 8)
        else:
            q.need(aop, op[f])
            b = v(lbuf[f], 8)
        em(f'{SM} {v(acc, 4)}, {v(areg, 4)}, {b}, v{vIdx}')
        if f in SSLOT and reload:
            l = SLIST[SBUF[f]]
            i = l.index(f)
            if i + 1 < len(l):
                op[l[i + 1]] = q.push(*sl_txt(l[i + 1]))
        return nd

    ABX = [S1, S2, AB[2], AB[3], AB[0], AB[1]]
    abuf = {j: ABX[j % 6] for j in range(20)}
    q.now(f'ds_write_b128 v{TW}, {v(W0, 4)} offset:{L_MEM}',
          f'ds_write_b128 v{T0}, {v(AB[2], 4)} offset:{L_MEM + 1024}')
    wl = q.now(f'ds_write_b64 v{T1}, {v(AB[3], 2)} offset:{L_MEM + 2048}')
    aop = {0: None, 1: None}

    def apush(j):
        x, jj = j // 5, j % 5
        t = [vTA, T0, T1, T0][x]
        o = q.push(f'ds_read_b128 {v(abuf[j], 4)}, v{t} offset:{L_MEM + 512 * jj}')
        if jj == 4 and x < 3:
            q.push(f'v_add_u32 v{[T0, T1, T0][x]}, s{sBase[x + 1]}, v{vTA}')
        return o

    for j in (2, 3, 4):
        aop[j] = apush(j)
    lq = list(LFR[1:NL1])
    KREG = {}
    kop = {}

    def kpush(reg):
        ks = KORD[len(KREG)]
        KREG[ks] = reg
        kop[ks] = q.push(f'ds_read_b128 {v(reg, 4)}, v{vL16} offset:{L_KS + 1024 * ks}')

    VS = [AB[2], AB[3]]
    for n, d in enumerate(PH1):
        f = FID[d]
        j = d[1]
        smf(ACC[d[0]], abuf[j], f, aop[j] if not OPT.get('novw') else None, reload=d not in LEND)
        freed = None
        if f in LSLOT:
            freed = lbuf[f]
        elif f in SSLOT and SBUF[f] == 3:
            freed = LB[1]
        last = n + 1 == len(PH1) or PH1[n + 1][1] != j
        if last:
            if j == 1:
                q.drain()
                q.need(wl)
                em('s_barrier')
                for x in (5, 6, 7):
                    aop[x] = apush(x)
            elif 2 <= j < 14:
                aop[j + 6] = apush(j + 6)
            if j == 13:
                q.push(f's_lshl_b32 s{sT0}, s{sW}, 11', f'v_add_u32 v0, s{sT0}, v{vL16}')
            if j == 14:
                q.push(f'ds_read_b128 {v(VS[0], 4)}, v0 offset:{L_VS}')
            if j == 15:
                vsop = q.push(f'ds_read_b128 {v(VS[1], 4)}, v0 offset:{L_VS + 1024}')
                q.push(f's_lshl_b32 s{sT0}, s{sLayer}, 6', f's_add_u32 s{sT0}, s{sT0}, s{sS}', f's_add_u32 s{sT0}, s{sT0}, 2',
                       f's_cmp_eq_u32 s{sS}, {NSEG - 1}', f's_cselect_b32 s{sT0}, 0, s{sT0}')
            if j == 17:
                q.drain()
                q.need(vsop)
                em('s_barrier')
                kv_check(em, ool)
                q.push(*kv_txt())
        if freed is not None:
            if lq:
                nf = lq.pop(0)
                op[nf] = q.push(*ll_txt(nf, freed)); lbuf[nf] = freed
            else:
                kpush(freed); kpush(freed + 4)
        if d in LEND:
            kpush(SBR[SBUF[f]]); kpush(SBR[SBUF[f]] + 4)
        q.drain(2)
    assert len(KREG) == 8
    stamp(em, 1, ph)
    smf(accV, abuf[18], FID[('v', 18)])
    q.drain()
    em(f'v_cvt_pk_bf16_f32 v{accQ}, v{accQ}, v{accQ + 1}')
    em(f'v_cvt_pk_bf16_f32 v{accQ + 1}, v{accQ + 2}, v{accQ + 3}')
    q.now(f'ds_write_b64 v{vQXw}, {v(accQ, 2)} offset:{L_QX}')
    em(f'v_cvt_pk_bf16_f32 v{accK}, v{accK}, v{accK + 1}')
    em(f'v_cvt_pk_bf16_f32 v{accK + 1}, v{accK + 2}, v{accK + 3}')
    wq = q.now(f'ds_write_b64 v{vQXw}, {v(accK, 2)} offset:{L_KX}')
    smf(accV, abuf[19], FID[('v', 19)])
    q.need(wq)
    em('s_barrier')

    def trd(reg, base, st):
        return [f'ds_read_b64_tr_b16 {v(reg, 2)}, v{vTr} offset:{base + st * 512}',
                f'ds_read_b64_tr_b16 {v(reg + 2, 2)}, v{vTr} offset:{base + st * 512 + 256}']

    QF = [X4, accQ, accK, KREG[0]]
    qop = [q.now(*trd(QF[st], L_QX, st)) for st in range(3)]
    smf(accV, abuf[16], FID[('v', 16)])
    smf(accV, abuf[17], FID[('v', 17)])
    q.drain()
    KM = [KREG[4], KREG[1], KREG[5], KREG[2]]
    kmop = {}
    for st in range(4):
        q.need(qop[st], kop[st], kop[4 + st])
        for t, acc in ((0, S0), (1, S1)):
            c = '0' if st == 0 else v(acc, 4)
            em(f'{MF} {v(acc, 4)}, {v(KREG[4 * t + st], 4)}, {v(QF[st], 4)}, {c}')
            if st == 0 and t == 0:
                qop.append(q.push(*trd(QF[3], L_QX, 3)))
            if st == 0 and t == 1:
                kmop[0] = q.push(*trd(KM[0], L_KX, 0))
            if st == 1:
                kmop[1 + t] = q.push(*trd(KM[1 + t], L_KX, 1 + t))
            if st == 2 and t == 0:
                kmop[3] = q.push(*trd(KM[3], L_KX, 3))
            q.drain(2)
    ONES = KREG[6]
    A_, B_ = AB[1], AB[1] + 1
    assert KREG[1] == LB[0] and KREG[2] == LB[1]
    for st in range(4):
        q.need(kmop[st])
        c = '0' if st == 0 else v(S2, 4)
        em(f'{MF} {v(S2, 4)}, {v(KM[st], 4)}, {v(QF[st], 4)}, {c}')
        em(f'v_mov_b32 v{ONES + st}, 0x3f803f80')
        if st == 2:
            em(f'v_max3_f32 v{A_}, v{S0}, v{S0 + 1}, v{S0 + 2}')
        if st == 3:
            em(f'v_max3_f32 v{A_}, v{A_}, v{S0 + 3}, v{S1}')
    stamp(em, 2, ph)
    for b in (1, 2):
        op[SLIST[b][2]] = q.now(*sl_txt(SLIST[b][2]))
    em(f'v_max3_f32 v{A_}, v{A_}, v{S1 + 1}, v{S1 + 2}')
    em(f'v_max_f32 v{A_}, v{A_}, v{S1 + 3}')
    em(f'v_mov_b32 v{A_ + 2}, s{sC}')
    em(f'v_mov_b32 v{A_ + 3}, s{sC}')
    em(f'v_cvt_pk_bf16_f32 v{AB[0]}, v{accV}, v{accV + 1}')
    em(f'v_cvt_pk_bf16_f32 v{AB[0] + 1}, v{accV + 2}, v{accV + 3}')
    em(f'v_max3_f32 v{A_}, v{A_}, v{S2}, v{S2 + 1}')
    em(f'v_max3_f32 v{A_}, v{A_}, v{S2 + 2}, v{S2 + 3}')
    em(f'v_mov_b32 v{B_}, v{A_}')
    q.now(f'ds_write_b64 v{vQXw}, {v(AB[0], 2)} offset:{L_VX}')
    em('s_nop 0')
    em(f'v_permlane32_swap_b32 v{A_}, v{B_}')
    em(f'v_max_f32 v{A_}, v{A_}, v{B_}')
    em(f'v_mov_b32 v{B_}, v{A_}')
    em(f's_cmp_eq_u32 s{sS}, {NSEG - 1}')
    em('s_cbranch_scc1 CH_LAYER_END')
    em(f'v_permlane16_swap_b32 v{A_}, v{B_}')
    em(f'v_max_f32 v{A_}, v{A_}, v{B_}')
    em(f'v_mul_f32 v{A_}, s{sC}, v{A_}')
    em(f'v_mov_b32 v{B_}, v{A_}')
    P01 = accK
    PM = accQ
    VM = AB[0]
    for i in range(0, 12, 2):
        em(f'v_pk_fma_f32 {v(S0 + i, 2)}, {v(S0 + i, 2)}, {v(A_ + 2, 2)}, {v(A_, 2)} neg_lo:[0,0,1] neg_hi:[0,0,1]')
    for i in range(12):
        em(f'v_exp_f32 v{S0 + i}, v{S0 + i}')
    for i in range(4):
        em(f'v_cvt_pk_bf16_f32 v{P01 + i}, v{S0 + 2 * i}, v{S0 + 2 * i + 1}')
    em(f'v_cvt_pk_bf16_f32 v{X4}, v{S2}, v{S2 + 1}')
    em(f'v_cvt_pk_bf16_f32 v{X4 + 1}, v{S2 + 2}, v{S2 + 3}')
    O0, O1, SUM = KREG[1], KREG[5], KREG[2]
    q.need(vsop)
    em(f'{MF} {v(SUM, 4)}, {v(ONES, 4)}, {v(P01, 4)}, 0')
    em(f'v_cndmask_b32 v{PM}, 0, v{X4}, {s(sMaskLo32, 2)}')
    em(f'v_cndmask_b32 v{PM + 1}, 0, v{X4 + 1}, {s(sMaskLo32, 2)}')
    em(f'{MF} {v(O0, 4)}, {v(VS[0], 4)}, {v(P01, 4)}, 0')
    em(f'v_cndmask_b32 v{PM + 2}, v{X4}, 0, {s(sMaskLo32, 2)}')
    em(f'v_cndmask_b32 v{PM + 3}, v{X4 + 1}, 0, {s(sMaskLo32, 2)}')
    em(f'{MF16} {v(SUM, 4)}, {v(ONES, 2)}, {v(PM, 2)}, {v(SUM, 4)}')
    WA = [accV, S0, S1, S2, X4]
    zt = zero_txt(accV, 20)
    q.now(*zt[0:2])
    em(f'{MF} {v(O1, 4)}, {v(VS[1], 4)}, {v(P01, 4)}, 0')
    em(f'v_add_u32 v{T0}, s{sOXw}, v{vTA}')
    q.now(zt[2])
    em(f'{MF16} {v(O0, 4)}, {v(VM, 2)}, {v(PM, 2)}, {v(O0, 4)}')
    q.now(*zt[3:5])
    em(f'{MF16} {v(O1, 4)}, {v(VM, 2)}, {v(PM + 2, 2)}, {v(O1, 4)}')
    q.now(*zt[5:7])
    em(f'v_rcp_f32 v{A_}, v{SUM}')
    q.now(*zt[7:9])
    em(f'v_mov_b32 v{B_}, v{A_}')
    q.now(zt[9])
    for o in (O0, O0 + 2, O1, O1 + 2):
        em(f'v_pk_mul_f32 {v(o, 2)}, {v(o, 2)}, {v(A_, 2)}')
    OF = [AB[1], AB[0], accQ, accK]
    em(f'v_cvt_pk_bf16_f32 v{OF[0]}, v{O0}, v{O0 + 1}')
    em(f'v_cvt_pk_bf16_f32 v{OF[0] + 1}, v{O0 + 2}, v{O0 + 3}')
    em(f'v_cvt_pk_bf16_f32 v{OF[0] + 2}, v{O1}, v{O1 + 1}')
    em(f'v_cvt_pk_bf16_f32 v{OF[0] + 3}, v{O1 + 2}, v{O1 + 3}')
    wo = q.now(f'ds_write_b128 v{T0}, {v(OF[0], 4)}')
    LST = [LB[0], LB[1], AB[2]]
    lq = list(LFR[NL1:])
    for n in range(3):
        nf = lq.pop(0)
        op[nf] = q.push(*ll_txt(nf, LST[n])); lbuf[nf] = LST[n]

    def wstep(p, x, aop_=None, nd=2):
        f = FID[('o', p, x)]
        smf(WA[p], OF[x], f, aop_)
        if f in LSLOT and lq:
            nf = lq.pop(0)
            op[nf] = q.push(*ll_txt(nf, lbuf[f])); lbuf[nf] = lbuf[f]
        q.drain(nd)

    wstep(2, 0, nd=2)
    em(f'v_add_u32 v{T0}, s{sOXr[1]}, v{vTA}')
    wstep(3, 0, nd=2)
    em(f'v_add_u32 v{T1}, s{sOXr[2]}, v{vTA}')
    em(f'v_add_u32 v0, s{sOXr[3]}, v{vTA}')
    q.need(wo)
    em('s_barrier')
    stamp(em, 3, ph)
    oop = {}
    for x, t_ in ((1, T0), (2, T1), (3, 0)):
        oop[x] = q.now(f'ds_read_b128 {v(OF[x], 4)}, v{t_}')
    q.drain(4)
    wstep(4, 0); wstep(0, 0); wstep(1, 0)
    em(f'v_add_u32 v{T0}, {L_SEL}, v{vL16}')

    def cvt2(dst, acc):
        return [f'v_cvt_pk_bf16_f32 v{dst}, v{acc}, v{acc + 1}',
                f'v_cvt_pk_bf16_f32 v{dst + 1}, v{acc + 2}, v{acc + 3}']

    def tagst(reg, so):
        return [f'v_and_or_b32 v{reg}, v{reg}, -2, s{sTag}',
                f'buffer_store_dwordx4 {v(reg, 4)}, v{vPartSt}, {WSR}, s{so} offen']

    a4 = WA[4]
    EPI = {4: cvt2(a4, a4) + [f'v_mov_b64 {v(a4 + 2, 2)}, {v(a4, 2)}', 's_nop 0', 's_nop 0',
                              f'v_permlane32_swap_b32 v{a4}, v{a4 + 2}', f'v_permlane32_swap_b32 v{a4 + 1}, v{a4 + 3}',
                              f'v_and_or_b32 v{a4}, v{a4}, -2, s{sTag}', f's_mov_b64 exec, {s(sMaskLo32, 2)}',
                              f'buffer_store_dwordx4 {v(a4, 4)}, v{vPartSt}, {WSR}, s{sPP + 1} offen', 's_mov_b64 exec, -1'],
           0: cvt2(WA[0], WA[0]),
           1: cvt2(WA[0] + 2, WA[1]) + tagst(WA[0], sPart),
           2: cvt2(WA[2], WA[2]) + [f'v_and_or_b32 v{WA[2]}, v{WA[2]}, -2, s{sTag}'],
           3: cvt2(WA[2] + 2, WA[3]) + [f'buffer_store_dwordx4 {v(WA[2], 4)}, v{vPartSt}, {WSR}, s{sPP} offen']}
    SEL = OF[0]
    pend = []
    for p in (4, 0, 1, 2, 3):
        for x in (1, 2, 3):
            wstep(p, x, oop[x])
            if p == 1 and x == 2:
                q.need(*[op[SLIST[b][-1]] for b in range(3)])
            if p == 0 and x == 1:
                selop = q.push(f'ds_read_b128 {v(SEL, 4)}, v{T0}')
            if x >= 2 or p in (1,):
                k = 0
                while pend and (k < 2 or 'exec, -1' in pend[0] or 'buffer_store' in pend[0]):
                    q.now(pend.pop(0)); k += 1
        pend += EPI[p]
    q.drain()
    em(f's_mov_b32 s{sSpin}, 0')
    em(f's_cmp_eq_u32 s{sIsRed}, 0')
    q.need(selop)
    q.now(*pend)
    q.now(*sl_txt(SLIST[3][0]))
    q.now(*sl_txt(SLIST[0][0]))
    stamp(em, 4, ph)
    if ph:
        em(f's_cmp_eq_u32 s{sIsRed}, 0')
    em('s_cbranch_scc1 CH_NORED')
    PDS = [AB[2], accV]
    D = OF[1]
    NEG = LB[0]
    m = LB[0] + 1

    def p1_issue(PD):
        for n in range(4):
            em(f'buffer_load_dwordx4 {v(PD + 4 * n, 4)}, v{vPartLd}, {WSR}, s{sPart} offen offset:{1024 * n} sc1')

    def p1_check(PD, base=7):
        if ph and not OPT.get('abs'):
            em(f's_add_u32 s{sAcc + 7}, s{sAcc + 7}, 1')
        for n in range(4):
            em(f's_waitcnt vmcnt({base - n})')
            c = '0' if n == 0 else v(D, 4)
            em(f'{MF} {v(D, 4)}, {v(SEL, 4)}, {v(PD + 4 * n, 4)}, {c}')
            if n == 0:
                em(f'v_xor_b32 v{m}, s{sTag}, v{PD}')
            else:
                em(f'v_bitop3_b32 v{m}, v{m}, v{PD + 4 * n}, s{sTag} bitop3:0xf6')
        em(f'v_and_b32 v{m}, 1, v{m}')
        em(f'v_cmp_ne_u32 vcc, 0, v{m}')

    def red_tail(lab=None):
        stamp(em, 5, ph)
        for i in range(4):
            em(f'v_add_f32_dpp v{D + i}, v{D + i}, v{D + i} row_ror:8 row_mask:0xf bank_mask:0xf')
        em(f'v_cvt_pk_bf16_f32 v{D}, v{D}, v{D + 1}')
        em(f'v_cvt_pk_bf16_f32 v{D + 1}, v{D + 2}, v{D + 3}')
        em(f'v_cndmask_b32 v{D}, v{D}, v{D + 1}, {s(sMaskHi8, 2)}')
        em(f'v_min_u32 v{D}, -2, v{D}')
        em(f'buffer_store_dword v{D}, v{vMemSt}, {WSR}, s{sMemWr} offen')
        em(f'buffer_store_dword v{NEG}, v{vMemSt}, {WSR}, s{sMemRst} offen')
        if hist:
            em(f's_mul_i32 s{sT0}, s{sT}, 10240')
            em(f's_add_u32 s{sT0}, s{sT0}, {WS_HIST}')
            em(f'buffer_store_dword v{D}, v{vMemSt}, {WSR}, s{sT0} offen')
        if lab:
            em.label(lab)
        em('s_barrier')
        stamp(em, 6, ph)
        em(f's_mov_b32 s{sMemRd}, s{sMemWr}')
        em(f's_add_u32 s{sT}, s{sT}, 1')
        em(f's_add_u32 s{sS}, s{sS}, 1')
        em('s_branch CH_STEP')

    em(f'v_mov_b32 v{NEG}, -1')
    if OPT.get('ack'):
        em('s_waitcnt vmcnt(4)')
        if OPT.get('abs'):
            stamp(em, 7, ph)
    em.nops(OPT.get('d1', 16))
    if OPT.get('one'):
        em.label('CH_POLL1S')
        p1_issue(PDS[0])
        em(f's_add_u32 s{sSpin}, s{sSpin}, 1')
        em(f's_cmp_gt_u32 s{sSpin}, {SPIN_LIMIT}')
        em('s_cbranch_scc1 ABORT')
        p1_check(PDS[0], 3)
        em('s_cbranch_vccnz CH_POLL1S')
        red_tail()
    p1_issue(PDS[0])
    em.nops(OPT.get('d2', 16))
    em.label('CH_POLL1')
    p1_issue(PDS[1])
    p1_check(PDS[0])
    em('s_cbranch_vccnz CH_POLL1B')
    red_tail('CH_RED_DONE')
    em.label('CH_POLL1B')
    p1_issue(PDS[0])
    em(f's_add_u32 s{sSpin}, s{sSpin}, 1')
    em(f's_cmp_gt_u32 s{sSpin}, {SPIN_LIMIT}')
    em('s_cbranch_scc1 ABORT')
    p1_check(PDS[1])
    em('s_cbranch_vccnz CH_POLL1')
    red_tail()

    em.label('CH_NORED')
    em(f's_cmp_lg_u32 s{sW}, 3')
    em('s_cbranch_scc1 CH_RED_DONE')
    pub_kv(em)
    em(f's_lshl_b32 s{sT0}, s{sLayer}, 6')
    em(f's_add_u32 s{sT0}, s{sT0}, s{sS}')
    em(f'v_mov_b32 v{X4}, s{sT0}')
    em(f'v_mov_b32 v{X4 + 1}, 24')
    em(f'buffer_store_dword v{X4}, v{X4 + 1}, {WSR}, s{sFlag} offen sc1')
    em('s_branch CH_RED_DONE')
    for lab, lp in ool:
        kv_slow(em, lab, lp)

    em.label('CH_LAYER_END')
    em('s_waitcnt vmcnt(0) lgkmcnt(0)')
    em(f's_sub_u32 s{sKV}, s{sKV}, {32 * 8192}')
    if stamps:
        em(f's_memtime {s(sTime + 2, 2)}')
        em('s_waitcnt lgkmcnt(0)')
        em(f's_sub_u32 s{sT0}, s{sTime + 2}, s{sTime}')
        em(f'v_mov_b32 v{X4}, s{sT0}')
        em(f's_lshl_b32 s{sT0}, s{sLayer}, 2')
        em(f's_add_u32 s{sT0}, s{sT0}, 8')
        em(f'v_mov_b32 v{X4 + 1}, s{sT0}')
        em(f'buffer_store_dword v{X4}, v{X4 + 1}, {s(SDBG, 4)}, 0 offen')
    em('s_barrier')
    em(f's_add_u32 s{sLayer}, s{sLayer}, 1')
    em(f's_cmp_lg_u32 s{sW}, 3')
    em('s_cbranch_scc1 CH_LE2')
    pub_kv(em)
    em(f's_lshl_b32 s{sT0}, s{sLayer}, 6')
    em(f'v_mov_b32 v{X4}, s{sT0}')
    em(f'v_mov_b32 v{X4 + 1}, 24')
    em('s_waitcnt vmcnt(0)')
    em(f'buffer_store_dword v{X4}, v{X4 + 1}, {WSR}, s{sFlag} offen sc1')
    em.label('CH_LE2')
    em('s_barrier')
    em(f's_cmp_lt_u32 s{sLayer}, {nlayers}')
    em('s_cbranch_scc1 CH_LAYER')
    em('s_waitcnt vmcnt(0)')
    if ph:
        em(f's_lshl_b32 s{sT0}, s{sH}, 2')
        em(f's_add_u32 s{sT0}, s{sT0}, s{sW}')
        em(f's_lshl_b32 s{sT0}, s{sT0}, 5')
        em(f's_add_u32 s{sT0}, s{sT0}, {WS_HIST + 0x180000}')
        for i in range(NST):
            em(f'v_mov_b32 v{X4}, s{sAcc + i}')
            em(f'v_mov_b32 v{X4 + 1}, {4 * i}')
            em(f'buffer_store_dword v{X4}, v{X4 + 1}, {WSR}, s{sT0} offen')
        em('s_waitcnt vmcnt(0)')


KORD = [0, 4, 1, 5, 2, 6, 3, 7]
```

```python
from emit import *
from layout import *
import chain as C

def header(name, grid=256, lds=LDS_BYTES, pre=''):
    return (pre + f"; @launch grid=({grid},1,1) block=(256,1,1) lds={lds}\n"
            f'.amdgcn_target "amdgcn-amd-amdhsa--gfx950"\n.text\n.globl {name}\n.p2align 8\n.type {name},@function\n{name}:\n')

def footer(name):
    return f"""
.section .rodata,"a"
.p2align 6
.amdhsa_kernel {name}
  .amdhsa_next_free_vgpr 512
  .amdhsa_next_free_sgpr 102
  .amdhsa_accum_offset 256
  .amdhsa_group_segment_fixed_size 0
  .amdhsa_kernarg_size 120
  .amdhsa_user_sgpr_count 2
  .amdhsa_user_sgpr_kernarg_segment_ptr 1
  .amdhsa_system_sgpr_workgroup_id_x 1
.end_amdhsa_kernel
"""

DBGR = s(C.SDBG, 4)
WSR = C.WSR
sRank, sXcc = 38, 39
DBG_TICKET = 0
DBG_ARRIVE = 128
DBG_ABORT = 4
DBG_STAMP = 8


def elect(em):
    em('s_cmp_ge_u32 s2, 256')
    em('s_cbranch_scc1 DONE')
    C.srd(em, C.SWS, KA_WS, WS_BYTES)
    C.srd(em, C.SDBG, KA_DBG, 256)
    em(f's_getreg_b32 s{sXcc}, hwreg(HW_REG_XCC_ID)')
    em(f's_and_b32 s{sXcc}, s{sXcc}, 15')
    em('s_waitcnt lgkmcnt(0)')
    em(f's_cmp_gt_u32 s{sXcc}, 7')
    em('s_cbranch_scc1 ABORT')
    em('v_mov_b32 v4, 0')
    em(f's_lshl_b32 s36, s{sXcc}, 4')
    em('v_mov_b32 v5, s36')
    em('v_cmp_eq_u32 vcc, 0, v0')
    em('s_and_saveexec_b64 s[34:35], vcc')
    em('s_cbranch_execz EL_SKIP')
    em('v_mov_b32 v6, 1')
    em(f'buffer_atomic_add v6, v5, {DBGR}, 0 offen offset:{DBG_TICKET} sc0 sc1')
    em('s_waitcnt vmcnt(0)')
    em('ds_write_b32 v4, v6')
    em('s_waitcnt lgkmcnt(0)')
    em.label('EL_SKIP')
    em('s_mov_b64 exec, s[34:35]')
    em('s_barrier')
    em('ds_read_b32 v6, v4')
    em('s_waitcnt lgkmcnt(0)')
    em(f'v_readfirstlane_b32 s{sRank}, v6')
    em('s_barrier')
    em(f's_cmp_gt_u32 s{sRank}, 31')
    em('s_cbranch_scc1 ABORT')


def arrive(em):
    lab = em.newlabel('ARR')
    em('s_waitcnt vmcnt(0) lgkmcnt(0)')
    em('s_barrier')
    em(f's_lshl_b32 s36, s{sXcc}, 4')
    em('v_mov_b32 v11, s36')
    em('v_cmp_eq_u32 vcc, 0, v0')
    em('s_and_saveexec_b64 s[34:35], vcc')
    em(f's_cbranch_execz {lab}')
    em('v_mov_b32 v10, 1')
    em(f'buffer_atomic_add v10, v11, {DBGR}, 0 offen offset:{DBG_ARRIVE} sc1')
    em.label(lab)
    em('s_mov_b64 exec, s[34:35]')


def wait_start(em, mask=0xff):
    lp = em.newlabel('WST')
    em('v_and_b32 v11, 7, v0')
    em(f'v_lshrrev_b32 v10, v11, {mask}') if False else None
    em('v_lshlrev_b32 v11, 4, v11')
    em(f's_mov_b32 s{C.sSpin}, 0')
    em.label(lp)
    em(f'buffer_load_dword v10, v11, {DBGR}, 0 offen offset:{DBG_ARRIVE} sc1')
    em(f's_add_u32 s{C.sSpin}, s{C.sSpin}, 1')
    em(f's_cmp_gt_u32 s{C.sSpin}, {C.SPIN_LIMIT}')
    em('s_cbranch_scc1 ABORT')
    em('s_waitcnt vmcnt(0)')
    em('v_cmp_gt_u32 vcc, 32, v10')
    if mask != 0xff:
        m = sum(mask << (8 * i) for i in range(4))
        em(f's_and_b32 vcc_lo, vcc_lo, {hex(m)}')
        em(f's_and_b32 vcc_hi, vcc_hi, {hex(m)}')
        em('s_cmp_lg_u64 vcc, 0')
        em('s_sleep 2')
        em(f's_cbranch_scc1 {lp}')
    else:
        em('s_sleep 2')
        em(f's_cbranch_vccnz {lp}')


def tail(em):
    em('s_branch DONE')
    em.label('ABORT')
    em('s_mov_b64 exec, -1')
    em('v_mov_b32 v10, 0xdead')
    em(f'v_mov_b32 v11, {DBG_ABORT}')
    em(f'buffer_store_dword v10, v11, {DBGR}, 0 offen')
    em.label('DONE')
    em('s_endpgm')
```

```python
import re

_REG = re.compile(r'^(-|\|)?(abs\()?([vas])(\d+)\)?\|?$')
_RNG = re.compile(r'^(-)?([vas])\[(\d+):(\d+)\]$')

TRANS = ('v_exp_f32', 'v_log_f32', 'v_rcp_f32', 'v_rsq_f32', 'v_sqrt_f32', 'v_sin_f32', 'v_cos_f32',
         'v_rcp_iflag_f32')


def regs_of(tok):
    tok = tok.strip()
    m = _REG.match(tok)
    if m:
        return {(m.group(3), int(m.group(4)))}
    m = _RNG.match(tok)
    if m:
        return {(m.group(2), i) for i in range(int(m.group(3)), int(m.group(4)) + 1)}
    if tok == 'vcc':
        return {('s', 106), ('s', 107)}
    if tok == 'vcc_lo':
        return {('s', 106)}
    if tok == 'vcc_hi':
        return {('s', 107)}
    if tok == 'exec':
        return {('s', 126), ('s', 127)}
    if tok == 'm0':
        return {('s', 124)}
    return set()


def mfma_passes(mn):
    if '32x32' in mn:
        return 8
    if '16x16' in mn:
        return 4
    raise ValueError(mn)


class Ins:
    __slots__ = ('text', 'mn', 'kind', 'defs', 'uses', 'ab', 'c', 'passes', 'dpp', 'states', 'stdata', 'lds_dma',
                 'maskuse')

    def __init__(self, text):
        self.text = text
        t = text.split(';')[0].strip()
        self.defs = set(); self.uses = set(); self.ab = set(); self.c = set()
        self.passes = 0; self.dpp = False; self.states = 1; self.stdata = set(); self.lds_dma = False
        self.maskuse = set()
        if not t or t.endswith(':') or t.startswith('.'):
            self.mn = ''; self.kind = 'label'; self.states = 0
            return
        parts = t.split(None, 1)
        mn = parts[0]
        self.mn = mn
        rest = parts[1] if len(parts) > 1 else ''
        raw = [o.strip() for o in rest.split(',')]
        ops = []
        mods = ''
        for o in raw:
            sp = o.split(None, 1)
            if not sp:
                continue
            ops.append(sp[0])
            if len(sp) > 1:
                mods += ' ' + sp[1]
        R = [regs_of(o) for o in ops]
        if mn == 's_nop':
            self.kind = 'nop'; self.states = int(ops[0], 0) + 1
        elif mn.startswith('v_mfma') or mn.startswith('v_smfmac'):
            self.kind = 'mfma'; self.passes = mfma_passes(mn)
            self.defs = R[0]
            if mn.startswith('v_smfmac'):
                self.ab = R[1] | R[2] | R[3]; self.c = R[0]
            else:
                self.ab = R[1] | R[2]; self.c = R[3]
            self.uses = self.ab | self.c
        elif mn.startswith('v_'):
            self.kind = 'valu'
            self.dpp = ('_dpp' in mn) or ('row_' in rest) or ('quad_perm' in rest)
            if mn.startswith('v_cmp'):
                self.defs = R[0]; self.uses = set().union(*R[1:])
            elif mn.startswith('v_permlane'):
                self.defs = R[0] | R[1]; self.uses = R[0] | R[1]
            elif mn.startswith(('v_add_co', 'v_sub_co', 'v_subrev_co', 'v_addc_co', 'v_subb_co', 'v_mad_u64')):
                self.defs = R[0] | R[1]; self.uses = set().union(*R[2:])
            else:
                self.defs = R[0]; self.uses = set().union(*R[1:]) if len(R) > 1 else set()
                if mn.startswith(('v_fmac', 'v_dot2c', 'v_pk_fmac', 'v_writelane')) or self.dpp:
                    self.uses |= R[0]
            if mn.startswith('v_cndmask') and len(R) == 3:
                self.uses |= regs_of('vcc')
        elif mn.startswith(('buffer_', 'global_')):
            self.kind = 'vmem'
            if mn in ('buffer_wbl2', 'buffer_inv'):
                pass
            elif 'load' in mn:
                if re.search(r'\blds\b', mods) or '_lds_' in mn:
                    self.lds_dma = True
                    self.uses = set().union(*R) | {('s', 124)}
                else:
                    self.defs = R[0]; self.uses = set().union(*R[1:])
                    if 'd16' in mn:
                        self.uses |= R[0]
            elif 'atomic' in mn:
                self.uses = set().union(*R)
                if 'sc0' in mods:
                    self.defs = R[0]
            else:
                self.uses = set().union(*R)
                if mn.endswith(('x3', 'x4')):
                    self.stdata = R[0] if mn.startswith('buffer') else R[1]
        elif mn.startswith('ds_'):
            self.kind = 'ds'
            if mn.startswith(('ds_read', 'ds_bpermute', 'ds_permute', 'ds_swizzle')) or '_rtn' in mn:
                self.defs = R[0]; self.uses = set().union(*R[1:])
            else:
                self.uses = set().union(*R)
        elif mn.startswith('s_'):
            self.kind = 'salu'
            if mn.startswith(('s_cmp', 's_cbranch', 's_branch', 's_waitcnt', 's_barrier', 's_endpgm', 's_sleep',
                              's_setprio', 's_bitcmp')):
                self.uses = set().union(*R) if R else set()
            else:
                self.defs = R[0] if R else set()
                self.uses = set().union(*R[1:]) if len(R) > 1 else set()
                if 'saveexec' in mn:
                    self.defs |= regs_of('exec')
        else:
            raise ValueError('unknown instruction: ' + text)


def _isv(r):
    return r[0] in 'va'


def pad_hazards(ins_list):
    out = []
    hist = []

    def need(cur):
        n = 0
        for p, age in hist:
            req = 0
            if p.kind == 'valu':
                vd = {r for r in p.defs if _isv(r)}
                sd = {r for r in p.defs if r[0] == 's'}
                if cur.kind == 'mfma' and vd & cur.uses:
                    req = max(req, 2)
                if cur.kind == 'valu':
                    if vd & cur.uses:
                        if cur.dpp or cur.mn.startswith('v_permlane'):
                            req = max(req, 2)
                        if cur.mn.startswith(('v_readlane', 'v_readfirstlane')):
                            req = max(req, 1)
                        if p.mn.replace('_e32', '').replace('_e64', '') in TRANS:
                            req = max(req, 1)
                        if 'sdwa' in p.mn or 'op_sel' in p.text:
                            req = max(req, 1)
                    if sd & cur.uses:
                        req = max(req, 4 if cur.mn.startswith(('v_readlane', 'v_writelane')) else 2)
                if cur.kind in ('vmem', 'ds') and p.mn.replace('_e32', '') in TRANS and vd & cur.uses:
                    req = max(req, 1)
                if cur.kind == 'vmem' and sd & cur.uses:
                    req = max(req, 5)
                if cur.kind == 'salu' and sd & cur.uses and not cur.mn.startswith('s_cbranch'):
                    req = max(req, 1)
            elif p.kind == 'mfma':
                big = {4: 8, 8: 12, 16: 20}[p.passes]
                if cur.kind == 'mfma':
                    if p.defs & cur.ab:
                        req = max(req, big)
                    if p.defs & cur.c:
                        if not (p.defs == cur.c and p.mn == cur.mn):
                            req = max(req, big - 2)
                    elif p.defs & cur.defs:
                        req = max(req, big - 2)
                elif cur.kind in ('valu', 'vmem', 'ds'):
                    if p.defs & (cur.uses | cur.defs):
                        req = max(req, big)
                    if cur.kind == 'valu' and p.c & cur.defs:
                        req = max(req, {4: 3, 8: 7, 16: 15}[p.passes])
            elif p.kind == 'vmem':
                if p.stdata & cur.defs:
                    req = max(req, 2)
            elif p.kind == 'salu':
                if ('s', 124) in p.defs and cur.lds_dma:
                    req = max(req, 1)
            if req > age:
                n = max(n, req - age)
        return n

    for cur in ins_list:
        if cur.kind == 'label':
            out.append(cur)
            continue
        n = need(cur)
        while n > 0:
            k = min(n, 16)
            nop = Ins(f's_nop {k - 1}')
            out.append(nop)
            for h in hist:
                h[1] += k
            n -= k
        out.append(cur)
        for h in hist:
            h[1] += cur.states
        hist.append([cur, 0])
        hist = [h for h in hist if h[1] < 21]
    return out


class Em:
    def __init__(self):
        self.ins = []
        self.l_iss = 0; self.l_done = 0
        self.v_iss = 0; self.v_done = 0
        self.uid = 0

    def __call__(self, text):
        for line in text.split('\n'):
            line = line.strip()
            if line:
                self.ins.append(Ins(line))

    def label(self, name):
        self.ins.append(Ins(name + ':'))

    def newlabel(self, base):
        self.uid += 1
        return f'{base}_{self.uid}'

    def ds(self, text):
        self(text)
        self.l_iss += 1
        return self.l_iss

    def vm(self, text):
        self(text)
        if 'store' in text.split()[0] or 'atomic' in text.split()[0]:
            return None
        self.v_iss += 1
        return self.v_iss

    def wait(self, l=None, v=None):
        parts = []
        if v is not None and v > self.v_done:
            n = min(self.v_iss - v, 63)
            parts.append(f'vmcnt({n})')
            self.v_done = self.v_iss - n
        if l is not None and l > self.l_done:
            n = min(self.l_iss - l, 15)
            parts.append(f'lgkmcnt({n})')
            self.l_done = self.l_iss - n
        if parts:
            self('s_waitcnt ' + ' '.join(parts))

    def wait_all(self, l=True, v=True):
        parts = []
        if v:
            parts.append('vmcnt(0)'); self.v_done = self.v_iss
        if l:
            parts.append('lgkmcnt(0)'); self.l_done = self.l_iss
        self('s_waitcnt ' + ' '.join(parts))

    def forget(self):
        self.l_done = -10**9; self.v_done = -10**9

    def nops(self, n):
        while n > 0:
            k = min(n, 16)
            self(f's_nop {k - 1}')
            n -= k

    def text(self):
        return '\n'.join(i.text for i in pad_hazards(self.ins))


def v(i, n=1):
    return f'v{i}' if n == 1 else f'v[{i}:{i + n - 1}]'


def a(i, n=1):
    return f'a{i}' if n == 1 else f'a[{i}:{i + n - 1}]'


def s(i, n=1):
    return f's{i}' if n == 1 else f's[{i}:{i + n - 1}]'


def r(i, n=1):
    return v(i, n) if i < 256 else a(i - 256, n)
```

```python
S, DM, H, DH, M, SEG, NSEG, F = 2048, 640, 32, 128, 8, 32, 64, 1728
WS_BYTES = 268435456

WS_HFLAG = 0x0
WS_AWF = 0x1000
WS_HTF = 0x1400
WS_GTF = 0x2000
WS_UTF = 0x3000
WS_XTF = 0x3800
WS_FLAG_BYTES = 0x4000
WS_MEMB = 0x10000
WS_MEMB0 = 0x20000
WS_PART = 0x80000
PART_SLOT = 327680
WS_STREAM = 0x200000
WS_HIST = 0x600000
WS_KM = 0x800000
WS_VM = 0x1800000
WS_Q = 0x2000000
WS_K = 0x4000000
WS_V = 0x6000000

WS_H = 0x8000000
XB = 2048 * 640 * 2
WS_X1 = 0x8800000
WS_X2 = 0x9000000
WS_G = 0x9400000
WS_U = 0x9c00000
UB = 40 * 54 * 1024
WS_AP = 0xa400000
APB = 40960
assert WS_AP + 64 * 32 * APB <= WS_BYTES

KA_X, KA_MEM0, KA_WQ, KA_WK, KA_WV, KA_WO, KA_SEGLEN, KA_BX, KA_W1, KA_B1, KA_W2, KA_B2, KA_OUT, KA_DBG, KA_WS = \
    [8 * i for i in range(15)]

L_MEM = 0
L_QX = 10240
L_KX = 12288
L_VX = 2048
L_KS = 14336
L_VS = 22528
L_W = 30720
L_SEL = 161792
LDS_BYTES = 163840
```

```python
import struct, math
from emit import *
from layout import *
import chain as C
from chain import Q, srd, WSR, SPIN_LIMIT, sSpin

MF = 'v_mfma_f32_16x16x32_bf16'
MF16 = 'v_mfma_f32_16x16x16_bf16'
SX, SWM, SW1, SW2, SB1, SB2, SOUT = 12, 16, 20, 24, 28, 40, 44
wR, sW, sLay = 48, 49, 50
t0, t1, t2, t3, t4, t5 = 51, 52, 53, 54, 55, 56
sIt, sNeed, sHd, sFl, sA, sB_, sC_, sD_ = 57, 58, 59, 60, 61, 62, 63, 64
sMLo32, sE_, sF_ = 66, 68, 70
sSeg, sMat = 71, 72
OPT = {}


def f32(x):
    return hex(struct.unpack('<I', struct.pack('<f', x))[0])


def wait_flags(em, soff, n, need, va, vb, sleep=4):
    lp = em.newlabel('WF')
    em(f'v_min_u32 v{va}, {n - 1}, v1')
    em(f'v_lshlrev_b32 v{va}, 2, v{va}')
    em(f's_mov_b32 s{sSpin}, 0')
    em.label(lp)
    em(f'buffer_load_dword v{vb}, v{va}, {WSR}, s{soff} offen sc1')
    em(f's_add_u32 s{sSpin}, s{sSpin}, 1')
    em(f's_cmp_gt_u32 s{sSpin}, {SPIN_LIMIT}')
    em('s_cbranch_scc1 ABORT')
    em('s_waitcnt vmcnt(0)')
    em.v_done = em.v_iss
    em(f'v_cmp_gt_u32 vcc, {need}, v{vb}')
    ok = em.newlabel('WFOK')
    em(f's_cbranch_vccz {ok}')
    em(f's_sleep {sleep}')
    em(f's_branch {lp}')
    em.label(ok)


def publish(em, soff, val, va, vb):
    lab = em.newlabel('PUB')
    em.wait_all()
    em('s_barrier')
    em(f's_cmp_lg_u32 s{sW}, 0')
    em(f's_cbranch_scc1 {lab}')
    em(f'v_mov_b32 v{va}, 0')
    em(f'v_mov_b32 v{vb}, {val}')
    em(f'buffer_store_dword v{vb}, v{va}, {WSR}, s{soff} offen sc1')
    em.label(lab)


def rbf(em, dst, src):
    em(f'v_cvt_pk_bf16_f32 v{dst}, v{src}, v{src}')
    em(f'v_and_b32 v{dst}, 0xffff0000, v{dst}')


def xg_sum(em, a_, b_):
    em(f'v_mov_b32 v{b_}, v{a_}')
    em(f'v_permlane32_swap_b32 v{a_}, v{b_}')
    em(f'v_add_f32 v{a_}, v{a_}, v{b_}')
    em(f'v_mov_b32 v{b_}, v{a_}')
    em(f'v_permlane16_swap_b32 v{a_}, v{b_}')
    em(f'v_add_f32 v{a_}, v{a_}, v{b_}')


def xw_sum(em, a_, tmp4, vwr, vrd, off):
    em(f'ds_write_b32 v{vwr}, v{a_} offset:{off}')
    em('s_waitcnt lgkmcnt(0)')
    em('s_barrier')
    em(f'ds_read_b128 {v(tmp4, 4)}, v{vrd} offset:{off}')
    em('s_waitcnt lgkmcnt(0)')
    em(f'v_add_f32 v{a_}, v{tmp4}, v{tmp4 + 1}')
    em(f'v_add_f32 v{tmp4 + 2}, v{tmp4 + 2}, v{tmp4 + 3}')
    em(f'v_add_f32 v{a_}, v{a_}, v{tmp4 + 2}')


def ln_core(em, X, n, P, vwr, vrd, off, lane_sum, maskfix=None):
    a_, b_, T4, M_, R_ = P, P + 1, P + 2, P + 6, P + 8
    em(f'v_pk_add_f32 {v(a_, 2)}, {v(X, 2)}, {v(X + 2, 2)}')
    for i in range(4, n, 2):
        em(f'v_pk_add_f32 {v(a_, 2)}, {v(a_, 2)}, {v(X + i, 2)}')
    em(f'v_add_f32 v{a_}, v{a_}, v{b_}')
    lane_sum(a_, b_)
    xw_sum(em, a_, T4, vwr, vrd, off)
    em(f'v_mul_f32 v{M_}, {f32(-1.0 / DM)}, v{a_}')
    em(f'v_mov_b32 v{M_ + 1}, v{M_}')
    for i in range(0, n, 2):
        em(f'v_pk_add_f32 {v(X + i, 2)}, {v(X + i, 2)}, {v(M_, 2)}')
    if maskfix:
        maskfix()
    em(f'v_pk_mul_f32 {v(a_, 2)}, {v(X, 2)}, {v(X, 2)}')
    for i in range(2, n, 2):
        em(f'v_pk_fma_f32 {v(a_, 2)}, {v(X + i, 2)}, {v(X + i, 2)}, {v(a_, 2)}')
    em(f'v_add_f32 v{a_}, v{a_}, v{b_}')
    lane_sum(a_, b_)
    xw_sum(em, a_, T4, vwr, vrd, off + 256)
    em(f'v_mul_f32 v{a_}, {f32(1.0 / DM)}, v{a_}')
    rbf(em, a_, a_)
    em(f'v_add_f32 v{a_}, {f32(1e-5)}, v{a_}')
    rbf(em, a_, a_)
    em(f'v_sqrt_f32 v{a_}, v{a_}')
    rbf(em, b_, M_)
    rbf(em, a_, a_)
    em(f'v_rcp_f32 v{R_}, v{a_}')
    em(f'v_sub_f32 v{b_}, v{b_}, v{M_}')
    em(f'v_mov_b32 v{R_ + 1}, v{R_}')
    em(f'v_mul_f32 v{M_}, v{b_}, v{R_}')
    em(f'v_mov_b32 v{M_ + 1}, v{M_}')
    for i in range(0, n, 2):
        em(f'v_pk_fma_f32 {v(X + i, 2)}, {v(X + i, 2)}, {v(R_, 2)}, {v(M_, 2)}')
    if maskfix:
        maskfix()


def unpack(em, dst, src, n):
    for i in range(n):
        em(f'v_and_b32 v{dst + 2 * i + 1}, 0xffff0000, v{src + i}')
        em(f'v_lshlrev_b32 v{dst + 2 * i}, 16, v{src + i}')


vL, vL16 = 1, 2
vG = 3
WK = 4
ACCU = 104
W2R = 136
WQR = 352


def base_setup(em):
    em(f'v_and_b32 v{vL}, 63, v0')
    em(f'v_lshrrev_b32 v{vG}, 6, v0')
    em(f'v_lshlrev_b32 v{vL16}, 4, v{vL}')
    em(f'v_readfirstlane_b32 s{sW}, v{vG}')
    em(f'v_lshrrev_b32 v{vG}, 4, v{vL}')
    em(f's_mov_b32 s{sMLo32}, -1')
    em(f's_mov_b32 s{sMLo32 + 1}, 0')


def ln_tile(em, layer0):
    R, X, P, vwr, vrd, va = WK, WK + 20, WK + 60, WK + 70, WK + 71, WK + 72
    em(f'v_and_b32 v{vrd}, 15, v{vL}')
    if layer0:
        em(f'v_mul_u32_u24 v{va}, 1280, v{vrd}')
        em(f'v_lshl_add_u32 v{va}, v{vG}, 4, v{va}')
        em(f's_mul_i32 s{t0}, s{sIt}, {16 * 1280}')
        em(f's_mul_i32 s{t1}, s{sW}, 320')
        em(f's_add_u32 s{t0}, s{t0}, s{t1}')
        for i in range(5):
            em.vm(f'buffer_load_dwordx4 {v(R + 4 * i, 4)}, v{va}, {s(SX, 4)}, s{t0} offen offset:{64 * i}')
    else:
        em(f's_mul_i32 s{t0}, s{sIt}, 20480')
        em(f's_mul_i32 s{t1}, s{sW}, 5120')
        em(f's_add_u32 s{t0}, s{t0}, s{t1}')
        em(f's_add_u32 s{t0}, s{t0}, {WS_X2}')
        em(f's_add_u32 s{t1}, s{t0}, 4096')
        for i in range(5):
            so, o = (t0, 1024 * i) if i < 4 else (t1, 0)
            em.vm(f'buffer_load_dwordx4 {v(R + 4 * i, 4)}, v{vL16}, {WSR}, s{so} offen offset:{o} sc1')
    em(f'v_lshlrev_b32 v{vrd}, 4, v{vrd}')
    em(f's_lshl_b32 s{t2}, s{sW}, 2')
    em(f'v_add_u32 v{vwr}, s{t2}, v{vrd}')
    em.wait_all()
    unpack(em, X, R, 20)
    ln_core(em, X, 40, P, vwr, vrd, 0, lambda a_, b_: xg_sum(em, a_, b_))
    em(f's_mul_i32 s{t0}, s{sIt}, 20480')
    em(f's_mul_i32 s{t1}, s{sW}, 5120')
    em(f's_add_u32 s{t0}, s{t0}, s{t1}')
    em(f's_mul_i32 s{t1}, s{sLay}, {XB}')
    em(f's_add_u32 s{t0}, s{t0}, s{t1}')
    em(f's_add_u32 s{t0}, s{t0}, {WS_H}')
    em(f's_add_u32 s{t1}, s{t0}, 4096')
    for i in range(5):
        for k in range(4):
            em(f'v_cvt_pk_bf16_f32 v{R + 4 * i + k}, v{X + 8 * i + 2 * k}, v{X + 8 * i + 2 * k + 1}')
        so, o = (t0, 1024 * i) if i < 4 else (t1, 0)
        em.vm(f'buffer_store_dwordx4 {v(R + 4 * i, 4)}, v{vL16}, {WSR}, s{so} offen offset:{o} sc1')


def stage_rows128(em, sr, nrows, stride, soff, va):
    assert nrows % 32 == 0
    em(f'v_lshrrev_b32 v{va}, 3, v{vL}')
    em(f's_mov_b32 s{t2}, {stride}')
    em(f'v_mul_lo_u32 v{va}, v{va}, s{t2}')
    em(f'v_and_b32 v{va + 1}, 7, v{vL}')
    em(f'v_lshl_add_u32 v{va}, v{va + 1}, 4, v{va}')
    em(f's_mul_i32 s{t2}, s{sW}, {8 * stride}')
    em(f's_add_u32 s{t2}, s{t2}, s{soff}')
    em(f's_lshl_b32 s{t3}, s{sW}, 10')
    for i in range(nrows // 32):
        em(f's_add_u32 m0, s{t3}, {4096 * i}')
        if i:
            em(f's_add_u32 s{t2}, s{t2}, {32 * stride}')
        else:
            em('s_nop 0')
        em.vm(f'buffer_load_dwordx4 v{va}, {s(sr, 4)}, s{t2} offen lds')
    em.wait_all()
    em('s_barrier')


def gw_init(em):
    va, vt = WK, WK + 2
    em(f's_load_dwordx2 {s(t2, 2) if t2 % 2 == 0 else s(t3, 2)}, s[0:1], {KA_WK}')
    em(f's_load_dwordx2 {s(SWM, 2)}, s[0:1], {KA_WQ}')
    em(f's_load_dwordx2 {s(sD_, 2)}, s[0:1], {KA_WV}')
    em(f's_mov_b32 s{SWM + 2}, {DM * H * DH * 2}')
    em(f's_mov_b32 s{SWM + 3}, 0x20000')
    em(f's_lshr_b32 s{sMat}, s{wR}, 6')
    em('s_waitcnt lgkmcnt(0)')
    pk = t2 if t2 % 2 == 0 else t3
    em(f's_cmp_eq_u32 s{sMat}, 1')
    em(f's_cselect_b64 {s(SWM, 2)}, {s(pk, 2)}, {s(SWM, 2)}')
    em(f's_cmp_eq_u32 s{sMat}, 2')
    em(f's_cselect_b64 {s(SWM, 2)}, {s(sD_, 2)}, {s(SWM, 2)}')
    em(f's_and_b32 s{t0}, s{wR}, 63')
    em(f's_lshl_b32 s{t0}, s{t0}, 7')
    stage_rows128(em, SWM, 640, 8192, t0, va)
    em(f'v_bfe_u32 v{vt}, v{vL}, 2, 2')
    em(f'v_lshl_add_u32 v{vt}, v{vG}, 3, v{vt}')
    em(f'v_lshlrev_b32 v{vt}, 7, v{vt}')
    em(f'v_and_b32 v{vt + 1}, 3, v{vL}')
    em(f'v_lshl_add_u32 v{vt}, v{vt + 1}, 3, v{vt}')
    em(f's_and_b32 s{t0}, s{sW}, 1')
    em(f's_lshl_b32 s{t0}, s{t0}, 6')
    em(f'v_add_u32 v{vt}, s{t0}, v{vt}')
    em(f'v_add_u32 v{vt + 1}, {10 * 4096}, v{vt}')
    for ks in range(20):
        for ct in range(2):
            for jh in range(2):
                reg = WQR + (ks * 2 + ct) * 4 + 2 * jh
                b = vt if ks < 10 else vt + 1
                em.ds(f'ds_read_b64_tr_b16 {r(reg, 2)}, v{b} offset:{(ks % 10) * 4096 + jh * 512 + ct * 32}')
        if ks % 3 == 2:
            em('s_waitcnt lgkmcnt(0)')
    em.wait_all()
    em('s_barrier')
    em(f's_cmp_ge_u32 s{wR}, 160')
    em('s_cbranch_scc1 GW_NOW2')
    em(f's_mul_i32 s{t0}, s{wR}, 52429')
    em(f's_lshr_b32 s{t0}, s{t0}, 18')
    em(f's_lshl_b32 s{t4}, s{t0}, 7')
    em(f'v_lshrrev_b32 v{vt}, 2, v{vL}')
    em(f'v_lshlrev_b32 v{vt}, 7, v{vt}')
    em(f'v_and_b32 v{vt + 1}, 3, v{vL}')
    em(f'v_lshl_add_u32 v{vt}, v{vt + 1}, 3, v{vt}')
    em(f's_lshl_b32 s{t0}, s{sW}, 5')
    em(f'v_add_u32 v{vt}, s{t0}, v{vt}')
    em(f'v_add_u32 v{vt + 1}, {14 * 4096}, v{vt}')
    for rnd in range(2):
        if rnd:
            em(f's_add_u32 s{t4}, s{t4}, {864 * 4096}')
        stage_rows128(em, SW2, 864, 4096, t4, va + 4)
        for k in range(27):
            for jh in range(2):
                reg = W2R + (27 * rnd + k) * 4 + 2 * jh
                b = vt if k < 14 else vt + 1
                em.ds(f'ds_read_b64_tr_b16 {r(reg, 2)}, v{b} offset:{(k % 14) * 4096 + jh * 2048}')
            if k % 6 == 5:
                em('s_waitcnt lgkmcnt(0)')
        em.wait_all()
        em('s_barrier')
    em.label('GW_NOW2')


def qkv_phase(em):
    ACC = WK
    HF = WK + 16
    ST = WK + 48
    va, vb, vrd = WK + 56, WK + 57, WK + 58
    sHs, sOut, sProg = sA, sB_, sC_
    em(f's_lshr_b32 s{t0}, s{sW}, 1')
    em(f's_mul_i32 s{t0}, s{t0}, 40960')
    em(f'v_add_u32 v{vrd}, s{t0}, v{vL16}')
    em(f'v_add_u32 v{vrd + 1}, 81920, v{vrd}')
    em(f's_mul_i32 s{sHs}, s{sLay}, {XB}')
    em(f's_mul_i32 s{t0}, s{sW}, 20480')
    em(f's_add_u32 s{sHs}, s{sHs}, s{t0}')
    em(f's_add_u32 s{sHs}, s{sHs}, {WS_H}')
    em(f's_lshl_b32 s{sOut}, s{sMat}, 25')
    em(f's_add_u32 s{sOut}, s{sOut}, {WS_Q}')
    em(f's_lshl_b32 s{t0}, s{sLay}, 24')
    em(f's_add_u32 s{sOut}, s{sOut}, s{t0}')
    em(f's_lshr_b32 s{t0}, s{sW}, 1')
    em(f's_lshl_b32 s{t0}, s{t0}, 18')
    em(f's_add_u32 s{sOut}, s{sOut}, s{t0}')
    em(f's_bfe_u32 s{t0}, s{wR}, 0x50001')
    em(f's_lshl_b32 s{t1}, s{t0}, 13')
    em(f's_add_u32 s{sOut}, s{sOut}, s{t1}')
    em(f's_lshl_b32 s{sProg}, s{t0}, 7')
    em(f's_and_b32 s{t0}, s{wR}, 1')
    em(f's_lshl_b32 s{t1}, s{sMat}, 1')
    em(f's_add_u32 s{t1}, s{t1}, s{t0}')
    em(f's_lshl_b32 s{t1}, s{t1}, 2')
    em(f's_add_u32 s{sProg}, s{sProg}, s{t1}')
    em(f's_add_u32 s{sProg}, s{sProg}, {WS_HFLAG}')
    em(f's_lshl_b32 s{t0}, s{t0}, 1')
    em(f's_and_b32 s{t1}, s{sW}, 1')
    em(f's_add_u32 s{t0}, s{t0}, s{t1}')
    em(f's_cmp_eq_u32 s{sMat}, 2')
    em(f's_cselect_b32 s{t1}, 11, 10')
    em(f's_movk_i32 s{sD_}, 4096')
    em(f's_cselect_b32 s{sD_}, 1024, s{sD_}')
    em(f's_lshl_b32 s{t0}, s{t0}, s{t1}')
    em(f's_add_u32 s{sOut}, s{sOut}, s{t0}')
    em(f's_add_u32 s{sE_}, s{sOut}, s{sD_}')
    em(f's_lshl_b32 s{sFl}, s{sLay}, 9')
    em(f's_add_u32 s{sFl}, s{sFl}, {WS_HTF}')
    em(f's_lshl_b32 s{sNeed}, s{sLay}, 6')
    em(f's_mul_i32 s{sF_}, s{sW}, 20480')

    def fetch(buf):
        wait_flags(em, sFl, 4, 1, va, vb)
        em(f's_add_u32 s{sFl}, s{sFl}, 16')
        for i in range(5):
            em(f's_add_u32 m0, s{sF_}, {buf * 81920 + 4096 * i}')
            em(f's_add_u32 s{t0}, s{sHs}, {4096 * i}')
            for k in range(4):
                em.vm(f'buffer_load_dwordx4 v{vL16}, {WSR}, s{t0} offen offset:{1024 * k} sc1 lds')
        em(f's_add_u32 s{sHs}, s{sHs}, 81920')

    fetch(0)
    em(f's_mov_b32 s{sIt}, 0')
    em.label('QKV_LOOP')
    for buf in range(2):
        em.wait_all()
        em('s_barrier')
        lab = em.newlabel('QKVP')
        em(f's_cmp_lg_u32 s{sW}, 0')
        em(f's_cbranch_scc1 {lab}')
        em(f'v_mov_b32 v{va}, 0')
        em(f'v_mov_b32 v{vb}, s{sNeed}')
        em(f'buffer_store_dword v{vb}, v{va}, {WSR}, s{sProg} offen sc1')
        em.label(lab)
        lab = em.newlabel('QKVN')
        if buf == 1:
            em(f's_cmp_eq_u32 s{sIt}, 30')
            em(f's_cbranch_scc1 {lab}')
        fetch(1 - buf)
        em.label(lab)
        em.forget()
        isv = em.newlabel('QKVV')
        join = em.newlabel('QKVJ')
        em(f's_cmp_eq_u32 s{sMat}, 2')
        em(f's_cbranch_scc1 {isv}')
        for vt_ in range(2):
            if vt_:
                em.label(isv)
                em.forget()
            tok = {}

            def rd(i):
                tt, ks = i & 1, i >> 1
                tok[i] = em.ds(f'ds_read_b128 {v(HF + 4 * (i % 8), 4)}, v{vrd + buf} offset:{tt * 20480 + ks * 1024}')
            for i in range(8):
                rd(i)
            for i in range(40):
                tt, ks = i & 1, i >> 1
                em.wait(l=tok[i])
                for ct in range(2):
                    acc = ACC + 4 * (2 * ct + tt)
                    wf = r(WQR + (ks * 2 + ct) * 4, 4)
                    hf = v(HF + 4 * (i % 8), 4)
                    c = '0' if ks == 0 else v(acc, 4)
                    em(f'{MF} {v(acc, 4)}, {wf}, {hf}, {c}' if vt_ == 0 else f'{MF} {v(acc, 4)}, {hf}, {wf}, {c}')
                if i + 8 < 40:
                    rd(i + 8)
            for o in range(2):
                for k in range(2):
                    acc = ACC + 4 * ((2 * k + o) if vt_ == 0 else (2 * o + k))
                    em(f'v_cvt_pk_bf16_f32 v{ST + 4 * o + 2 * k}, v{acc}, v{acc + 1}')
                    em(f'v_cvt_pk_bf16_f32 v{ST + 4 * o + 2 * k + 1}, v{acc + 2}, v{acc + 3}')
                em(f'buffer_store_dwordx4 {v(ST + 4 * o, 4)}, v{vL16}, {WSR}, s{sOut if o == 0 else sE_} offen sc1')
            if vt_ == 0:
                em(f's_branch {join}')
        em.label(join)
        em(f's_add_u32 s{sOut}, s{sOut}, {2 * 32 * 8192}')
        em(f's_add_u32 s{sE_}, s{sE_}, {2 * 32 * 8192}')
        em(f's_add_u32 s{sNeed}, s{sNeed}, 2')
    em(f's_add_u32 s{sIt}, s{sIt}, 2')
    em(f's_cmp_lt_u32 s{sIt}, 32')
    em('s_cbranch_scc1 QKV_LOOP')
    publish(em, sProg, f's{sNeed}', va, vb)


def red_task(em):
    LD = WK
    D = WK + 64
    AL, AH = WK + 76, WK + 80
    P = WK + 84
    va, vx, vg_, vwr, vrd, vf = WK + 94, WK + 95, WK + 96, WK + 97, WK + 98, WK + 99
    XR = LD
    em(f'v_and_b32 v{va}, 7, v{vL}')
    em(f'v_lshrrev_b32 v{vx}, 1, v{va}')
    em(f'v_and_b32 v{va}, 1, v{va}')
    em(f'v_lshlrev_b32 v{va}, 4, v{va}')
    em(f'v_mov_b32 v{vg_}, 0x3f80')
    em(f'v_lshlrev_b32 v{va}, v{va}, v{vg_}')
    em(f's_mov_b32 s{t0}, 0xff00ff00')
    em(f's_mov_b32 s{t1}, 0xff00ff00')
    assert t0 % 2 == 1
    em(f's_mov_b32 s{t2}, 0xff00ff00')
    for dd in range(4):
        em(f'v_cmp_eq_u32 vcc, {dd}, v{vx}')
        em(f'v_cndmask_b32 v{AL + dd}, 0, v{va}, vcc')
        em(f'v_cndmask_b32 v{AH + dd}, 0, v{AL + dd}, {s(t1, 2)}')
        em(f'v_cndmask_b32 v{AL + dd}, v{AL + dd}, 0, {s(t1, 2)}')
    em(f's_mov_b32 s{t0}, {APB}')
    em(f'v_mul_lo_u32 v{va}, v{vG}, s{t0}')
    em(f'v_and_b32 v{vx}, 15, v{vL}')
    em(f'v_lshl_add_u32 v{va}, v{vx}, 4, v{va}')
    em(f's_mul_i32 s{t3}, s{sSeg}, {32 * APB}')
    em(f's_mul_i32 s{t0}, s{sIt}, 5120')
    em(f's_add_u32 s{t3}, s{t3}, s{t0}')
    em(f's_mul_i32 s{t0}, s{sW}, 1280')
    em(f's_add_u32 s{t3}, s{t3}, s{t0}')
    em(f's_add_u32 s{t3}, s{t3}, {WS_AP}')
    em(f'v_and_b32 v{vrd}, 3, v{vL}')
    em(f'v_bfe_u32 v{vwr}, v{vL}, 2, 2')
    em(f'v_mul_u32_u24 v{vg_}, 1280, v{vrd}')
    em(f'v_lshl_add_u32 v{vg_}, v{vwr}, 4, v{vg_}')
    em(f'v_lshlrev_b32 v{vf}, 8, v{vwr}')
    em(f'v_lshl_add_u32 v{vf}, v{vrd}, 4, v{vf}')
    em(f'v_and_b32 v{vx}, 1, v{vG}')
    em(f'v_lshl_add_u32 v{vg_}, v{vx}, 3, v{vg_}')
    em(f'v_lshl_add_u32 v{vf}, v{vx}, 3, v{vf}')
    em(f'v_lshrrev_b32 v{vx}, 1, v{vG}')
    em(f'v_lshl_add_u32 v{vg_}, v{vx}, 6, v{vg_}')
    em(f'v_lshl_add_u32 v{vf}, v{vx}, 10, v{vf}')
    em(f'v_lshlrev_b32 v{vrd}, 4, v{vrd}')
    em(f's_lshl_b32 s{t0}, s{sW}, 2')
    em(f'v_add_u32 v{vwr}, s{t0}, v{vrd}')
    em(f's_lshl_b32 s{t0}, s{sSeg}, 3')
    em(f's_add_u32 s{t0}, s{t0}, s{sIt}')
    em(f's_mul_i32 s{t4}, s{t0}, 5120')
    em(f's_mul_i32 s{t5}, s{sW}, 320')
    em(f's_add_u32 s{t4}, s{t4}, s{t5}')
    em(f's_lshr_b32 s{t5}, s{t0}, 2')
    em(f's_mul_i32 s{t5}, s{t5}, 20480')
    em(f's_and_b32 s{t0}, s{t0}, 3')
    em(f's_lshl_b32 s{t0}, s{t0}, 6')
    em(f's_add_u32 s{t5}, s{t5}, s{t0}')
    em(f's_mul_i32 s{t0}, s{sW}, 5120')
    em(f's_add_u32 s{t5}, s{t5}, s{t0}')
    em(f's_mov_b32 s{sFl}, {WS_AWF}')
    em(f's_lshl_b32 s{sNeed}, s{sLay}, 6')
    em(f's_add_u32 s{sNeed}, s{sNeed}, s{sSeg}')
    em(f's_add_u32 s{sNeed}, s{sNeed}, 1')
    wait_flags(em, sFl, 32, f's{sNeed}', P, P + 1)
    tok = {}

    def ld(i):
        n, u = divmod(i, 5)
        if u == 0:
            em(f's_add_u32 s{sA}, s{t3}, {4 * n * APB}')
        tok[i] = em.vm(f'buffer_load_dwordx4 {v(LD + 4 * (i % 16), 4)}, v{va}, {WSR}, s{sA} offen offset:{256 * u} sc1')
    for i in range(16):
        ld(i)
    for i in range(40):
        n, u = divmod(i, 5)
        em.wait(v=tok[i])
        d = D + 4 * (u >> 1)
        c = '0' if (n == 0 and u % 2 == 0) else v(d, 4)
        em(f'{MF} {v(d, 4)}, {v(AH if u & 1 else AL, 4)}, {v(LD + 4 * (i % 16), 4)}, {c}')
        if i + 16 < 40:
            ld(i + 16)
    big = P + 2
    em(f'v_mov_b32 v{big}, 0x40000000')
    em(f'v_cndmask_b32 v{va}, v{big}, v{vg_}, {s(sMLo32, 2)}')
    em(f'v_cndmask_b32 v{vx}, v{big}, v{vf}, {s(sMLo32, 2)}')
    l1 = em.newlabel('REDL1')
    j1 = em.newlabel('REDJ')
    em(f's_cmp_lg_u32 s{sLay}, 0')
    em(f's_cbranch_scc1 {l1}')
    for k in range(3):
        em(f'buffer_load_dwordx2 {v(XR + 2 * k, 2)}, v{vg_ if k < 2 else va}, {s(SX, 4)}, s{t4} offen offset:{128 * k}')
    em(f's_branch {j1}')
    em.label(l1)
    em(f's_add_u32 s{t0}, s{t5}, {WS_X2}')
    em(f's_add_u32 s{sA}, s{t0}, 4096')
    for k in range(3):
        em(f'buffer_load_dwordx2 {v(XR + 2 * k, 2)}, v{vf if k < 2 else vx}, {WSR}, s{t0 if k < 2 else sA} offen offset:{2048 * k if k < 2 else 0} sc1')
    em.label(j1)
    X = LD + 8
    PK = LD + 20
    for k in range(6):
        em(f'v_cvt_pk_bf16_f32 v{PK + k}, v{D + 2 * k}, v{D + 2 * k + 1}')
    unpack(em, D, PK, 6)
    em.wait_all()
    unpack(em, X, XR, 6)
    for k in range(0, 12, 2):
        em(f'v_pk_add_f32 {v(X + k, 2)}, {v(X + k, 2)}, {v(D + k, 2)}')
    for k in range(6):
        em(f'v_cvt_pk_bf16_f32 v{PK + k}, v{X + 2 * k}, v{X + 2 * k + 1}')
    em(f's_mul_i32 s{t0}, s{sLay}, {XB}')
    em(f's_add_u32 s{sA}, s{t0}, s{t5}')
    em(f's_add_u32 s{sA}, s{sA}, {WS_X1}')
    em(f's_add_u32 s{sB_}, s{sA}, 4096')
    em(f's_add_u32 s{t4}, s{t4}, s{t0}')
    em(f's_add_u32 s{t4}, s{t4}, {WS_G}')
    for k in range(3):
        em(f'buffer_store_dwordx2 {v(PK + 2 * k, 2)}, v{vf if k < 2 else vx}, {WSR}, s{sA if k < 2 else sB_} offen offset:{2048 * k if k < 2 else 0} sc1')

    def lane_sum(a_, b_):
        em(f'v_add_f32_dpp v{a_}, v{a_}, v{a_} row_ror:4 row_mask:0xf bank_mask:0xf')
        em(f'v_add_f32_dpp v{a_}, v{a_}, v{a_} row_ror:8 row_mask:0xf bank_mask:0xf')
        xg_sum(em, a_, b_)

    def maskfix():
        for k in range(8, 12):
            em(f'v_cndmask_b32 v{X + k}, 0, v{X + k}, {s(sMLo32, 2)}')
    unpack(em, X, PK, 6)
    ln_core(em, X, 12, P, vwr, vrd, 0, lane_sum, maskfix)
    PK2 = LD + 26
    for k in range(6):
        em(f'v_cvt_pk_bf16_f32 v{PK2 + k}, v{X + 2 * k}, v{X + 2 * k + 1}')
    unpack(em, X, PK2, 6)
    ln_core(em, X, 12, P, vwr, vrd, 512, lane_sum, maskfix)
    for k in range(6):
        em(f'v_cvt_pk_bf16_f32 v{PK2 + k}, v{X + 2 * k}, v{X + 2 * k + 1}')
    for k in range(3):
        em(f'buffer_store_dwordx2 {v(PK2 + 2 * k, 2)}, v{vg_ if k < 2 else va}, {WSR}, s{t4} offen offset:{128 * k} sc1')
    em(f's_lshl_b32 s{t0}, s{sLay}, 11')
    em(f's_lshl_b32 s{t1}, s{sSeg}, 5')
    em(f's_add_u32 s{t0}, s{t0}, s{t1}')
    em(f's_lshl_b32 s{t1}, s{sIt}, 2')
    em(f's_add_u32 s{t0}, s{t0}, s{t1}')
    em(f's_add_u32 s{t0}, s{t0}, {WS_GTF}')
    publish(em, t0, 1, P, P + 1)


L_G1G, L_G1W = 1024, 1024 + 32768


def g1_chunk(em):
    va, vb, vga, vwa = WK, WK + 1, WK + 2, WK + 4
    GF, WF = WK + 8, WK + 40
    em(f's_mul_i32 s{t4}, s{wR}, 9710')
    em(f's_lshr_b32 s{t4}, s{t4}, 18')
    em(f's_mul_i32 s{t0}, s{t4}, 27')
    em(f's_sub_u32 s{t5}, s{wR}, s{t0}')
    em(f'v_lshrrev_b32 v{va}, 3, v{vL}')
    em(f'v_bfe_u32 v{vb}, v{vL}, 4, 1')
    em(f'v_lshlrev_b32 v{vb}, 1, v{vb}')
    em(f's_and_b32 s{t0}, s{sW}, 1')
    em(f's_lshl_b32 s{t0}, s{t0}, 2')
    em(f'v_or_b32 v{vb}, s{t0}, v{vb}')
    em(f'v_and_b32 v{vga}, 7, v{vL}')
    em(f'v_xor_b32 v{vb}, v{vb}, v{vga}')
    em(f'v_mul_u32_u24 v{va}, 3456, v{va}')
    em(f'v_lshl_add_u32 v{va}, v{vb}, 4, v{va}')
    em(f's_lshr_b32 s{t0}, s{sSeg}, 2')
    em(f's_mul_i32 s{t1}, s{t0}, {128 * 3456}')
    em(f's_mul_i32 s{t2}, s{sW}, {8 * 3456}')
    em(f's_add_u32 s{t1}, s{t1}, s{t2}')
    em(f's_lshl_b32 s{t2}, s{t5}, 7')
    em(f's_add_u32 s{t1}, s{t1}, s{t2}')
    em(f's_lshl_b32 s{t3}, s{sW}, 10')
    for i in range(4):
        em(f's_add_u32 m0, s{t3}, {L_G1W + 4096 * i}')
        em(f's_add_u32 s{t2}, s{t1}, {32 * 3456 * i}')
        em.vm(f'buffer_load_dwordx4 v{va}, {s(SW1, 4)}, s{t2} offen lds')
    em(f'v_lshlrev_b32 v{vb}, 2, v{vG}')
    em(f'v_and_b32 v{va}, 15, v{vL}')
    em(f'v_xor_b32 v{vb}, v{vb}, v{va}')
    em(f'v_mul_u32_u24 v{va}, 1280, v{vG}')
    em(f'v_lshl_add_u32 v{va}, v{vb}, 4, v{va}')
    em(f's_mul_i32 s{t1}, s{t0}, {128 * 1280}')
    em(f's_mul_i32 s{t2}, s{sW}, {4 * 1280}')
    em(f's_add_u32 s{t1}, s{t1}, s{t2}')
    em(f's_lshl_b32 s{t2}, s{t4}, 8')
    em(f's_add_u32 s{t1}, s{t1}, s{t2}')
    em(f's_mul_i32 s{t2}, s{sLay}, {XB}')
    em(f's_add_u32 s{t1}, s{t1}, s{t2}')
    em(f's_add_u32 s{t1}, s{t1}, {WS_G}')
    em(f's_lshl_b32 s{sFl}, s{sLay}, 11')
    em(f's_lshl_b32 s{t0}, s{t0}, 7')
    em(f's_add_u32 s{sFl}, s{sFl}, s{t0}')
    em(f's_add_u32 s{sFl}, s{sFl}, {WS_GTF}')
    wait_flags(em, sFl, 32, 1, vga, vga + 1)
    for i in range(8):
        em(f's_add_u32 m0, s{t3}, {L_G1G + 4096 * i}')
        em(f's_add_u32 s{t2}, s{t1}, {16 * 1280 * i}')
        em.vm(f'buffer_load_dwordx4 v{va}, {WSR}, s{t2} offen sc1 lds')
    em(f'v_bfe_u32 v{vb}, v{vL}, 2, 2')
    em(f'v_lshl_add_u32 v{va}, v{vG}, 3, v{vb}')
    em(f's_and_b32 s{t0}, s{sW}, 1')
    em(f's_lshl_b32 s{t0}, s{t0}, 1')
    for i in range(2):
        em(f's_add_u32 s{t1}, s{t0}, {i}')
        em(f'v_xor_b32 v{vga + i}, s{t1}, v{vb}')
        em(f'v_lshlrev_b32 v{vga + i}, 6, v{vga + i}')
        em(f'v_lshl_add_u32 v{vga + i}, v{va}, 8, v{vga + i}')
        em(f'v_and_b32 v{vwa}, 3, v{vL}')
        em(f'v_lshl_add_u32 v{vga + i}, v{vwa}, 4, v{vga + i}')
    em(f'v_lshrrev_b32 v{vb}, 1, v{vb}')
    em(f'v_and_b32 v{vwa + 1}, 1, v{vG}')
    em(f'v_lshl_add_u32 v{vb}, v{vwa + 1}, 1, v{vb}')
    em(f'v_lshlrev_b32 v{va}, 7, v{va}')
    em(f'v_lshl_add_u32 v{va}, v{vwa}, 3, v{va}')
    em(f's_lshr_b32 s{t0}, s{sW}, 1')
    em(f's_lshl_b32 s{t0}, s{t0}, 1')
    for i in range(2):
        em(f's_add_u32 s{t1}, s{t0}, {i}')
        em(f'v_xor_b32 v{vwa + i}, s{t1}, v{vb}')
        em(f'v_lshl_add_u32 v{vwa + i}, v{vwa + i}, 5, v{va}')
    em.wait_all()
    em('s_barrier')
    toks = {}

    def rd(ks):
        b = ks & 1
        for t in range(2):
            for jh in range(2):
                em.ds(f'ds_read_b64_tr_b16 {v(WF + 8 * b + 4 * t + 2 * jh, 2)}, v{vwa + t} offset:{L_G1W + ks * 4096 + jh * 512}')
        for dt in range(4):
            for jh in range(2):
                toks[ks] = em.ds(f'ds_read_b64_tr_b16 {v(GF + 16 * b + 4 * dt + 2 * jh, 2)}, v{vga + (dt >> 1)} offset:{L_G1G + ks * 8192 + jh * 1024 + 8 * (dt & 1)}')
    rd(0)
    for ks in range(4):
        em.wait(l=toks[ks])
        if ks < 3:
            rd(ks + 1)
        b = ks & 1
        for t in range(2):
            for dt in range(4):
                acc = ACCU + 4 * (4 * t + dt)
                em(f'{MF} {v(acc, 4)}, {v(WF + 8 * b + 4 * t, 4)}, {v(GF + 16 * b + 4 * dt, 4)}, {v(acc, 4)}')
    em('s_barrier')


def g1_final(em):
    va, BI, E, ST = WK, WK + 2, WK + 16, WK + 24
    em(f's_mul_i32 s{t4}, s{wR}, 9710')
    em(f's_lshr_b32 s{t4}, s{t4}, 18')
    em(f's_mul_i32 s{t0}, s{t4}, 27')
    em(f's_sub_u32 s{t5}, s{wR}, s{t0}')
    em(f's_lshr_b32 s{t0}, s{sW}, 1')
    em(f's_lshl_b32 s{t1}, s{t5}, 1')
    em(f's_add_u32 s{t1}, s{t1}, s{t0}')
    em(f's_lshl_b32 s{t2}, s{t1}, 6')
    em(f'v_lshlrev_b32 v{va}, 3, v{vG}')
    em(f'buffer_load_dwordx2 {v(BI, 2)}, v{va}, {s(SB1, 4)}, s{t2} offen')
    em(f'buffer_load_dwordx2 {v(BI + 2, 2)}, v{va}, {s(SB1, 4)}, s{t2} offen offset:32')
    em(f's_and_b32 s{t0}, s{sW}, 1')
    em(f's_lshl_b32 s{t0}, s{t0}, 2')
    em(f's_lshl_b32 s{t3}, s{t4}, 3')
    em(f's_add_u32 s{t0}, s{t0}, s{t3}')
    em(f's_mul_i32 s{t0}, s{t0}, 54')
    em(f's_add_u32 s{t0}, s{t0}, s{t1}')
    em(f's_lshl_b32 s{t0}, s{t0}, 10')
    em(f's_mul_i32 s{t1}, s{sLay}, {UB}')
    em(f's_add_u32 s{t0}, s{t0}, s{t1}')
    em(f's_add_u32 s{t0}, s{t0}, {WS_U}')
    k0 = -2.0 * math.sqrt(2.0 / math.pi) * math.log2(math.e)
    em(f's_mov_b32 s{t2}, {f32(k0 * 0.044715)}')
    em(f'v_mov_b32 v{va + 1}, {f32(k0)}')
    em('s_waitcnt vmcnt(0)')
    unpack(em, BI + 4, BI, 4)
    for dt in range(4):
        for t in range(2):
            acc = ACCU + 4 * (4 * t + dt)
            xs = [acc + i for i in range(4)]
            for i in range(4):
                rbf(em, xs[i], xs[i])
            for i in range(4):
                em(f'v_add_f32 v{xs[i]}, v{xs[i]}, v{BI + 4 + 4 * t + i}')
            for i in range(4):
                rbf(em, xs[i], xs[i])
            for i in range(4):
                em(f'v_mul_f32 v{E + i}, v{xs[i]}, v{xs[i]}')
            for i in range(4):
                em(f'v_fma_f32 v{E + i}, v{E + i}, s{t2}, v{va + 1}')
            for i in range(4):
                em(f'v_mul_f32 v{E + i}, v{E + i}, v{xs[i]}')
            for i in range(4):
                em(f'v_exp_f32 v{E + i}, v{E + i}')
            for i in range(4):
                em(f'v_add_f32 v{E + i}, 1.0, v{E + i}')
            for i in range(4):
                em(f'v_rcp_f32 v{E + i}, v{E + i}')
            for i in range(4):
                em(f'v_mul_f32 v{E + i}, v{E + i}, v{xs[i]}')
            st = ST + 4 * (dt & 1) + 2 * t
            em(f'v_cvt_pk_bf16_f32 v{st}, v{E}, v{E + 1}')
            em(f'v_cvt_pk_bf16_f32 v{st + 1}, v{E + 2}, v{E + 3}')
        em(f'buffer_store_dwordx4 {v(ST + 4 * (dt & 1), 4)}, v{vL16}, {WSR}, s{t0} offen sc1')
        em(f's_add_u32 s{t0}, s{t0}, {54 * 1024}')
    em(f's_mul_i32 s{t0}, s{sLay}, 640')
    em(f's_lshl_b32 s{t1}, s{t4}, 7')
    em(f's_add_u32 s{t0}, s{t0}, s{t1}')
    em(f's_lshl_b32 s{t1}, s{t5}, 2')
    em(f's_add_u32 s{t0}, s{t0}, s{t1}')
    em(f's_add_u32 s{t0}, s{t0}, {WS_UTF}')
    publish(em, t0, 1, va, va + 1)


def g2_phase(em):
    va, vb, vo = WK, WK + 1, WK + 2
    UF = WK + 4
    XR = WK + 68
    E = WK + 84
    B2 = WK + 92
    em(f's_mul_i32 s{t4}, s{wR}, 52429')
    em(f's_lshr_b32 s{t4}, s{t4}, 18')
    em(f's_mul_i32 s{t0}, s{t4}, 5')
    em(f's_sub_u32 s{t5}, s{wR}, s{t0}')
    em(f'v_and_b32 v{va}, 15, v{vL}')
    em(f'v_lshlrev_b32 v{vb}, 1, v{va}')
    em(f's_lshl_b32 s{t0}, s{t4}, 2')
    em(f's_add_u32 s{t0}, s{t0}, s{sW}')
    em(f's_lshl_b32 s{t1}, s{t0}, 5')
    em(f'buffer_load_ushort v{B2}, v{vb}, {s(SB2, 4)}, s{t1} offen')
    em(f's_mul_i32 s{sE_}, s{t0}, 20480')
    em(f's_lshl_b32 s{t1}, s{t5}, 12')
    em(f's_add_u32 s{sE_}, s{sE_}, s{t1}')
    em(f'v_mul_u32_u24 v{vo}, 1280, v{va}')
    em(f'v_lshl_add_u32 v{vo}, v{vG}, 4, v{vo}')
    em(f's_mul_i32 s{sF_}, s{t0}, {16 * 1280}')
    em(f's_lshl_b32 s{t1}, s{t5}, 8')
    em(f's_add_u32 s{sF_}, s{sF_}, s{t1}')
    em(f's_lshl_b32 s{t0}, s{t5}, 3')
    em(f's_lshl_b32 s{t1}, s{sW}, 1')
    em(f's_add_u32 s{t0}, s{t0}, s{t1}')
    em(f's_mul_i32 s{sA}, s{t0}, {54 * 1024}')
    em(f's_mul_i32 s{t1}, s{sLay}, {UB}')
    em(f's_add_u32 s{sA}, s{sA}, s{t1}')
    em(f's_add_u32 s{sA}, s{sA}, {WS_U}')
    em(f's_mul_i32 s{t3}, s{sW}, 12288')
    em(f's_mul_i32 s{sFl}, s{sLay}, 640')
    em(f's_lshl_b32 s{t1}, s{t5}, 7')
    em(f's_add_u32 s{sFl}, s{sFl}, s{t1}')
    em(f's_add_u32 s{sFl}, s{sFl}, {WS_UTF}')
    em(f'v_add_u32 v{vb}, 49152, v{vL16}')
    em(f'v_add_u32 v{vo + 1}, 98304, v{vL16}')
    RB = [vL16, vb, vo + 1]
    wait_flags(em, sFl, 27, 1, E, E + 1, sleep=1)
    em(f's_mul_i32 s{t1}, s{sLay}, {XB}')
    em(f's_add_u32 s{t1}, s{t1}, s{sE_}')
    em(f's_add_u32 s{t1}, s{t1}, {WS_X1}')
    for p in range(4):
        em.vm(f'buffer_load_dwordx4 {v(XR + 4 * p, 4)}, v{vL16}, {WSR}, s{t1} offen offset:{1024 * p} sc1')
    ct = {}

    def fetch(c):
        for t in range(2):
            for hf in range(2):
                em(f's_add_u32 m0, s{t3}, {(c % 3) * 49152 + t * 6144 + hf * 3072}')
                em(f's_add_u32 s{t1}, s{sA}, {t * 54 * 1024 + c * 6144 + hf * 3072}')
                for k in range(3):
                    ct[c] = em.vm(f'buffer_load_dwordx4 v{vL16}, {WSR}, s{t1} offen offset:{1024 * k} sc1 lds')
    fetch(0)
    fetch(1)
    for c in range(9):
        em.wait(v=ct[c])
        em('s_barrier')
        if c + 2 < 9:
            fetch(c + 2)
        tok = {}

        def rd(i):
            k, dt = divmod(i, 8)
            tok[i] = em.ds(f'ds_read_b128 {v(UF + 4 * (i % 16), 4)}, v{RB[c % 3]} offset:{dt * 6144 + k * 1024}')
        for i in range(12):
            rd(i)
        for i in range(48):
            k, dt = divmod(i, 8)
            if i % 2 == 0:
                em.wait(l=tok[i + 1])
            acc = ACCU + 4 * dt
            cc = '0' if (c == 0 and k == 0) else v(acc, 4)
            em(f'{MF} {v(acc, 4)}, {v(UF + 4 * (i % 16), 4)}, {r(W2R + 4 * (6 * c + k), 4)}, {cc}')
            if i + 12 < 48:
                rd(i + 12)
    em(f'v_lshlrev_b32 v{B2}, 16, v{B2}')
    em(f'v_mov_b32 v{B2 + 1}, v{B2}')
    em(f's_add_u32 s{t1}, s{sE_}, {WS_X2}')
    l1 = em.newlabel('G2L1')
    for p in range(4):
        acc = ACCU + 8 * p
        for k in range(4):
            em(f'v_cvt_pk_bf16_f32 v{UF + k}, v{acc + 2 * k}, v{acc + 2 * k + 1}')
        unpack(em, acc, UF, 4)
        for k in range(0, 8, 2):
            em(f'v_pk_add_f32 {v(acc + k, 2)}, {v(acc + k, 2)}, {v(B2, 2)}')
        for k in range(4):
            em(f'v_cvt_pk_bf16_f32 v{UF + k}, v{acc + 2 * k}, v{acc + 2 * k + 1}')
        unpack(em, acc, UF, 4)
        unpack(em, E, XR + 4 * p, 4)
        for k in range(0, 8, 2):
            em(f'v_pk_add_f32 {v(acc + k, 2)}, {v(acc + k, 2)}, {v(E + k, 2)}')
        for k in range(4):
            em(f'v_cvt_pk_bf16_f32 v{XR + 4 * p + k}, v{acc + 2 * k}, v{acc + 2 * k + 1}')
    em(f's_cmp_lg_u32 s{sLay}, 0')
    em(f's_cbranch_scc1 {l1}')
    for p in range(4):
        em(f'buffer_store_dwordx4 {v(XR + 4 * p, 4)}, v{vL16}, {WSR}, s{t1} offen offset:{1024 * p} sc1')
    em(f's_lshl_b32 s{t0}, s{t4}, 5')
    em(f's_lshl_b32 s{t1}, s{t5}, 2')
    em(f's_add_u32 s{t0}, s{t0}, s{t1}')
    em(f's_add_u32 s{t0}, s{t0}, {WS_XTF}')
    publish(em, t0, 1, va, vb)
    em('s_branch G2_DONE')
    em.label(l1)
    for p in range(4):
        em(f'buffer_store_dwordx4 {v(XR + 4 * p, 4)}, v{vo}, {s(SOUT, 4)}, s{sF_} offen offset:{64 * p}')
    em.label('G2_DONE')


def ht_flag(em):
    em(f's_lshl_b32 s{t0}, s{sLay}, 9')
    em(f's_lshl_b32 s{t1}, s{sIt}, 2')
    em(f's_add_u32 s{t0}, s{t0}, s{t1}')
    em(f's_add_u32 s{t0}, s{t0}, {WS_HTF}')
    publish(em, t0, 1, WK, WK + 1)


def gw_main(em, arrive, wait_start):
    for d, ka, nb in ((SX, KA_X, XB), (SW1, KA_W1, S * F * 2), (SW2, KA_W2, S * F * 2), (SB1, KA_B1, F * 2),
                      (SB2, KA_B2, S * 2), (SOUT, KA_OUT, XB)):
        srd(em, d, ka, nb)
    base_setup(em)
    em(f's_mov_b32 s{sLay}, 0')
    em('s_waitcnt lgkmcnt(0)')
    em(f's_sub_u32 s{t0}, s{wR}, 128')
    em(f's_cmp_ge_u32 s{t0}, {WS_FLAG_BYTES // 1024}')
    em('s_cbranch_scc1 GW_NOZ')
    em(f's_lshl_b32 s{t0}, s{t0}, 10')
    em(f'v_lshlrev_b32 v{WK}, 2, v0')
    em(f'v_mov_b32 v{WK + 1}, 0')
    em(f'buffer_store_dword v{WK + 1}, v{WK}, {WSR}, s{t0} offen sc1')
    em.label('GW_NOZ')
    arrive(em)
    em(f's_mov_b32 s{sIt}, s{wR}')
    em(f's_cmp_ge_u32 s{wR}, 128')
    em('s_cbranch_scc1 GW_NOLN')
    ln_tile(em, True)
    wait_start(em)
    ht_flag(em)
    em('s_barrier')
    em.label('GW_NOLN')
    gw_init(em)
    wait_start(em)
    em.label('GW_LAYER')
    qkv_phase(em)
    for i in range(0, 32, 2):
        em(f'v_mov_b64 {v(ACCU + i, 2)}, 0')
    em(f's_mov_b32 s{sSeg}, 0')
    em.label('GW_SEG')
    em(f's_mul_i32 s{t0}, s{sSeg}, 43')
    em(f's_lshr_b32 s{t0}, s{t0}, 10')
    em(f's_mul_i32 s{t0}, s{t0}, 24')
    em(f's_sub_u32 s{t0}, s{sSeg}, s{t0}')
    em(f's_lshr_b32 s{t1}, s{wR}, 3')
    em(f's_cmp_lg_u32 s{t0}, s{t1}')
    em('s_cbranch_scc1 GW_NORED')
    em(f's_and_b32 s{sIt}, s{wR}, 7')
    red_task(em)
    em('s_barrier')
    em.label('GW_NORED')
    em(f's_and_b32 s{t0}, s{sSeg}, 3')
    em(f's_cmp_lg_u32 s{t0}, 3')
    em('s_cbranch_scc1 GW_NOG1')
    em(f's_cmp_ge_u32 s{wR}, 135')
    em('s_cbranch_scc1 GW_NOG1')
    g1_chunk(em)
    em.label('GW_NOG1')
    em(f's_add_u32 s{sSeg}, s{sSeg}, 1')
    em(f's_cmp_lt_u32 s{sSeg}, 64')
    em('s_cbranch_scc1 GW_SEG')
    em(f's_cmp_ge_u32 s{wR}, 135')
    em('s_cbranch_scc1 GW_NOG1F')
    g1_final(em)
    em.label('GW_NOG1F')
    em(f's_cmp_ge_u32 s{wR}, 160')
    em('s_cbranch_scc1 G2_DONE')
    g2_phase(em)
    em(f's_cmp_lg_u32 s{sLay}, 0')
    em('s_cbranch_scc1 DONE')
    if C.OPT.get('l1'):
        em('s_branch DONE')
    em(f's_mov_b32 s{sLay}, 1')
    em(f's_sub_u32 s{sIt}, 191, s{wR}')
    em(f's_cmp_ge_u32 s{sIt}, 128')
    em('s_cbranch_scc1 GW_LAYER')
    em(f's_lshr_b32 s{t0}, s{sIt}, 2')
    em(f's_lshl_b32 s{t0}, s{t0}, 5')
    em(f's_add_u32 s{sFl}, s{t0}, {WS_XTF}')
    em('s_barrier')
    wait_flags(em, sFl, 5, 1, WK, WK + 1, sleep=1)
    ln_tile(em, False)
    ht_flag(em)
    em('s_barrier')
    em('s_branch GW_LAYER')


WOR = 192
AWB = 28672


def aw_main(em, arrive, wait_start):
    srd(em, SWM, KA_WO, DM * H * DH * 2)
    base_setup(em)
    em(f's_sub_u32 s{sHd}, s{wR}, 192')
    arrive(em)
    em('s_waitcnt lgkmcnt(0)')
    vt, vq, vkm, vvm, vst = 4, 6, 7, 8, 9
    MSK = 12
    ONES = 24
    CC = 28
    KF, QF, KMF = 32, 64, 80
    SC = 96
    A_ = 108
    P01, PM, SUM = 112, 116, 120
    VF, VMF = 32, 64
    O = 124
    OFR = 80
    WA = 156
    ST = 96
    em(f'v_lshrrev_b32 v{vt}, 2, v{vL}')
    em(f'v_mul_u32_u24 v{vt}, 1280, v{vt}')
    em(f'v_and_b32 v{vt + 1}, 3, v{vL}')
    em(f'v_lshl_add_u32 v{vt}, v{vt + 1}, 4, v{vt}')
    em(f's_lshr_b32 s{t0}, s{sW}, 1')
    em(f's_mul_i32 s{t0}, s{t0}, 640')
    em(f'v_add_u32 v{vt}, s{t0}, v{vt}')
    em(f'v_add_u32 v{vt + 1}, {32 * 1280}, v{vt}')
    em(f's_mul_i32 s{t1}, s{sHd}, {128 * 1280}')
    em(f's_mul_i32 s{t3}, s{sW}, 20480')
    em(f's_add_u32 s{t1}, s{t1}, s{t3}')
    for hf in range(2):
        for i in range(5):
            em(f's_add_u32 m0, s{t3}, {4096 * i}')
            em(f's_add_u32 s{t2}, s{t1}, {hf * 81920 + 4096 * i}')
            for k in range(4):
                em.vm(f'buffer_load_dwordx4 v{vL16}, {s(SWM, 4)}, s{t2} offen offset:{1024 * k} lds')
        em.wait_all()
        em('s_barrier')
        for s2 in range(2):
            st = 2 * hf + s2
            for T in range(20):
                for jh in range(2):
                    reg = WOR + (T * 4 + st) * 4 + 2 * jh
                    em.ds(f'ds_read_b64_tr_b16 {r(reg, 2)}, v{vt + s2} offset:{jh * 16 * 1280 + (T >> 1) * 64 + (T & 1) * 8}')
                if T % 6 == 5:
                    em('s_waitcnt lgkmcnt(0)')
        em.wait_all()
        em('s_barrier')
    em(f's_and_b32 s{t0}, s{sW}, 1')
    em(f's_lshl_b32 s{t1}, s{t0}, 4')
    em(f'v_and_b32 v{A_}, 15, v{vL}')
    em(f'v_add_u32 v{A_}, s{t1}, v{A_}')
    em(f'v_lshlrev_b32 v{A_ + 1}, 2, v{vG}')
    em(f'v_mov_b32 v{A_ + 2}, {f32(-1e30)}')
    for t in range(2):
        for i in range(4):
            em(f'v_add_u32 v{A_ + 3}, {16 * t + i}, v{A_ + 1}')
            em(f'v_cmp_gt_u32 vcc, v{A_ + 3}, v{A_}')
            em(f'v_cndmask_b32 v{MSK + 4 * t + i}, 0, v{A_ + 2}, vcc')
    for i in range(4):
        em(f'v_cndmask_b32 v{MSK + 8 + i}, v{A_ + 2}, 0, {s(sMLo32, 2)}')
        em(f'v_mov_b32 v{ONES + i}, 0x3f803f80')
    em(f'v_mov_b32 v{CC}, {f32((DH ** -0.5) * math.log2(math.e))}')
    em(f'v_mov_b32 v{CC + 1}, v{CC}')
    em(f's_lshl_b32 s{t1}, s{t0}, 12')
    em(f'v_add_u32 v{vq}, s{t1}, v{vL16}')
    em(f'v_lshrrev_b32 v{vkm}, 2, v{vL}')
    em(f'v_lshlrev_b32 v{vkm}, 4, v{vkm}')
    em(f'v_and_b32 v{A_}, 1, v{vL}')
    em(f'v_lshl_add_u32 v{vkm}, v{A_}, 3, v{vkm}')
    em(f'v_and_b32 v{vvm}, 15, v{vL}')
    em(f'v_lshlrev_b32 v{vvm}, 4, v{vvm}')
    em(f'v_and_b32 v{A_}, 1, v{vG}')
    em(f'v_lshl_add_u32 v{vvm}, v{A_}, 3, v{vvm}')
    em(f'v_bfe_u32 v{vst}, v{vL}, 2, 2')
    em(f'v_mul_u32_u24 v{vst}, 5120, v{vst}')
    em(f'v_lshl_add_u32 v{vst}, v{vG}, 6, v{vst}')
    em(f'v_and_b32 v{A_}, 3, v{vL}')
    em(f'v_lshl_add_u32 v{vst}, v{A_}, 4, v{vst}')
    em(f's_mul_i32 s{t1}, s{t0}, 20480')
    em(f's_lshr_b32 s{t2}, s{sW}, 1')
    em(f's_mul_i32 s{t2}, s{t2}, 2560')
    em(f's_add_u32 s{t1}, s{t1}, s{t2}')
    em(f'v_add_u32 v{vst}, s{t1}, v{vst}')
    em(f's_lshl_b32 s{sFl}, s{sHd}, 7')
    em(f's_add_u32 s{sFl}, s{sFl}, {WS_HFLAG}')
    em(f's_lshl_b32 s{sC_}, s{sHd}, 2')
    em(f's_add_u32 s{sC_}, s{sC_}, {WS_AWF}')
    em(f's_mov_b32 s{sA}, {WS_K}')
    em(f's_cmp_eq_u32 s{sW}, 1')
    em(f's_cselect_b32 s{sA}, {WS_V}, s{sA}')
    em(f's_cmp_eq_u32 s{sW}, 2')
    em(f's_cselect_b32 s{sA}, {WS_Q}, s{sA}')
    em(f's_cmp_eq_u32 s{sW}, 3')
    em(f's_cselect_b32 s{sA}, {WS_KM}, s{sA}')
    em(f's_cselect_b32 s{t0}, 12, 13')
    em(f's_lshl_b32 s{t1}, s{sHd}, s{t0}')
    em(f's_add_u32 s{sA}, s{sA}, s{t1}')
    em(f's_lshl_b32 s{sB_}, 32, s{t0}')
    em(f's_lshl_b32 s{sF_}, s{sW}, 13')
    em(f's_mul_i32 s{sD_}, s{sHd}, {APB}')
    em(f's_add_u32 s{sD_}, s{sD_}, {WS_AP}')
    wait_start(em)
    em(f's_mov_b32 s{sNeed}, 1')
    em.label('AW_SEG')
    em.forget()
    wait_flags(em, sFl, 7, f's{sNeed}', A_, A_ + 1, sleep=2)
    for hf in range(2):
        if hf:
            em(f's_cmp_eq_u32 s{sW}, 3')
            em('s_cbranch_scc1 AW_FD')
        em(f's_add_u32 m0, s{sF_}, {4096 * hf}')
        em(f's_add_u32 s{t0}, s{sA}, {4096 * hf}')
        for k in range(4):
            em(f'buffer_load_dwordx4 v{vL16}, {WSR}, s{t0} offen offset:{1024 * k} sc1 lds')
    em.label('AW_FD')
    em(f's_add_u32 s{sA}, s{sA}, s{sB_}')
    em.wait_all()
    em('s_barrier')
    qt_ = [em.ds(f'ds_read_b128 {v(QF + 4 * st, 4)}, v{vq} offset:{16384 + 1024 * st}') for st in range(4)]
    kt = {}
    for st in range(4):
        for t in range(2):
            kt[t, st] = em.ds(f'ds_read_b128 {v(KF + 4 * (4 * t + st), 4)}, v{vL16} offset:{4096 * t + 1024 * st}')
    for st in range(4):
        em.wait(l=kt[1, st])
        for t in range(2):
            c = v(MSK + 4 * t, 4) if st == 0 else v(SC + 4 * t, 4)
            em(f'{MF} {v(SC + 4 * t, 4)}, {v(KF + 4 * (4 * t + st), 4)}, {v(QF + 4 * st, 4)}, {c}')
        if st == 0:
            for s2 in range(4):
                em.ds(f'ds_read_b64_tr_b16 {v(KMF + 4 * s2, 2)}, v{vkm} offset:{24576 + 512 * s2}')
                kt[2, s2] = em.ds(f'ds_read_b64_tr_b16 {v(KMF + 4 * s2 + 2, 2)}, v{vkm} offset:{24576 + 512 * s2 + 256}')
    for st in range(4):
        em.wait(l=kt[2, st])
        c = v(MSK + 8, 4) if st == 0 else v(SC + 8, 4)
        em(f'{MF} {v(SC + 8, 4)}, {v(KMF + 4 * st, 4)}, {v(QF + 4 * st, 4)}, {c}')
    vt_ = {}
    for et in range(8):
        em.ds(f'ds_read_b128 {v(VF + 4 * et, 4)}, v{vL16} offset:{8192 + 1024 * et}')
        vt_[et] = em.ds(f'ds_read_b64 {v(VMF + 2 * et, 2)}, v{vvm} offset:{24576 + 2048 + 256 * et}')
    B_ = A_ + 1
    em(f'v_max3_f32 v{A_}, v{SC}, v{SC + 1}, v{SC + 2}')
    for i in range(3, 11, 2):
        em(f'v_max3_f32 v{A_}, v{A_}, v{SC + i}, v{SC + i + 1}')
    em(f'v_max_f32 v{A_}, v{A_}, v{SC + 11}')
    em(f'v_mov_b32 v{B_}, v{A_}')
    em(f'v_permlane32_swap_b32 v{A_}, v{B_}')
    em(f'v_max_f32 v{A_}, v{A_}, v{B_}')
    em(f'v_mov_b32 v{B_}, v{A_}')
    em(f'v_permlane16_swap_b32 v{A_}, v{B_}')
    em(f'v_max_f32 v{A_}, v{A_}, v{B_}')
    em(f'v_mul_f32 v{A_}, v{CC}, v{A_}')
    em(f'v_mov_b32 v{B_}, v{A_}')
    for i in range(0, 12, 2):
        em(f'v_pk_fma_f32 {v(SC + i, 2)}, {v(SC + i, 2)}, {v(CC, 2)}, {v(A_, 2)} neg_lo:[0,0,1] neg_hi:[0,0,1]')
    for i in range(12):
        em(f'v_exp_f32 v{SC + i}, v{SC + i}')
    for i in range(6):
        em(f'v_cvt_pk_bf16_f32 v{P01 + i}, v{SC + 2 * i}, v{SC + 2 * i + 1}')
    em(f'{MF} {v(SUM, 4)}, {v(ONES, 4)}, {v(P01, 4)}, 0')
    for et in range(8):
        em.wait(l=vt_[et])
        em(f'{MF} {v(O + 4 * et, 4)}, {v(VF + 4 * et, 4)}, {v(P01, 4)}, 0')
    em(f'{MF16} {v(SUM, 4)}, {v(ONES, 2)}, {v(PM, 2)}, {v(SUM, 4)}')
    for et in range(8):
        em(f'{MF16} {v(O + 4 * et, 4)}, {v(VMF + 2 * et, 2)}, {v(PM, 2)}, {v(O + 4 * et, 4)}')
    em(f'v_rcp_f32 v{A_}, v{SUM}')
    em('s_nop 0')
    em(f'v_mov_b32 v{B_}, v{A_}')
    em('s_barrier')
    for et in range(8):
        for k in range(2):
            em(f'v_pk_mul_f32 {v(O + 4 * et + 2 * k, 2)}, {v(O + 4 * et + 2 * k, 2)}, {v(A_, 2)}')
            em(f'v_cvt_pk_bf16_f32 v{OFR + 2 * et + k}, v{O + 4 * et + 2 * k}, v{O + 4 * et + 2 * k + 1}')
    pend = []
    for p in range(10):
        acc = WA + 8 * (p % 4)
        for st in range(4):
            for t in range(2):
                c = '0' if st == 0 else v(acc + 4 * t, 4)
                em(f'{MF} {v(acc + 4 * t, 4)}, {r(WOR + ((2 * p + t) * 4 + st) * 4, 4)}, {v(OFR + 4 * st, 4)}, {c}')
                if st >= 2 and pend:
                    em(pend.pop(0))
                    if len(pend) == 1:
                        em(pend.pop(0))
        stg = ST + 4 * (p & 1)
        pend = [f'v_cvt_pk_bf16_f32 v{stg + k}, v{acc + 2 * k}, v{acc + 2 * k + 1}' for k in range(4)]
        pend.append(f'buffer_store_dwordx4 {v(stg, 4)}, v{vst}, {WSR}, s{sD_} offen offset:{256 * p} sc1')
    for i in pend:
        em(i)
    publish(em, sC_, f's{sNeed}', A_, A_ + 1)
    em(f's_add_u32 s{sD_}, s{sD_}, {32 * APB}')
    em(f's_cmp_eq_u32 s{sNeed}, 64')
    em(f's_cselect_b32 s{t0}, {64 * 32 * APB}, 0')
    em(f's_sub_u32 s{sD_}, s{sD_}, s{t0}')
    em(f's_add_u32 s{sNeed}, s{sNeed}, 1')
    em(f's_cmp_le_u32 s{sNeed}, {64 if C.OPT.get("l1") else 128}')
    em('s_cbranch_scc1 AW_SEG')
    em('s_branch DONE')
```

```python
import sys
sys.path.insert(0, 'gen'); sys.path.insert(0, 'mb')
from common import *
import chain as C
import workers as W
NAME = 'interleave_layers__memory_aug_recurrent_mem_tr__mixer_token_mlp__prompt'

def build(opts=(), stamps=False):
    C.OPT.clear()
    C.OPT.update({'nt': True, 'one': True, 'ack': True, 'd1': 1})
    for o in opts:
        k_, _, v_ = o.partition('=')
        C.OPT[k_] = int(v_) if v_ else True
    em = Em()
    elect(em)
    em(f's_cmp_eq_u32 s{sXcc}, 0')
    em('s_cbranch_scc1 ROLE_CHAIN')
    em(f's_sub_u32 s{W.wR}, s{sXcc}, 1')
    em(f's_lshl_b32 s{W.wR}, s{W.wR}, 5')
    em(f's_add_u32 s{W.wR}, s{W.wR}, s{sRank}')
    em(f's_cmp_ge_u32 s{W.wR}, 192')
    em('s_cbranch_scc1 ROLE_AW')
    W.gw_main(em, arrive, wait_start)
    em.label('ROLE_AW')
    W.aw_main(em, arrive, wait_start)
    em.label('ROLE_CHAIN')
    em(f's_mov_b32 s{C.sH}, s{sRank}')
    C.chain_init(em)
    arrive(em)
    C.chain_load_weights(em)
    wait_start(em)
    C.chain_main(em, hist=bool(C.OPT.get('hist')), stamps=stamps, nlayers=1 if C.OPT.get('l1') else 2, ph=bool(C.OPT.get('ph')))
    tail(em)
    ref = open(f'cdna_kernels/{NAME}.s.ref').read().split('\n')
    pre = '\n'.join(l for l in ref if l.startswith(';') and '@launch' not in l and 'Override' not in l and 'grid=ceil' not in l) + '\n'
    return header(NAME + '_kernel', pre=pre) + em.text() + footer(NAME + '_kernel')

if __name__ == '__main__':
    out = sys.argv[1]
    txt = build(sys.argv[2:], stamps='stamps' in sys.argv)
    open(out, 'w').write(txt)
    print('bytes', len(txt), 'lines', txt.count('\n'))
    if out.endswith('.s') and 'co' in sys.argv:
        from mblib import assemble
        assemble(txt, NAME + '_kernel', 15, out[:-2] + '.co')
```

```python
from emit import *
from layout import *

SWS, SDBG, SWQ, SWK, SWV, SWO, SM0 = 4, 8, 12, 16, 20, 24, 28
sH, sW, sT, sS, sLayer = 40, 41, 42, 43, 44
sMemRd, sMemWr, sMemRst, sPart, sT0, sT1 = 45, 46, 47, 48, 49, 50
sBase = [None, 51, 52, 53]
sStream, sKV, sKM, sVM, sReady, sIsRed = 54, 55, 56, 57, 58, 59
sMaskHi8, sMaskLo32, sC = 60, 62, 64
sOXw = 65
sOXr = [None, 66, 67, 68]
sSpin, sKm0, sFlag, sT2 = 69, 72, 73, 74
sTime = 76
SPIN_LIMIT = 1 << 20

vL16, vIdx, vLW, vPartSt, vPartLd, vMemSt, vTr, vQXw, vTA = 1, 2, 3, 4, 5, 6, 7, 8, 9
T0, T1 = 10, 11
SB = [12, 20, 28]
LB = [36, 44]
AB2, AB3 = 52, 56
accQ, accK, accV = 60, 64, 68
S0, S1, S2, X4 = 72, 76, 80, 84
RBASE = 88

NFR = 80
OPT = {}
FR = []
for m_ in 'qkv':
    for j in range(20):
        FR.append((m_, j))
for p in range(5):
    for x in range(4):
        FR.append(('o', p, x))
FID = {d: i for i, d in enumerate(FR)}
PH1 = []
for j in range(20):
    PH1 += [('q', j), ('k', j)] + ([('v', j)] if j < 18 else [])
SL_ = [[PH1[1], PH1[23], PH1[50], ('o', 1, 1)],
       [PH1[2], PH1[32], ('o', 2, 2)],
       [PH1[14], PH1[41], ('o', 1, 3)]]
LEND = [PH1[32], PH1[41]]
LF_ = [PH1[i] for i in (4, 7, 10, 16, 19, 25, 28, 34, 37)] + \
      [('o', 4, 0), ('o', 0, 0), ('o', 4, 2), ('o', 0, 1), ('o', 0, 3), ('o', 2, 1), ('o', 2, 3), ('o', 3, 2)]
NL1 = 9
SLIST = [[FID[d] for d in l] for l in SL_]
LFR = [FID[d] for d in LF_]
SFR = sum(SLIST, [])
assert len(LFR) == 17 and not set(LFR) & set(SFR)
RFR = [i for i in range(NFR) if i not in LFR and i not in SFR]
assert RBASE + 8 * len(RFR) <= 512, len(RFR)
RREG = {f: RBASE + 8 * n for n, f in enumerate(RFR)}
LSLOT = {f: n for n, f in enumerate(LFR)}
SSLOT = {f: n for n, f in enumerate(SFR)}
FSLOT = {f: n for n, f in enumerate(RFR + LFR)}
NFS = len(FSLOT)
SBUF = {f: b for b, l in enumerate(SLIST) for f in l}
SBR = SB
sSB = 80
sTag = 33
sPP = 30
sC2 = 70

WSR = s(SWS, 4)


def srd(em, d, ka, nbytes, tmp=None):
    em(f's_load_dwordx2 {s(d, 2)}, s[0:1], {ka}')
    em(f's_mov_b32 {s(d + 2)}, {nbytes}')
    em(f's_mov_b32 {s(d + 3)}, 0x20000')


def chain_init(em, hist=False):
    srd(em, SM0, KA_MEM0, M * DM * 2)
    L, G, A_, B_, C_ = 80, 81, 82, 83, 84
    em.l_done = em.l_iss
    em(f'v_lshrrev_b32 v{A_}, 6, v0')
    em(f'v_and_b32 v{L}, 63, v0')
    em(f'v_readfirstlane_b32 s{sW}, v{A_}')
    em(f'v_lshrrev_b32 v{G}, 4, v{L}')
    em(f'v_lshlrev_b32 v{vL16}, 4, v{L}')
    em(f's_mov_b32 s{sMaskHi8}, 0xff00ff00')
    em(f's_mov_b32 s{sMaskHi8 + 1}, 0xff00ff00')
    em(f's_mov_b32 s{sMaskLo32}, -1')
    em(f's_mov_b32 s{sMaskLo32 + 1}, 0')
    import struct, math
    c = struct.unpack('<I', struct.pack('<f', (DH ** -0.5) * math.log2(math.e)))[0]
    em(f's_mov_b32 s{sC}, {hex(c)}')
    em(f's_mov_b32 s{sC2}, {hex(c)}')
    em(f's_mov_b32 s{sC2 + 1}, {hex(c)}')
    em(f'v_mov_b32 v{A_}, 0x4444')
    em(f'v_mov_b32 v{B_}, 0xeeee')
    em(f'v_cndmask_b32 v{vIdx}, v{A_}, v{B_}, {s(sMaskHi8, 2)}')
    em(f's_mul_i32 s{sT0}, s{sW}, {LW_WAVE}')
    em(f's_add_u32 s{sT0}, s{sT0}, {L_W}')
    em(f'v_add_u32 v{vLW}, s{sT0}, v{vL16}')
    em(f's_mul_i32 s{sT0}, s{sW}, {20 * 4096}')
    em(f's_lshl_b32 s{sT1}, s{sH}, 7')
    em(f's_add_u32 s{sT0}, s{sT0}, s{sT1}')
    em(f'v_lshrrev_b32 v{A_}, 3, v{L}')
    em(f'v_lshlrev_b32 v{A_}, 12, v{A_}')
    em(f'v_and_b32 v{B_}, 7, v{L}')
    em(f'v_lshl_add_u32 v{A_}, v{B_}, 4, v{A_}')
    em(f'v_add_u32 v{vPartSt}, s{sT0}, v{A_}')
    em(f's_lshl_b32 s{sT2}, s{sH}, 1')
    em(f's_add_u32 s{sT2}, s{sT2}, s{sW}')
    em(f's_mov_b32 s{sIsRed}, 1')
    em(f's_cmp_lt_u32 s{sW}, 2')
    em(f's_cbranch_scc1 CH_U_OK')
    em(f's_add_u32 s{sT2}, s{sH}, 64')
    em(f's_cmp_eq_u32 s{sW}, 2')
    em(f's_cselect_b32 s{sT0}, 1, 0')
    em(f's_cmp_lt_u32 s{sH}, 16')
    em(f's_cselect_b32 s{sT1}, 1, 0')
    em(f's_and_b32 s{sIsRed}, s{sT0}, s{sT1}')
    em(f's_mul_i32 s{sT2}, s{sT2}, s{sIsRed}')
    em.label('CH_U_OK')
    em(f'v_bfe_u32 v{A_}, v{L}, 3, 1')
    em(f'v_lshl_add_u32 v{B_}, v{A_}, 2, v{G}')
    em(f'v_lshlrev_b32 v{B_}, 7, v{B_}')
    em(f'v_and_b32 v{C_}, 7, v{L}')
    em(f'v_lshl_add_u32 v{B_}, v{C_}, 4, v{B_}')
    em(f's_lshl_b32 s{sT0}, s{sT2}, 12')
    em(f'v_add_u32 v{vPartLd}, s{sT0}, v{B_}')
    em(f's_lshr_b32 s{sT0}, s{sT2}, 2')
    em(f's_lshl_b32 s{sT0}, s{sT0}, 9')
    em(f's_and_b32 s{sT1}, s{sT2}, 1')
    em(f's_lshl_b32 s{sT1}, s{sT1}, 8')
    em(f's_add_u32 s{sT0}, s{sT0}, s{sT1}')
    em(f's_bfe_u32 s{sT1}, s{sT2}, 0x10001')
    em(f's_lshl_b32 s{sT1}, s{sT1}, 6')
    em(f's_add_u32 s{sT0}, s{sT0}, s{sT1}')
    em(f'v_lshl_add_u32 v{A_}, v{G}, 1, v{A_}')
    em(f'v_lshlrev_b32 v{A_}, 4, v{A_}')
    em(f'v_lshrrev_b32 v{B_}, 2, v{C_}')
    em(f'v_lshl_add_u32 v{A_}, v{B_}, 7, v{A_}')
    em(f'v_and_b32 v{B_}, 3, v{C_}')
    em(f'v_lshl_add_u32 v{A_}, v{B_}, 2, v{A_}')
    em(f'v_add_u32 v{A_}, s{sT0}, v{A_}')
    em(f'v_mov_b32 v{B_}, 0x40000000')
    em(f'v_cndmask_b32 v{vMemSt}, v{B_}, v{A_}, {s(sMaskLo32, 2)}')
    em(f'v_lshrrev_b32 v{A_}, 2, v{L}')
    em(f'v_lshlrev_b32 v{A_}, 4, v{A_}')
    em(f'v_and_b32 v{B_}, 1, v{L}')
    em(f'v_lshl_add_u32 v{vTr}, v{B_}, 3, v{A_}')
    em(f'v_lshrrev_b32 v{A_}, 5, v{L}')
    em(f'v_lshlrev_b32 v{A_}, 8, v{A_}')
    em(f'v_and_b32 v{B_}, 15, v{L}')
    em(f'v_lshl_add_u32 v{A_}, v{B_}, 4, v{A_}')
    em(f'v_and_b32 v{B_}, 1, v{G}')
    em(f'v_lshl_add_u32 v{A_}, v{B_}, 3, v{A_}')
    em(f's_lshl_b32 s{sT0}, s{sW}, 9')
    em(f'v_add_u32 v{vQXw}, s{sT0}, v{A_}')
    em(f'v_and_b32 v{B_}, 7, v{L}')
    em(f'v_lshlrev_b32 v{A_}, 7, v{G}')
    em(f'v_lshl_add_u32 v{A_}, v{B_}, 4, v{A_}')
    em(f's_mul_i32 s{sT0}, s{sW}, 2560')
    em(f'v_add_u32 v{vTA}, s{sT0}, v{A_}')
    for x in (1, 2, 3):
        em(f's_add_u32 s{sT1}, s{sW}, {x}')
        em(f's_and_b32 s{sT1}, s{sT1}, 3')
        em(f's_mul_i32 s{sBase[x]}, s{sT1}, 2560')
        em(f's_sub_u32 s{sBase[x]}, s{sBase[x]}, s{sT0}')
        em(f's_lshl_b32 s{sOXr[x]}, s{sT1}, 9')
        em(f's_add_u32 s{sOXr[x]}, s{sOXr[x]}, {L_OX}')
        em(f's_sub_u32 s{sOXr[x]}, s{sOXr[x]}, s{sT0}')
    em(f's_lshl_b32 s{sT1}, s{sW}, 11')
    em(f's_sub_u32 s{sOXw}, {L_OX}, s{sT1}')
    em(f's_add_u32 s{sKm0}, s{sT1}, {L_KS}')
    em(f's_lshl_b32 s{sT0}, s{sH}, 2')
    em(f's_add_u32 s{sT0}, s{sT0}, s{sW}')
    em(f's_mul_i32 s{sT0}, s{sT0}, {len(SFR) * 2048}')
    em(f's_add_u32 s{sStream}, s{sT0}, {WS_STREAM}')
    em(f's_lshl_b32 s{sFlag}, s{sH}, 7')
    em(f's_add_u32 s{sFlag}, s{sFlag}, {WS_HFLAG}')
    em('s_waitcnt lgkmcnt(0)')

    P = 52
    for i in range(4):
        em(f'v_mov_b32 v{P + i}, -1')
    em(f's_cmp_eq_u32 s{sIsRed}, 0')
    em('s_cbranch_scc1 CH_NOPOISON')
    em(f's_mov_b32 s{sT0}, {WS_PART}')
    for n in range(4):
        em(f'buffer_store_dwordx4 {v(P, 4)}, v{vPartLd}, {WSR}, s{sT0} offen offset:{1024 * n}')
    for slot in range(2):
        em(f's_mov_b32 s{sT0}, {WS_MEMB + slot * 10240}')
        em(f'buffer_store_dword v{P}, v{vMemSt}, {WSR}, s{sT0} offen')
    em.label('CH_NOPOISON')
    em(f's_mul_i32 s{sT0}, s{sH}, 10240')
    em(f's_add_u32 s{sT0}, s{sT0}, {WS_MEMB0}')
    em(f'v_bfe_u32 v{A_}, v0, 2, 3')
    em(f'v_mul_u32_u24 v{A_}, 1280, v{A_}')
    em(f'v_bfe_u32 v{B_}, v0, 5, 2')
    em(f'v_and_b32 v{C_}, 3, v0')
    em(f'v_lshl_add_u32 v{B_}, v{B_}, 2, v{C_}')
    em(f'v_lshl_add_u32 v{A_}, v{B_}, 1, v{A_}')
    em(f'v_cmp_gt_u32 vcc, 128, v0')
    em(f'v_lshlrev_b32 v{C_}, 2, v0')

    def colbase(kb):
        wp, jj = divmod(kb, 5)
        return (160 * wp + 64 * (jj >> 1) + 16 * (jj & 1), 32) if jj < 4 else (160 * wp + 128, 16)
    for it in range(10):
        (c0, d0), (c1, d1) = colbase(2 * it), colbase(2 * it + 1)
        for k, (x0, x1) in enumerate(((c0, c1), (c0 + d0, c1 + d1))):
            em(f'v_mov_b32 v{86 + k}, {2 * x0}')
            em(f'v_mov_b32 v{B_}, {2 * x1}')
            em(f'v_cndmask_b32 v{86 + k}, v{B_}, v{86 + k}, vcc')
            em(f'v_add_u32 v{86 + k}, v{86 + k}, v{A_}')
        em(f'buffer_load_ushort v{56 + 2 * it}, v86, {s(SM0, 4)}, 0 offen')
        em(f'buffer_load_ushort v{57 + 2 * it}, v87, {s(SM0, 4)}, 0 offen')
    em('s_waitcnt vmcnt(0)')
    for it in range(10):
        em(f'v_lshl_or_b32 v{56 + 2 * it}, v{57 + 2 * it}, 16, v{56 + 2 * it}')
        em(f's_add_u32 s{sT1}, s{sT0}, {1024 * it}')
        em(f'buffer_store_dword v{56 + 2 * it}, v{C_}, {WSR}, s{sT1} offen')
    em('s_nop 1')
    em(f'v_and_b32 v{A_}, 15, v{L}')
    em(f'v_and_b32 v{B_}, 1, v{A_}')
    em(f'v_lshrrev_b32 v{C_}, 1, v{A_}')
    em(f'v_lshl_add_u32 v{B_}, v{B_}, 2, v{C_}')
    em(f'v_mov_b32 v{C_}, 99')
    em(f'v_cndmask_b32 v{B_}, v{B_}, v{C_}, {s(sMaskHi8, 2)}')
    em(f'v_mov_b32 v{A_}, 0x3f80')
    em(f'v_mov_b32 v{C_}, 0x3f800000')
    for dd in range(4):
        em(f'v_mov_b32 v{56 + dd}, 0')
        em(f'v_cmp_eq_u32 vcc, {2 * dd}, v{B_}')
        em(f'v_cndmask_b32 v{56 + dd}, v{56 + dd}, v{A_}, vcc')
        em(f'v_cmp_eq_u32 vcc, {2 * dd + 1}, v{B_}')
        em(f'v_cndmask_b32 v{56 + dd}, v{56 + dd}, v{C_}, vcc')
    em(f'v_add_u32 v{A_}, {L_SEL}, v{vL16}')
    em(f'ds_write_b128 v{A_}, {v(56, 4)}')
    em.wait_all()


def chain_load_weights(em):
    srd(em, SWQ, KA_WQ, DM * H * DH * 2)
    srd(em, SWK, KA_WK, DM * H * DH * 2)
    srd(em, SWV, KA_WV, DM * H * DH * 2)
    srd(em, SWO, KA_WO, DM * H * DH * 2)
    L, G, A_, B_ = 60, 61, 62, 63
    vSq, vSq2, vSo8, vSo4 = 64, 65, 66, 67
    vTq = [68, 69, 70, 71]
    vTo8, vTo4 = 72, 73
    RING = 24576
    sA, sB_, sColQ, sColO, sBlk, sFs = 80, 81, 82, 83, 84, 85
    em(f'v_and_b32 v{L}, 63, v0')
    em(f'v_lshrrev_b32 v{G}, 4, v{L}')
    em(f'v_lshrrev_b32 v{A_}, 1, v{G}')
    em(f'v_lshlrev_b32 v{vSq}, 13, v{A_}')
    em(f'v_and_b32 v{B_}, 15, v{L}')
    em(f'v_lshl_add_u32 v{vSq}, v{B_}, 4, v{vSq}')
    em(f'v_and_b32 v{A_}, 1, v{G}')
    em(f'v_lshl_add_u32 v{vSq2}, v{A_}, 17, v{vSq}')
    em(f'v_lshl_add_u32 v{vSq}, v{A_}, 18, v{vSq}')
    em(f'v_lshrrev_b32 v{A_}, 3, v{L}')
    em(f'v_mul_u32_u24 v{vSo8}, 1280, v{A_}')
    em(f'v_and_b32 v{B_}, 7, v{L}')
    em(f'v_lshl_add_u32 v{vSo8}, v{B_}, 4, v{vSo8}')
    em(f'v_lshrrev_b32 v{A_}, 2, v{L}')
    em(f'v_mul_u32_u24 v{vSo4}, 1280, v{A_}')
    em(f'v_and_b32 v{B_}, 3, v{L}')
    em(f'v_lshl_add_u32 v{vSo4}, v{B_}, 4, v{vSo4}')
    em(f'v_bfe_u32 v{A_}, v{L}, 3, 1')
    em(f'v_lshlrev_b32 v{A_}, 5, v{A_}')
    em(f'v_lshl_add_u32 v{A_}, v{B_}, 3, v{A_}')
    em(f'v_bfe_u32 v{B_}, v{L}, 2, 1')
    em(f'v_lshl_add_u32 v{vTq[0]}, v{G}, 2, v{B_}')
    em(f'v_lshl_add_u32 v{vTq[0]}, v{vTq[0]}, 8, v{A_}')
    em(f's_lshl_b32 s{sA}, s{sW}, 6')
    em(f's_add_u32 s{sA}, s{sA}, {RING}')
    em(f'v_add_u32 v{vTq[0]}, s{sA}, v{vTq[0]}')
    for x in (3, 2, 1, 0):
        em(f's_add_u32 s{sA}, s{sW}, {x}')
        em(f's_and_b32 s{sA}, s{sA}, 3')
        em(f's_lshl_b32 s{sA}, s{sA}, 13')
        em(f'v_add_u32 v{vTq[x]}, s{sA}, v{vTq[0]}')
    em(f'v_and_b32 v{vTo8}, 1, v{G}')
    em(f'v_lshlrev_b32 v{vTo8}, 4, v{vTo8}')
    em(f'v_lshrrev_b32 v{vTo4}, 1, v{G}')
    em(f'v_lshl_add_u32 v{vTo8}, v{vTo4}, 2, v{vTo8}')
    em(f'v_add_u32 v{vTo8}, v{vTo8}, v{B_}')
    em(f's_lshl_b32 s{sBlk}, s{sW}, 13')
    em(f's_add_u32 s{sBlk}, s{sBlk}, {RING}')
    em(f'v_add_u32 v{A_}, s{sBlk}, v{A_}')
    em(f'v_lshl_add_u32 v{vTo4}, v{vTo8}, 6, v{A_}')
    em(f'v_lshl_add_u32 v{vTo8}, v{vTo8}, 7, v{A_}')
    em(f's_mul_i32 s{sColQ}, s{sW}, {160 * 8192}')
    em(f's_lshl_b32 s{sA}, s{sH}, 8')
    em(f's_add_u32 s{sColQ}, s{sColQ}, s{sA}')
    em(f's_mul_i32 s{sColO}, s{sH}, {128 * 1280}')
    em(f's_mul_i32 s{sA}, s{sW}, 320')
    em(f's_add_u32 s{sColO}, s{sColO}, s{sA}')
    em(f's_lshl_b32 s{sFs}, s{sH}, 2')
    em(f's_add_u32 s{sFs}, s{sFs}, s{sW}')
    em(f's_mul_i32 s{sFs}, s{sFs}, {len(LFR) * 2048}')
    em(f's_add_u32 s{sFs}, s{sFs}, {WS_FRAG}')
    em('s_waitcnt lgkmcnt(0)')
    rounds = [('w', m_, jj) for jj in range(5) for m_ in 'qkv'] + [('o', x, pp) for x in range(4) for pp in range(3)]
    tok = {}

    def issue(n):
        rd = rounds[n]
        sl = (n % 4) * 32768
        if rd[0] == 'w':
            jj = rd[2]
            rb = 64 * (jj >> 1) + 16 * (jj & 1) if jj < 4 else 128
            sr, va = {'q': SWQ, 'k': SWK, 'v': SWV}[rd[1]], (vSq if jj < 4 else vSq2)
            for i in range(8):
                em(f's_add_u32 m0, s{sBlk}, {sl + 1024 * i}')
                em(f's_add_u32 s{sA}, s{sColQ}, {(rb + 2 * i) * 8192}')
                tok[n] = em.vm(f'buffer_load_dwordx4 v{va}, {s(sr, 4)}, s{sA} offen lds')
        else:
            x, pp = rd[1], rd[2]
            em(f's_add_u32 s{sB_}, s{sW}, {x}')
            em(f's_and_b32 s{sB_}, s{sB_}, 3')
            em(f's_mul_i32 s{sB_}, s{sB_}, {32 * 1280}')
            em(f's_add_u32 s{sB_}, s{sB_}, s{sColO}')
            ni, rows, va = (4, 8, vSo8) if pp < 2 else (2, 16, vSo4)
            for i in range(ni):
                em(f's_add_u32 m0, s{sBlk}, {sl + 1024 * i}')
                em(f's_add_u32 s{sA}, s{sB_}, {128 * pp + rows * i * 1280}')
                tok[n] = em.vm(f'buffer_load_dwordx4 v{va}, {s(SWO, 4)}, s{sA} offen lds')

    TMP = [12, 20, 28, 36, 44, 52]
    ntmp = [0]
    for n in range(3):
        issue(n)
    for n, rd in enumerate(rounds):
        sl = (n % 4) * 32768
        em.wait(v=tok[n])
        em('s_barrier')
        if n + 3 < len(rounds):
            issue(n + 3)
        outs = []
        if rd[0] == 'w':
            items = [(FID[(rd[1], 5 * x + rd[2])], vTq[x], 4096, 512, 0) for x in range(4)]
        elif rd[2] < 2:
            items = [(FID[('o', 2 * rd[2] + i, rd[1])], vTo8, 1024, 256, 64 * i) for i in range(2)]
        else:
            items = [(FID[('o', 4, rd[1])], vTo4, 512, 128, 0)]
        for f, va, hs, ls, co in items:
            if f in RREG:
                dst = RREG[f]
            else:
                dst = TMP[ntmp[0] % 6]; ntmp[0] += 1
                outs.append((f, dst))
            for q_ in range(4):
                off = sl + (q_ >> 1) * hs + (q_ & 1) * ls + co
                if off < 65536:
                    em.ds(f'ds_read_b64_tr_b16 {r(dst + 2 * q_, 2)}, v{va} offset:{off}')
                else:
                    if q_ == 0:
                        em(f'v_add_u32 v{B_}, 65536, v{va}')
                    em.ds(f'ds_read_b64_tr_b16 {r(dst + 2 * q_, 2)}, v{B_} offset:{off - 65536}')
        em.wait_all(v=False)
        for f, dst in outs:
            if f in SSLOT:
                em(f's_add_u32 s{sA}, s{sStream}, {SSLOT[f] * 2048}')
            else:
                em(f's_add_u32 s{sA}, s{sFs}, {LSLOT[f] * 2048}')
            em(f'buffer_store_dwordx4 {v(dst, 4)}, v{vL16}, {WSR}, s{sA} offen')
            em(f'buffer_store_dwordx4 {v(dst + 4, 4)}, v{vL16}, {WSR}, s{sA} offen offset:1024')
    em.wait_all()
    em('s_barrier')
    em(f's_mul_i32 s{sT2}, s{sW}, {LW_WAVE}')
    em(f's_add_u32 s{sT2}, s{sT2}, {L_W}')
    for i in range(0, 2 * len(LFR), 4):
        em(f's_add_u32 m0, s{sT2}, {1024 * i}')
        em(f's_add_u32 s{sA}, s{sFs}, {1024 * i}')
        for k in range(min(4, 2 * len(LFR) - i)):
            em(f'buffer_load_dwordx4 v{vL16}, {WSR}, s{sA} offen offset:{1024 * k} sc1 lds')
    em.wait_all()


class Op:
    def __init__(self, text):
        self.text = text
        self.tok = None


class Q:
    def __init__(self, em):
        self.em = em
        self.q = []

    def push(self, *texts):
        o = None
        for t in texts:
            o = Op(t)
            self.q.append(o)
        return o

    def issue(self, o):
        t = o.text
        if t.startswith('ds_'):
            o.tok = ('l', self.em.ds(t))
        elif t.startswith('buffer_'):
            k = self.em.vm(t)
            o.tok = ('v', k) if k is not None else ('x', 0)
        else:
            self.em(t)
            o.tok = ('x', 0)

    def drain(self, n=99):
        while n > 0 and self.q:
            self.issue(self.q.pop(0))
            n -= 1

    def now(self, *texts):
        o = None
        for t in texts:
            o = Op(t)
            self.issue(o)
        return o

    def need(self, *ops):
        l = v_ = None
        for o in ops:
            if o is None:
                continue
            while o.tok is None:
                self.drain(1)
            if o.tok[0] == 'l':
                l = max(l or 0, o.tok[1])
            elif o.tok[0] == 'v':
                v_ = max(v_ or 0, o.tok[1])
        self.em.wait(l=l, v=v_)


def sl_txt(f):
    b = SBR[SBUF[f]]
    sl = SSLOT[f]
    o = (sl & 1) * 2048
    if OPT.get('nosl'):
        return ['s_nop 0']
    return [f'buffer_load_dwordx4 {v(b, 4)}, v{vL16}, {WSR}, s{sSB + sl // 2} offen offset:{o}',
            f'buffer_load_dwordx4 {v(b + 4, 4)}, v{vL16}, {WSR}, s{sSB + sl // 2} offen offset:{o + 1024}']


def ll_txt(f, buf):
    return [f'ds_read_b128 {v(buf, 4)}, v{vLW} offset:{LSLOT[f] * 2048}',
            f'ds_read_b128 {v(buf + 4, 4)}, v{vLW} offset:{LSLOT[f] * 2048 + 1024}']


KVT = T1


def kv_check(em, out_of_line):
    lab = em.newlabel('CH_KVOK')
    lp = em.newlabel('CH_KVPOLL')
    em(f's_cmp_lt_u32 s{sReady}, s{sT0}')
    em(f's_cbranch_scc1 {lp}')
    em.label(lab)
    out_of_line.append((lab, lp))


def kv_slow(em, lab, lp):
    em.label(lp)
    em(f's_mov_b32 s{sSpin}, 0')
    em(f'v_accvgpr_write_b32 a255, v{KVT}') if False else None
    em.label(lp + 'L')
    em(f'v_and_b32 v{KVT}, 48, v{vL16}')
    em(f'v_lshrrev_b32 v{KVT}, 2, v{KVT}')
    em(f'buffer_load_dword v{KVT}, v{KVT}, {WSR}, s{sFlag} offen offset:8 sc1')
    em(f's_add_u32 s{sSpin}, s{sSpin}, 1')
    em(f's_cmp_gt_u32 s{sSpin}, {SPIN_LIMIT}')
    em('s_cbranch_scc1 ABORT')
    em('s_waitcnt vmcnt(0)')
    em(f'v_min_u32_dpp v{KVT}, v{KVT}, v{KVT} quad_perm:[1,0,3,2] row_mask:0xf bank_mask:0xf')
    em(f'v_min_u32_dpp v{KVT}, v{KVT}, v{KVT} quad_perm:[2,3,0,1] row_mask:0xf bank_mask:0xf')
    em(f'v_readfirstlane_b32 s{sReady}, v{KVT}')
    em('s_nop 1')
    em(f's_cmp_lt_u32 s{sReady}, s{sT0}')
    em(f's_cbranch_scc1 {lp}L')
    em(f's_branch {lab}')


def k_txt():
    if OPT.get('nokv'):
        return ['s_nop 0']
    return [f's_mov_b32 m0, s{sKm0}',
            f's_add_u32 s{sKV}, s{sKV}, {32 * 8192}',
            f'buffer_load_dwordx4 v{vL16}, {WSR}, s{sKV} offen sc1 nt lds',
            f'buffer_load_dwordx4 v{vL16}, {WSR}, s{sKV} offen offset:1024 sc1 nt lds']


NST = 8
sAcc = 86


def stamp(em, i, on, fine=False):
    if not on:
        return
    if OPT.get('ph2'):
        if not fine:
            i = {0: 0, 1: 6}.get(i, 7)
    elif fine:
        return
    em('s_memrealtime s[96:97]' if OPT.get('abs') else 's_memtime s[96:97]')
    em('s_waitcnt lgkmcnt(0)')
    em.l_done = em.l_iss
    if OPT.get('abs'):
        em(f's_cmp_eq_u32 s{sT}, {OPT["abs"] + (1 if i == 0 and False else 0)}')
        em(f's_cselect_b32 s{sAcc + i}, s96, s{sAcc + i}')
        return
    em('s_sub_u32 s98, s96, s94')
    em(f's_add_u32 s{sAcc + i}, s{sAcc + i}, s98')
    em('s_mov_b32 s94, s96')


WS_TL = WS_HIST + 0x190000


def tl(em, slot, va=10, vb=11, dyn=None):
    if not OPT.get('tl'):
        return
    em('s_memrealtime s[100:101]')
    em('s_lshl_b32 s99, s39, 5')
    em('s_add_u32 s99, s99, s38')
    em('s_lshl_b32 s99, s99, 7')
    em(f's_add_u32 s99, s99, {WS_TL + 4 * slot}')
    if dyn is not None:
        em(f's_lshl_b32 s98, s{dyn}, 6')
        em('s_add_u32 s99, s99, s98')
    em('s_waitcnt lgkmcnt(0)')
    em.l_done = em.l_iss
    em(f'v_mov_b32 v{va}, s100')
    em(f'v_mov_b32 v{vb}, 0')
    em(f'buffer_store_dword v{va}, v{vb}, {WSR}, s99 offen')


def zero_txt(reg, n):
    return [f'v_mov_b64 {v(reg + i, 2)}, 0' for i in range(0, n, 2)]


def chain_main(em, hist=False, nlayers=2, stamps=False, ph=False):
    SM = 'v_smfmac_f32_16x16x64_bf16'
    MF = 'v_mfma_f32_16x16x32_bf16'
    MF16 = 'v_mfma_f32_16x16x16_bf16'
    ool = []
    q = Q(em)
    em(f's_mov_b32 s{sT}, 0')
    em(f's_mov_b32 s{sLayer}, 0')
    em(f's_mov_b32 s{sReady}, 0')
    em(f's_mov_b32 s{sPart}, {WS_PART}')
    em(f's_mov_b32 s{sPP}, {WS_PART + 32768}')
    em(f's_mov_b32 s{sPP + 1}, {WS_PART + 65536}')
    em(f's_lshl_b32 s{sKV}, s{sH}, 13')
    em(f's_lshl_b32 s{sT0}, s{sW}, 11')
    em(f's_add_u32 s{sKV}, s{sKV}, s{sT0}')
    em(f's_add_u32 s{sKV}, s{sKV}, {WS_K - 32 * 8192}')
    em(f's_lshl_b32 s{sKM}, s{sH}, 12')
    em(f's_add_u32 s{sKM}, s{sKM}, {WS_KM}')
    for i in range((len(SFR) + 1) // 2):
        em(f's_add_u32 s{sSB + i}, s{sStream}, {4096 * i}')
    if ph:
        for i in range(NST):
            em(f's_mov_b32 s{sAcc + i}, 0')
        em('s_memtime s[94:95]')
        em('s_waitcnt lgkmcnt(0)')
    em.label('CH_LAYER')
    em(f's_mov_b32 s{sS}, 0')
    em(f's_mul_i32 s{sMemRd}, s{sH}, 10240')
    em(f's_add_u32 s{sMemRd}, s{sMemRd}, {WS_MEMB0}')
    em(f's_lshl_b32 s{sT0}, s{sLayer}, 6')
    em(f's_add_u32 s{sT0}, s{sT0}, 1')
    for b in (0, 1):
        q.now(*sl_txt(SLIST[b][0]))
    tl(em, 2, dyn=sLayer)
    kv_check(em, ool)
    tl(em, 3, dyn=sLayer)
    q.now(*k_txt())
    if stamps:
        em(f's_memtime {s(sTime, 2)}')
        em('s_waitcnt lgkmcnt(0)')
    em.label('CH_STEP')
    em.forget()
    W0 = SB[2]
    m = SB[2] + 4
    TW = 0
    op = {}
    lbuf = {}

    def polls():
        em(f'buffer_load_dwordx4 {v(S1, 4)}, v{vTA}, {WSR}, s{sMemRd} offen sc1')
        em(f'buffer_load_dwordx4 {v(S2, 4)}, v{vTA}, {WSR}, s{sMemRd} offen offset:512 sc1')
        em(f'buffer_load_dwordx4 {v(AB2, 4)}, v{T0}, {WSR}, s{sMemRd} offen offset:1024 sc1')
        em(f'buffer_load_dwordx2 {v(AB3, 2)}, v{T1}, {WSR}, s{sMemRd} offen offset:2048 sc1')

    em(f's_mul_i32 s{sT0}, s{sW}, 2560')
    em(f'v_add_u32 v{T0}, s{sT0}, v{vL16}')
    em(f'v_lshrrev_b32 v{T1}, 1, v{vL16}')
    em(f'v_add_u32 v{T1}, s{sT0}, v{T1}')
    em(f's_and_b32 s{sTag}, s{sT}, 1')
    em(f's_mul_i32 s{sMemRst}, s{sTag}, 10240')
    em(f's_sub_u32 s{sMemWr}, {WS_MEMB + 10240}, s{sMemRst}')
    em(f's_add_u32 s{sMemRst}, s{sMemRst}, {WS_MEMB}')
    q.now(*zero_txt(accQ, 12))
    em(f'v_add_u32 v{TW}, 512, v{vTA}')
    em(f'v_cndmask_b32 v{TW}, v{vTA}, v{TW}, {s(sMaskHi8, 2)}')
    for n in range(2):
        op[LFR[n]] = q.now(*ll_txt(LFR[n], LB[n])); lbuf[LFR[n]] = LB[n]
    em(f's_mov_b32 s{sSpin}, 0')
    em.nops(OPT.get('e1', 0))
    em.label('CH_POLL2')
    polls()
    em(f's_add_u32 s{sSpin}, s{sSpin}, 1')
    em(f's_cmp_gt_u32 s{sSpin}, {SPIN_LIMIT}')
    em('s_cbranch_scc1 ABORT')
    em('s_waitcnt vmcnt(2)')
    em(f'v_max3_u32 v{m}, v{S1}, v{S1 + 1}, v{S1 + 2}')
    em(f'v_max3_u32 v{m + 1}, v{S1 + 3}, v{S2}, v{S2 + 1}')
    em(f'v_max3_u32 v{m}, v{m}, v{S2 + 2}, v{S2 + 3}')
    for i in range(4):
        em(f'v_cndmask_b32 v{W0 + i}, v{S1 + i}, v{S2 + i}, {s(sMaskHi8, 2)}')
    em('s_waitcnt vmcnt(0)')
    em(f'v_max3_u32 v{m + 1}, v{m + 1}, v{AB2}, v{AB2 + 1}')
    em(f'v_max3_u32 v{m}, v{m}, v{AB2 + 2}, v{AB2 + 3}')
    em(f'v_max3_u32 v{m}, v{m}, v{AB3}, v{AB3 + 1}')
    em(f'v_max_u32 v{m}, v{m}, v{m + 1}')
    em(f'v_cmp_eq_u32 vcc, -1, v{m}')
    em('s_cbranch_vccnz CH_POLL2')
    em.v_done = em.v_iss
    stamp(em, 0, ph)
    ACC = {'q': accQ, 'k': accK, 'v': accV}

    def smf(acc, areg, f, aop=None, reload=True):
        if f in RREG:
            b = r(RREG[f], 8)
            q.need(aop)
        elif f in SSLOT:
            q.need(aop, None if OPT.get('nosw') else op.get(f))
            b = v(SBR[SBUF[f]], 8)
        else:
            q.need(aop, op[f])
            b = v(lbuf[f], 8)
        em(f'{SM} {v(acc, 4)}, {v(areg, 4)}, {b}, v{vIdx}')
        if f in SSLOT and reload:
            l = SLIST[SBUF[f]]
            nf = l[(l.index(f) + 1) % len(l)]
            op[nf] = q.push(*sl_txt(nf))

    ABX = [S1, S2, S0, X4]
    abuf = {j: ABX[j % 4] for j in range(20)}
    q.now(f'ds_write_b128 v{TW}, {v(W0, 4)} offset:{L_MEM}',
          f'ds_write_b128 v{T0}, {v(AB2, 4)} offset:{L_MEM + 1024}')
    wl = q.now(f'ds_write_b64 v{T1}, {v(AB3, 2)} offset:{L_MEM + 2048}')
    op[SLIST[2][0]] = q.push(*sl_txt(SLIST[2][0]))
    aop = {0: None, 1: None}

    def apush(j):
        x, jj = j // 5, j % 5
        t = [vTA, T0, T1, T0][x]
        o = q.push(f'ds_read_b128 {v(abuf[j], 4)}, v{t} offset:{L_MEM + 512 * jj}')
        if jj == 4 and x < 3:
            q.push(f'v_add_u32 v{[T0, T1, T0][x]}, s{sBase[x + 1]}, v{vTA}')
        return o

    for j in (2, 3):
        aop[j] = apush(j)
    lq = list(LFR[2:NL1])
    KREG = {}
    kop = {}

    def kpush(reg):
        ks = KORD[len(KREG)]
        KREG[ks] = reg
        kop[ks] = q.push(f'ds_read_b128 {v(reg, 4)}, v{vL16} offset:{L_KS + 1024 * ks}')

    VS = [AB2, AB3]
    hold = [PH1[50]]
    for n, d in enumerate(PH1):
        f = FID[d]
        j = d[1]
        smf(ACC[d[0]], abuf[j], f, aop[j], reload=d not in LEND and d not in hold)
        last = n + 1 == len(PH1) or PH1[n + 1][1] != j
        if last:
            if j == 1:
                q.drain()
                q.need(wl)
                stamp(em, 1, ph, True)
                em('s_barrier')
                stamp(em, 2, ph, True)
            if j < 16:
                aop[j + 4] = apush(j + 4)
            if j == 9:
                stamp(em, 3, ph, True)
            if j == OPT.get('vj', 9) and not OPT.get('nokv'):
                q.push(f's_add_u32 s{sT1}, s{sKV}, {WS_V - WS_K}')
                for i in range(2):
                    vsop = q.push(f'buffer_load_dwordx4 {v(VS[i], 4)}, v{vL16}, {WSR}, s{sT1} offen offset:{1024 * i} sc1 nt')
            if j == 15:
                q.push(f's_lshl_b32 s{sT0}, s{sLayer}, 6', f's_add_u32 s{sT0}, s{sT0}, s{sS}', f's_add_u32 s{sT0}, s{sT0}, 2',
                       )
        if f in LSLOT:
            if lq:
                nf = lq.pop(0)
                op[nf] = q.push(*ll_txt(nf, lbuf[f])); lbuf[nf] = lbuf[f]
            else:
                kpush(lbuf[f]); kpush(lbuf[f] + 4)
        if d in LEND:
            kpush(SBR[SBUF[f]]); kpush(SBR[SBUF[f]] + 4)
        q.drain(2)
    if OPT.get('nokv'):
        vsop = None
    assert len(KREG) == 8
    stamp(em, 1, ph)
    smf(accV, abuf[18], FID[('v', 18)])
    q.drain()
    em(f'v_cvt_pk_bf16_f32 v{accQ}, v{accQ}, v{accQ + 1}')
    em(f'v_cvt_pk_bf16_f32 v{accQ + 1}, v{accQ + 2}, v{accQ + 3}')
    q.now(f'ds_write_b64 v{vQXw}, {v(accQ, 2)} offset:{L_QX}')
    em(f'v_cvt_pk_bf16_f32 v{accK}, v{accK}, v{accK + 1}')
    em(f'v_cvt_pk_bf16_f32 v{accK + 1}, v{accK + 2}, v{accK + 3}')
    wq = q.now(f'ds_write_b64 v{vQXw}, {v(accK, 2)} offset:{L_KX}')
    smf(accV, abuf[19], FID[('v', 19)])
    q.now(f'buffer_store_dwordx2 {v(accK, 2)}, v{vQXw}, {WSR}, s{sKM} offen sc1')
    q.need(wq, *kop.values())
    em('s_barrier')

    def trd(reg, base, st):
        return [f'ds_read_b64_tr_b16 {v(reg, 2)}, v{vTr} offset:{base + st * 512}',
                f'ds_read_b64_tr_b16 {v(reg + 2, 2)}, v{vTr} offset:{base + st * 512 + 256}']

    QF = [X4, accQ, accK, KREG[0]]
    qop = [q.now(*trd(QF[st], L_QX, st)) for st in range(3)]
    op[SLIST[0][3]] = q.now(*sl_txt(SLIST[0][3]))
    VM = accV
    em(f'v_cvt_pk_bf16_f32 v{VM}, v{accV}, v{accV + 1}')
    em(f'v_cvt_pk_bf16_f32 v{VM + 1}, v{accV + 2}, v{accV + 3}')
    q.now(f'buffer_store_dwordx2 {v(VM, 2)}, v{vQXw}, {WSR}, s{sKM} offen offset:2048 sc1')
    em(f's_add_u32 s{sKM}, s{sKM}, {32 * 4096}')
    em(f's_cmp_eq_u32 s{sS}, {NSEG - 1}')
    em('s_cbranch_scc1 CH_LAYER_END')
    if OPT.get('kp', 1) == 3:
        kv_check(em, ool)
        q.push(*k_txt())
    KM = [KREG[4], KREG[1], KREG[5], KREG[2]]
    kmop = {}
    for st in range(4):
        q.need(qop[st])
        for t, acc in ((0, S0), (1, S1)):
            c = '0' if st == 0 else v(acc, 4)
            em(f'{MF} {v(acc, 4)}, {v(KREG[4 * t + st], 4)}, {v(QF[st], 4)}, {c}')
            if st == 0 and t == 0:
                qop.append(q.push(*trd(QF[3], L_QX, 3)))
            if st == 0 and t == 1:
                kmop[0] = q.push(*trd(KM[0], L_KX, 0))
            if st == 1:
                kmop[1 + t] = q.push(*trd(KM[1 + t], L_KX, 1 + t))
            if st == 2 and t == 0:
                kmop[3] = q.push(*trd(KM[3], L_KX, 3))
            if st == 3 and t == 1:
                op[SLIST[2][2]] = q.push(*sl_txt(SLIST[2][2]))
            q.drain(2)
    assert {KREG[0], KREG[4]} == {SB[1], SB[1] + 4} and {KREG[3], KREG[7]} == {SB[2], SB[2] + 4}
    ONES = KREG[6]
    A_, B_ = T0, T1
    for st in range(4):
        q.need(kmop[st])
        c = '0' if st == 0 else v(S2, 4)
        em(f'{MF} {v(S2, 4)}, {v(KM[st], 4)}, {v(QF[st], 4)}, {c}')
        em(f'v_mov_b32 v{ONES + st}, 0x3f803f80')
        if st == 2:
            em(f'v_max3_f32 v{A_}, v{S0}, v{S0 + 1}, v{S0 + 2}')
        if st == 3:
            em(f'v_max3_f32 v{A_}, v{A_}, v{S0 + 3}, v{S1}')
    stamp(em, 2, ph)
    op[SLIST[1][2]] = q.now(*sl_txt(SLIST[1][2]))
    KP = OPT.get('kp', 1)
    if KP == 0:
        kv_check(em, ool)
        q.now(*k_txt())
    em(f'v_max3_f32 v{A_}, v{A_}, v{S1 + 1}, v{S1 + 2}')
    em(f'v_max_f32 v{A_}, v{A_}, v{S1 + 3}')
    em(f'v_add_u32 v0, s{sOXw}, v{vTA}')
    WA = [accV, S0, S1, S2, X4]
    em(f'v_mov_b64 {v(X4, 2)}, 0')
    em(f'v_mov_b64 {v(X4 + 2, 2)}, 0')
    em(f'v_mov_b64 {v(accV + 2, 2)}, 0')
    em(f'v_max3_f32 v{A_}, v{A_}, v{S2}, v{S2 + 1}')
    em(f'v_max3_f32 v{A_}, v{A_}, v{S2 + 2}, v{S2 + 3}')
    em(f'v_mov_b32 v{B_}, v{A_}')
    em(f's_mov_b64 vcc, {s(sMaskLo32, 2)}')
    em('s_nop 0')
    em(f'v_permlane32_swap_b32 v{A_}, v{B_}')
    em(f'v_max_f32 v{A_}, v{A_}, v{B_}')
    em(f'v_mov_b32 v{B_}, v{A_}')
    em(f'v_permlane16_swap_b32 v{A_}, v{B_}')
    em(f'v_max_f32 v{A_}, v{A_}, v{B_}')
    em(f'v_mul_f32 v{A_}, s{sC}, v{A_}')
    em(f'v_mov_b32 v{B_}, v{A_}')
    P01 = accK
    PM = accQ
    for i in range(0, 12, 2):
        em(f'v_pk_fma_f32 {v(S0 + i, 2)}, {v(S0 + i, 2)}, {s(sC2, 2)}, {v(A_, 2)} neg_lo:[0,0,1] neg_hi:[0,0,1]')
    for i in range(12):
        em(f'v_exp_f32 v{S0 + i}, v{S0 + i}')
    if KP == 1:
        kv_check(em, ool)
        q.now(*k_txt())
    for i in range(4):
        em(f'v_cvt_pk_bf16_f32 v{P01 + i}, v{S0 + 2 * i}, v{S0 + 2 * i + 1}')
    em(f'v_cvt_pk_bf16_f32 v{PM + 2}, v{S2}, v{S2 + 1}')
    em(f'v_cvt_pk_bf16_f32 v{PM + 3}, v{S2 + 2}, v{S2 + 3}')
    O0, O1, SUM = KREG[1], KREG[5], KREG[2]
    zt = zero_txt(S0, 12)
    em(f'{MF} {v(SUM, 4)}, {v(ONES, 4)}, {v(P01, 4)}, 0')
    em(f'v_cndmask_b32 v{PM}, 0, v{PM + 2}, vcc')
    em(f'v_cndmask_b32 v{PM + 1}, 0, v{PM + 3}, vcc')
    q.need(vsop)
    em(f'{MF} {v(O0, 4)}, {v(VS[0], 4)}, {v(P01, 4)}, 0')
    em(f'v_xor_b32 v{PM + 2}, v{PM + 2}, v{PM}')
    em(f'v_xor_b32 v{PM + 3}, v{PM + 3}, v{PM + 1}')
    em(f'{MF} {v(O1, 4)}, {v(VS[1], 4)}, {v(P01, 4)}, 0')
    q.now(zt[0])
    em(f'{MF16} {v(SUM, 4)}, {v(ONES, 2)}, {v(PM, 2)}, {v(SUM, 4)}')
    q.now(*zt[1:3])
    em(f'{MF16} {v(O0, 4)}, {v(VM, 2)}, {v(PM, 2)}, {v(O0, 4)}')
    q.now(*zt[3:5])
    em(f'{MF16} {v(O1, 4)}, {v(VM, 2)}, {v(PM + 2, 2)}, {v(O1, 4)}')
    q.now(zt[5])
    q.now(*zero_txt(accV, 2))
    em(f'v_rcp_f32 v{A_}, v{SUM}')
    em('s_nop 0')
    em(f'v_mov_b32 v{B_}, v{A_}')
    for o in (O0, O0 + 2, O1, O1 + 2):
        em(f'v_pk_mul_f32 {v(o, 2)}, {v(o, 2)}, {v(A_, 2)}')
    OF = [AB2, AB3, accQ, accK]
    em(f'v_cvt_pk_bf16_f32 v{OF[0]}, v{O0}, v{O0 + 1}')
    em(f'v_cvt_pk_bf16_f32 v{OF[0] + 1}, v{O0 + 2}, v{O0 + 3}')
    em(f'v_cvt_pk_bf16_f32 v{OF[0] + 2}, v{O1}, v{O1 + 1}')
    em(f'v_cvt_pk_bf16_f32 v{OF[0] + 3}, v{O1 + 2}, v{O1 + 3}')
    wo = q.now(f'ds_write_b128 v0, {v(OF[0], 4)}')
    lq = list(LFR[NL1:])
    for n in range(2):
        nf = lq.pop(0)
        op[nf] = q.push(*ll_txt(nf, LB[n])); lbuf[nf] = LB[n]

    def wstep(p, x, aop_=None, nd=2):
        f = FID[('o', p, x)]
        smf(WA[p], OF[x], f, aop_, reload=(f in SSLOT and SBUF[f] < 2 and not OPT.get('nopt')))
        if f in LSLOT and lq:
            nf = lq.pop(0)
            o = Op(None)
            a_, b_ = ll_txt(nf, lbuf[f])
            q.q[0:0] = [Op(a_), Op(b_)]
            op[nf] = q.q[1]; lbuf[nf] = lbuf[f]
        q.drain(nd)

    em(f'v_add_u32 v{T0}, s{sOXr[1]}, v{vTA}')
    wstep(2, 0)
    em(f'v_add_u32 v{T1}, s{sOXr[2]}, v{vTA}')
    wstep(3, 0)
    em(f'v_add_u32 v0, s{sOXr[3]}, v{vTA}')
    q.need(wo)
    em('s_barrier')
    stamp(em, 3, ph)
    oop = {}
    for x, t_ in ((1, T0), (2, T1), (3, 0)):
        oop[x] = q.now(f'ds_read_b128 {v(OF[x], 4)}, v{t_}')
    if KP == 2:
        kv_check(em, ool)
        q.push(*k_txt())
    wstep(1, 0); wstep(4, 0); wstep(0, 0)

    def cvt2(dst, acc):
        return [f'v_cvt_pk_bf16_f32 v{dst}, v{acc}, v{acc + 1}',
                f'v_cvt_pk_bf16_f32 v{dst + 1}, v{acc + 2}, v{acc + 3}']

    a4 = WA[4]
    tg = lambda reg: f'v_and_or_b32 v{reg}, v{reg}, -2, s{sTag}'
    st4 = lambda reg, so: f'buffer_store_dwordx4 {v(reg, 4)}, v{vPartSt}, {WSR}, s{so} offen'
    EPI = {4: cvt2(a4, a4) + [f'v_mov_b64 {v(a4 + 2, 2)}, {v(a4, 2)}',
                              f'v_permlane32_swap_b32 v{a4}, v{a4 + 2}', f'v_permlane32_swap_b32 v{a4 + 1}, v{a4 + 3}',
                              tg(a4), f's_mov_b64 exec, {s(sMaskLo32, 2)}', st4(a4, sPP + 1), 's_mov_b64 exec, -1'],
           0: cvt2(WA[0], WA[0]) + [tg(WA[0])],
           1: cvt2(WA[0] + 2, WA[1]) + [st4(WA[0], sPart)],
           2: cvt2(WA[2], WA[2]) + [tg(WA[2])],
           3: cvt2(WA[2] + 2, WA[3]) + [st4(WA[2], sPP)]}
    SEL = OF[0]
    pend = []
    age = 0
    for p in (4, 0, 1, 2, 3):
        for x in (1, 2, 3):
            if p == 1 and x == 1:
                q.need(*[op[SLIST[b][-1]] for b in range(3)])
            wstep(p, x, oop[x])
            if p == 4 and x == 1:
                selop = q.push(f'ds_read_b128 {v(SEL, 4)}, v{vL16} offset:{L_SEL}')
            age += 1
            if age >= 2:
                k = 0
                while pend and (k < 2 or 'exec, -1' in pend[0] or 'buffer_store' in pend[0]):
                    if 'exec, s' in pend[0] and (p, x) < (1, 1) and p != 4 or ('exec, s' in pend[0] and p == 4):
                        break
                    q.now(pend.pop(0)); k += 1
        if not pend:
            age = 0
        pend += EPI[p]
    q.drain()
    em(f's_mov_b32 s{sSpin}, 0')
    em(f's_cmp_eq_u32 s{sIsRed}, 0')
    q.need(selop)
    q.now(*pend)
    stamp(em, 4, ph)
    if ph:
        em(f's_cmp_eq_u32 s{sIsRed}, 0')
    em('s_cbranch_scc1 CH_NORED')
    PD = LB[0]
    D = OF[1]
    NEG, m = T0, T1
    em(f'v_mov_b32 v{NEG}, -1')
    if OPT.get('ack'):
        em('s_waitcnt vmcnt(0)')
        if OPT.get('abs'):
            stamp(em, 7, ph)
    em.nops(OPT.get('d1', 0))
    if OPT.get('mp1'):
        MK = [86, 88, 90, 92] if not ph else [12, 14, 16, 18]
        tq = [S0, S0 + 1, S0 + 2, S0 + 3]

        def ld(n):
            em(f'buffer_load_dwordx4 {v(PD + 4 * n, 4)}, v{vPartLd}, {WSR}, s{sPart} offen offset:{1024 * n} sc1')

        def check(base):
            for n in range(4):
                em(f's_waitcnt vmcnt({base - n})')
                c = '0' if n == 0 else v(D, 4)
                em(f'{MF} {v(D, 4)}, {v(SEL, 4)}, {v(PD + 4 * n, 4)}, {c}')
                em(f'v_and_b32 v{tq[n]}, 1, v{PD + 4 * n}')
                em(f'v_cmp_ne_u32 {s(MK[n], 2)}, s{sTag}, v{tq[n]}')
            em(f's_or_b64 vcc, {s(MK[0], 2)}, {s(MK[1], 2)}')
            em(f's_or_b64 {s(34, 2)}, {s(MK[2], 2)}, {s(MK[3], 2)}')
            em(f's_or_b64 vcc, vcc, {s(34, 2)}')

        def reissue():
            for n in range(4):
                em(f's_mov_b64 exec, {s(MK[n], 2)}')
                ld(n)
            em('s_mov_b64 exec, -1')
        for n in range(4):
            ld(n)
        check(3)
        em('s_cbranch_scc1 CH_P1R')
        em.label('CH_P1OK')
        p1ool = (check, reissue)
    else:
        em.label('CH_POLL1')
        for n in range(4):
            em(f'buffer_load_dwordx4 {v(PD + 4 * n, 4)}, v{vPartLd}, {WSR}, s{sPart} offen offset:{1024 * n} sc1')
        em(f's_add_u32 s{sSpin}, s{sSpin}, 1')
        em(f's_cmp_gt_u32 s{sSpin}, {SPIN_LIMIT}')
        em('s_cbranch_scc1 ABORT')
        if ph and not OPT.get('ph2') and not OPT.get('abs'):
            em(f's_add_u32 s{sAcc + 7}, s{sAcc + 7}, 1')
        for n in range(4):
            em(f's_waitcnt vmcnt({3 - n})')
            c = '0' if n == 0 else v(D, 4)
            em(f'{MF} {v(D, 4)}, {v(SEL, 4)}, {v(PD + 4 * n, 4)}, {c}')
            if n == 0:
                em(f'v_xor_b32 v{m}, s{sTag}, v{PD}')
            else:
                em(f'v_bitop3_b32 v{m}, v{m}, v{PD + 4 * n}, s{sTag} bitop3:0xf6')
        em(f'v_and_b32 v{m}, 1, v{m}')
        em(f'v_cmp_ne_u32 vcc, 0, v{m}')
        em('s_cbranch_vccnz CH_POLL1')
    stamp(em, 5, ph)
    for i in range(4):
        em(f'v_add_f32_dpp v{D + i}, v{D + i}, v{D + i} row_ror:8 row_mask:0xf bank_mask:0xf')
    em(f'v_cvt_pk_bf16_f32 v{D}, v{D}, v{D + 1}')
    em(f'v_cvt_pk_bf16_f32 v{D + 1}, v{D + 2}, v{D + 3}')
    em(f'v_cndmask_b32 v{D}, v{D}, v{D + 1}, {s(sMaskHi8, 2)}')
    em(f'v_min_u32 v{D}, -2, v{D}')
    em(f'buffer_store_dword v{D}, v{vMemSt}, {WSR}, s{sMemWr} offen')
    em(f'buffer_store_dword v{NEG}, v{vMemSt}, {WSR}, s{sMemRst} offen')
    if hist:
        em(f's_mul_i32 s{sT0}, s{sT}, 10240')
        em(f's_add_u32 s{sT0}, s{sT0}, {WS_HIST}')
        em(f'buffer_store_dword v{D}, v{vMemSt}, {WSR}, s{sT0} offen')
    em.label('CH_RED_DONE')
    em('s_barrier')
    stamp(em, 6, ph)
    em(f's_mov_b32 s{sMemRd}, s{sMemWr}')
    em(f's_add_u32 s{sT}, s{sT}, 1')
    em(f's_add_u32 s{sS}, s{sS}, 1')
    em('s_branch CH_STEP')

    em.label('CH_NORED')
    em(f's_cmp_lg_u32 s{sW}, 3')
    em('s_cbranch_scc1 CH_RED_DONE')
    em(f's_lshl_b32 s{sT0}, s{sLayer}, 6')
    em(f's_add_u32 s{sT0}, s{sT0}, s{sS}')
    em(f'v_mov_b32 v{T0}, s{sT0}')
    em(f'v_mov_b32 v{T1}, 24')
    em(f'buffer_store_dword v{T0}, v{T1}, {WSR}, s{sFlag} offen sc1')
    if OPT.get('stl'):
        em('s_memrealtime s[96:97]')
        em(f's_lshl_b32 s98, s{sT}, 2')
        em(f's_lshl_b32 s99, s{sH}, 9')
        em('s_add_u32 s98, s98, s99')
        em(f's_add_u32 s98, s98, {WS_HIST + 0x1b0000}')
        em('s_waitcnt lgkmcnt(0)')
        em(f'v_mov_b32 v{T0}, s96')
        em(f'v_mov_b32 v{T1}, 0')
        em(f'buffer_store_dword v{T0}, v{T1}, {WSR}, s98 offen')
    em('s_branch CH_RED_DONE')
    for lab, lp in ool:
        kv_slow(em, lab, lp)
    if OPT.get('mp1'):
        check, reissue = p1ool
        em.label('CH_P1R')
        em.label('CH_P1L')
        reissue()
        em(f's_add_u32 s{sSpin}, s{sSpin}, 1')
        em(f's_cmp_gt_u32 s{sSpin}, {SPIN_LIMIT}')
        em('s_cbranch_scc1 ABORT')
        check(3)
        em('s_cbranch_scc1 CH_P1L')
        em('s_branch CH_P1OK')

    em.label('CH_LAYER_END')
    em(f's_add_u32 s{sLayer}, s{sLayer}, 1')
    em(f's_lshl_b32 s{sT0}, s{sLayer}, 6')
    em(f'v_mov_b32 v{T0}, s{sT0}')
    em(f'v_mov_b32 v{T1}, 24')
    em('s_waitcnt vmcnt(0) lgkmcnt(0)')
    em('s_barrier')
    em(f'buffer_store_dword v{T0}, v{T1}, {WSR}, s{sFlag} offen sc1')
    if OPT.get('tl'):
        em(f's_sub_u32 s{sT0}, s{sLayer}, 1')
        tl(em, 4, dyn=sT0)
    if stamps:
        em(f's_memtime {s(sTime + 2, 2)}')
        em('s_waitcnt lgkmcnt(0)')
        em(f's_sub_u32 s{sT0}, s{sTime + 2}, s{sTime}')
        em(f'v_mov_b32 v{T0}, s{sT0}')
        em(f's_lshl_b32 s{sT0}, s{sLayer}, 2')
        em(f's_add_u32 s{sT0}, s{sT0}, 4')
        em(f'v_mov_b32 v{T1}, s{sT0}')
        em(f'buffer_store_dword v{T0}, v{T1}, {s(SDBG, 4)}, 0 offen')
    em(f's_cmp_lt_u32 s{sLayer}, {nlayers}')
    em('s_cbranch_scc1 CH_LAYER')
    em('s_waitcnt vmcnt(0)')
    if ph:
        em(f's_lshl_b32 s{sT0}, s{sH}, 2')
        em(f's_add_u32 s{sT0}, s{sT0}, s{sW}')
        em(f's_lshl_b32 s{sT0}, s{sT0}, 5')
        em(f's_add_u32 s{sT0}, s{sT0}, {WS_HIST + 0x180000}')
        for i in range(NST):
            em(f'v_mov_b32 v{T0}, s{sAcc + i}')
            em(f'v_mov_b32 v{T1}, {4 * i}')
            em(f'buffer_store_dword v{T0}, v{T1}, {WSR}, s{sT0} offen')
        em('s_waitcnt vmcnt(0)')


KORD = [0, 4, 1, 5, 2, 6, 3, 7]
```

```python
S, DM, H, DH, M, SEG, NSEG, F = 2048, 640, 32, 128, 8, 32, 64, 1728
WS_BYTES = 268435456

WS_HFLAG = 0x0
WS_AWF = 0x1000
WS_HTF = 0x1400
WS_GTF = 0x2000
WS_UTF = 0x3000
WS_XTF = 0x3800
WS_AWC = 0x4000
WS_FLAG_BYTES = 0x8000
WS_MEMB = 0x10000
WS_MEMB0 = 0x20000
WS_PART = 0x80000
PART_SLOT = 327680
WS_STREAM = 0x200000
WS_HIST = 0x600000
WS_KM = 0x800000
WS_Q = 0x2000000
WS_K = 0x4000000
WS_V = 0x6000000

WS_H = 0x8000000
XB = 2048 * 640 * 2
WS_X1 = 0x8800000
WS_X2 = 0x9000000
WS_G = 0x9400000
WS_U = 0x9c00000
UB = 40 * 54 * 1024
WS_AP = 0xa400000
APB = 40960
assert WS_AP + 64 * 32 * APB <= WS_BYTES

WS_FRAG = 0x1800000
WS_W2S = 0xf400000
WS_ST = 0x120000
KA_X, KA_MEM0, KA_WQ, KA_WK, KA_WV, KA_WO, KA_SEGLEN, KA_BX, KA_W1, KA_B1, KA_W2, KA_B2, KA_OUT, KA_DBG, KA_WS = \
    [8 * i for i in range(15)]

L_MEM = 0
L_QX = 158720 - 139264
L_KX = L_QX + 2048
L_OX = 0
L_KS = 10240
L_SEL = 18432
L_W = 23552
LW_WAVE = 34816
LDS_BYTES = 163840
assert L_W + 4 * LW_WAVE <= LDS_BYTES
```

```python
import struct, math
from emit import *
from layout import *
import chain as C
from chain import stamp, sAcc, tl, Q, srd, WSR, SPIN_LIMIT, sSpin

MF = 'v_mfma_f32_16x16x32_bf16'
MF16 = 'v_mfma_f32_16x16x16_bf16'
SX, SWM, SW1, SW2, SB1, SB2, SOUT = 12, 16, 20, 24, 28, 40, 44
wR, sW, sLay = 48, 49, 50
t0, t1, t2, t3, t4, t5 = 51, 52, 53, 54, 55, 56
sIt, sNeed, sHd, sFl, sA, sB_, sC_, sD_ = 57, 58, 59, 60, 61, 62, 63, 64
sMLo32, sE_, sF_ = 66, 68, 70
sSeg, sMat = 71, 72
g1R, g2R = 73, 74
OPT = {}


def f32(x):
    return hex(struct.unpack('<I', struct.pack('<f', x))[0])


def wait_flags(em, soff, n, need, va, vb, sleep=4):
    lp = em.newlabel('WF')
    ok = em.newlabel('WFOK')
    em(f's_cmp_lg_u32 s{sW}, 0')
    em(f's_cbranch_scc1 {ok}')
    em(f'v_min_u32 v{va}, {n - 1}, v1')
    em(f'v_lshlrev_b32 v{va}, 2, v{va}')
    em(f's_mov_b32 s{sSpin}, 0')
    em.label(lp)
    em(f'buffer_load_dword v{vb}, v{va}, {WSR}, s{soff} offen sc1')
    em(f's_add_u32 s{sSpin}, s{sSpin}, 1')
    em(f's_cmp_gt_u32 s{sSpin}, {SPIN_LIMIT}')
    em('s_cbranch_scc1 ABORT')
    em('s_waitcnt vmcnt(0)')
    em(f'v_cmp_gt_u32 vcc, {need}, v{vb}')
    em(f's_cbranch_vccz {ok}')
    em(f's_sleep {sleep}')
    em(f's_branch {lp}')
    em.label(ok)
    em('s_barrier')


def publish(em, soff, val, va, vb):
    lab = em.newlabel('PUB')
    em.wait_all()
    em('s_barrier')
    em(f's_cmp_lg_u32 s{sW}, 0')
    em(f's_cbranch_scc1 {lab}')
    em(f'v_mov_b32 v{va}, 0')
    em(f'v_mov_b32 v{vb}, {val}')
    em(f'buffer_store_dword v{vb}, v{va}, {WSR}, s{soff} offen sc1')
    em.label(lab)


def rbf(em, dst, src):
    em(f'v_cvt_pk_bf16_f32 v{dst}, v{src}, v{src}')
    em(f'v_and_b32 v{dst}, 0xffff0000, v{dst}')


def xg_sum(em, a_, b_):
    em(f'v_mov_b32 v{b_}, v{a_}')
    em(f'v_permlane32_swap_b32 v{a_}, v{b_}')
    em(f'v_add_f32 v{a_}, v{a_}, v{b_}')
    em(f'v_mov_b32 v{b_}, v{a_}')
    em(f'v_permlane16_swap_b32 v{a_}, v{b_}')
    em(f'v_add_f32 v{a_}, v{a_}, v{b_}')


def xw_sum(em, a_, tmp4, vwr, vrd, off):
    em(f'ds_write_b32 v{vwr}, v{a_} offset:{off}')
    em('s_waitcnt lgkmcnt(0)')
    em('s_barrier')
    em(f'ds_read_b128 {v(tmp4, 4)}, v{vrd} offset:{off}')
    em('s_waitcnt lgkmcnt(0)')
    em(f'v_add_f32 v{a_}, v{tmp4}, v{tmp4 + 1}')
    em(f'v_add_f32 v{tmp4 + 2}, v{tmp4 + 2}, v{tmp4 + 3}')
    em(f'v_add_f32 v{a_}, v{a_}, v{tmp4 + 2}')


def ln_core(em, X, n, P, vwr, vrd, off, lane_sum, maskfix=None):
    a_, b_, T4, M_, R_ = P, P + 1, P + 2, P + 6, P + 8
    em(f'v_pk_add_f32 {v(a_, 2)}, {v(X, 2)}, {v(X + 2, 2)}')
    for i in range(4, n, 2):
        em(f'v_pk_add_f32 {v(a_, 2)}, {v(a_, 2)}, {v(X + i, 2)}')
    em(f'v_add_f32 v{a_}, v{a_}, v{b_}')
    lane_sum(a_, b_)
    xw_sum(em, a_, T4, vwr, vrd, off)
    em(f'v_mul_f32 v{M_}, {f32(-1.0 / DM)}, v{a_}')
    em(f'v_mov_b32 v{M_ + 1}, v{M_}')
    for i in range(0, n, 2):
        em(f'v_pk_add_f32 {v(X + i, 2)}, {v(X + i, 2)}, {v(M_, 2)}')
    if maskfix:
        maskfix()
    em(f'v_pk_mul_f32 {v(a_, 2)}, {v(X, 2)}, {v(X, 2)}')
    for i in range(2, n, 2):
        em(f'v_pk_fma_f32 {v(a_, 2)}, {v(X + i, 2)}, {v(X + i, 2)}, {v(a_, 2)}')
    em(f'v_add_f32 v{a_}, v{a_}, v{b_}')
    lane_sum(a_, b_)
    xw_sum(em, a_, T4, vwr, vrd, off + 256)
    em(f'v_mul_f32 v{a_}, {f32(1.0 / DM)}, v{a_}')
    rbf(em, a_, a_)
    em(f'v_add_f32 v{a_}, {f32(1e-5)}, v{a_}')
    rbf(em, a_, a_)
    em(f'v_sqrt_f32 v{a_}, v{a_}')
    rbf(em, b_, M_)
    rbf(em, a_, a_)
    em(f'v_rcp_f32 v{R_}, v{a_}')
    em(f'v_sub_f32 v{b_}, v{b_}, v{M_}')
    em(f'v_mov_b32 v{R_ + 1}, v{R_}')
    em(f'v_mul_f32 v{M_}, v{b_}, v{R_}')
    em(f'v_mov_b32 v{M_ + 1}, v{M_}')
    for i in range(0, n, 2):
        em(f'v_pk_fma_f32 {v(X + i, 2)}, {v(X + i, 2)}, {v(R_, 2)}, {v(M_, 2)}')
    if maskfix:
        maskfix()


def unpack(em, dst, src, n):
    for i in range(n):
        em(f'v_and_b32 v{dst + 2 * i + 1}, 0xffff0000, v{src + i}')
        em(f'v_lshlrev_b32 v{dst + 2 * i}, 16, v{src + i}')


vL, vL16 = 1, 2
vG = 3
WK = 4
ACCU = 104
W2R = 136
WQR = 352


def base_setup(em):
    em(f'v_and_b32 v{vL}, 63, v0')
    em(f'v_lshrrev_b32 v{vG}, 6, v0')
    em(f'v_lshlrev_b32 v{vL16}, 4, v{vL}')
    em(f'v_readfirstlane_b32 s{sW}, v{vG}')
    em(f'v_lshrrev_b32 v{vG}, 4, v{vL}')
    em(f's_mov_b32 s{sMLo32}, -1')
    em(f's_mov_b32 s{sMLo32 + 1}, 0')


def ln_tile(em, layer0):
    R, X, P, vwr, vrd, va = WK, WK + 20, WK + 60, WK + 70, WK + 71, WK + 72
    em(f'v_and_b32 v{vrd}, 15, v{vL}')
    if layer0:
        em(f'v_mul_u32_u24 v{va}, 1280, v{vrd}')
        em(f'v_lshl_add_u32 v{va}, v{vG}, 4, v{va}')
        em(f's_mul_i32 s{t0}, s{sIt}, {16 * 1280}')
        em(f's_mul_i32 s{t1}, s{sW}, 320')
        em(f's_add_u32 s{t0}, s{t0}, s{t1}')
        for i in range(5):
            em.vm(f'buffer_load_dwordx4 {v(R + 4 * i, 4)}, v{va}, {s(SX, 4)}, s{t0} offen offset:{64 * i}')
    else:
        em(f's_mul_i32 s{t0}, s{sIt}, 20480')
        em(f's_mul_i32 s{t1}, s{sW}, 5120')
        em(f's_add_u32 s{t0}, s{t0}, s{t1}')
        em(f's_add_u32 s{t0}, s{t0}, {WS_X2}')
        em(f's_add_u32 s{t1}, s{t0}, 4096')
        for i in range(5):
            so, o = (t0, 1024 * i) if i < 4 else (t1, 0)
            em.vm(f'buffer_load_dwordx4 {v(R + 4 * i, 4)}, v{vL16}, {WSR}, s{so} offen offset:{o} sc1')
    em(f'v_lshlrev_b32 v{vrd}, 4, v{vrd}')
    em(f's_lshl_b32 s{t2}, s{sW}, 2')
    em(f'v_add_u32 v{vwr}, s{t2}, v{vrd}')
    em.wait_all()
    unpack(em, X, R, 20)
    ln_core(em, X, 40, P, vwr, vrd, 0, lambda a_, b_: xg_sum(em, a_, b_))
    em(f's_mul_i32 s{t0}, s{sIt}, 20480')
    em(f's_mul_i32 s{t1}, s{sW}, 5120')
    em(f's_add_u32 s{t0}, s{t0}, s{t1}')
    em(f's_mul_i32 s{t1}, s{sLay}, {XB}')
    em(f's_add_u32 s{t0}, s{t0}, s{t1}')
    em(f's_add_u32 s{t0}, s{t0}, {WS_H}')
    em(f's_add_u32 s{t1}, s{t0}, 4096')
    for i in range(5):
        for k in range(4):
            em(f'v_cvt_pk_bf16_f32 v{R + 4 * i + k}, v{X + 8 * i + 2 * k}, v{X + 8 * i + 2 * k + 1}')
        so, o = (t0, 1024 * i) if i < 4 else (t1, 0)
        em.vm(f'buffer_store_dwordx4 {v(R + 4 * i, 4)}, v{vL16}, {WSR}, s{so} offen offset:{o} sc1')


def stage_rows128(em, sr, nrows, stride, soff, va):
    assert nrows % 32 == 0
    em(f'v_lshrrev_b32 v{va}, 3, v{vL}')
    em(f's_mov_b32 s{t2}, {stride}')
    em(f'v_mul_lo_u32 v{va}, v{va}, s{t2}')
    em(f'v_and_b32 v{va + 1}, 7, v{vL}')
    em(f'v_lshl_add_u32 v{va}, v{va + 1}, 4, v{va}')
    em(f's_mul_i32 s{t2}, s{sW}, {8 * stride}')
    em(f's_add_u32 s{t2}, s{t2}, s{soff}')
    em(f's_lshl_b32 s{t3}, s{sW}, 10')
    for i in range(nrows // 32):
        em(f's_add_u32 m0, s{t3}, {4096 * i}')
        if i:
            em(f's_add_u32 s{t2}, s{t2}, {32 * stride}')
        else:
            em('s_nop 0')
        em.vm(f'buffer_load_dwordx4 v{va}, {s(sr, 4)}, s{t2} offen lds')
    em.wait_all()
    em('s_barrier')


def gw_init(em):
    va, vt = WK, WK + 2
    em(f's_load_dwordx2 {s(t2, 2) if t2 % 2 == 0 else s(t3, 2)}, s[0:1], {KA_WK}')
    em(f's_load_dwordx2 {s(SWM, 2)}, s[0:1], {KA_WQ}')
    em(f's_load_dwordx2 {s(sD_, 2)}, s[0:1], {KA_WV}')
    em(f's_mov_b32 s{SWM + 2}, {DM * H * DH * 2}')
    em(f's_mov_b32 s{SWM + 3}, 0x20000')
    em(f's_lshr_b32 s{sMat}, s{wR}, 6')
    em('s_waitcnt lgkmcnt(0)')
    pk = t2 if t2 % 2 == 0 else t3
    em(f's_cmp_eq_u32 s{sMat}, 1')
    em(f's_cselect_b64 {s(SWM, 2)}, {s(pk, 2)}, {s(SWM, 2)}')
    em(f's_cmp_eq_u32 s{sMat}, 2')
    em(f's_cselect_b64 {s(SWM, 2)}, {s(sD_, 2)}, {s(SWM, 2)}')
    em(f's_and_b32 s{t0}, s{wR}, 63')
    em(f's_lshl_b32 s{t0}, s{t0}, 7')
    stage_rows128(em, SWM, 640, 8192, t0, va)
    em(f'v_bfe_u32 v{vt}, v{vL}, 2, 2')
    em(f'v_lshl_add_u32 v{vt}, v{vG}, 3, v{vt}')
    em(f'v_lshlrev_b32 v{vt}, 7, v{vt}')
    em(f'v_and_b32 v{vt + 1}, 3, v{vL}')
    em(f'v_lshl_add_u32 v{vt}, v{vt + 1}, 3, v{vt}')
    em(f's_and_b32 s{t0}, s{sW}, 1')
    em(f's_lshl_b32 s{t0}, s{t0}, 6')
    em(f'v_add_u32 v{vt}, s{t0}, v{vt}')
    em(f'v_add_u32 v{vt + 1}, {10 * 4096}, v{vt}')
    for ks in range(20):
        for ct in range(2):
            for jh in range(2):
                reg = WQR + (ks * 2 + ct) * 4 + 2 * jh
                b = vt if ks < 10 else vt + 1
                em.ds(f'ds_read_b64_tr_b16 {r(reg, 2)}, v{b} offset:{(ks % 10) * 4096 + jh * 512 + ct * 32}')
        if ks % 3 == 2:
            em('s_waitcnt lgkmcnt(0)')
    em.wait_all()
    em('s_barrier')


def w2_init(em):
    va, vt = WK, WK + 2
    em(f's_cmp_ge_u32 s{g2R}, 160')
    em('s_cbranch_scc1 GW_NOW2')
    em(f's_and_b32 s{t0}, s{g2R}, 31')
    em(f's_lshl_b32 s{t4}, s{t0}, 7')
    em(f'v_lshrrev_b32 v{vt}, 2, v{vL}')
    em(f'v_lshlrev_b32 v{vt}, 7, v{vt}')
    em(f'v_and_b32 v{vt + 1}, 3, v{vL}')
    em(f'v_lshl_add_u32 v{vt}, v{vt + 1}, 3, v{vt}')
    em(f's_lshl_b32 s{t0}, s{sW}, 5')
    em(f'v_add_u32 v{vt}, s{t0}, v{vt}')
    em(f'v_add_u32 v{vt + 1}, {14 * 4096}, v{vt}')
    for rnd in range(2):
        if rnd:
            em(f's_add_u32 s{t4}, s{t4}, {864 * 4096}')
        stage_rows128(em, SW2, 864, 4096, t4, va + 4)
        for k in range(27):
            for jh in range(2):
                reg = W2R + (27 * rnd + k) * 4 + 2 * jh
                b = vt if k < 14 else vt + 1
                em.ds(f'ds_read_b64_tr_b16 {r(reg, 2)}, v{b} offset:{(k % 14) * 4096 + jh * 2048}')
            if k % 6 == 5:
                em('s_waitcnt lgkmcnt(0)')
        em.wait_all()
        em('s_barrier')
    em.label('GW_NOW2')


def qkv_phase(em):
    ACC = WK
    HF = WK + 16
    ST = WK + 48
    va, vb, vrd = WK + 56, WK + 57, WK + 58
    sHs, sOut, sProg = sA, sB_, sC_
    em(f's_lshr_b32 s{t0}, s{sW}, 1')
    em(f's_mul_i32 s{t0}, s{t0}, 40960')
    em(f'v_add_u32 v{vrd}, s{t0}, v{vL16}')
    em(f'v_add_u32 v{vrd + 1}, 81920, v{vrd}')
    em(f's_mul_i32 s{sHs}, s{sLay}, {XB}')
    em(f's_mul_i32 s{t0}, s{sW}, 20480')
    em(f's_add_u32 s{sHs}, s{sHs}, s{t0}')
    em(f's_add_u32 s{sHs}, s{sHs}, {WS_H}')
    em(f's_lshl_b32 s{sOut}, s{sMat}, 25')
    em(f's_add_u32 s{sOut}, s{sOut}, {WS_Q}')
    em(f's_lshl_b32 s{t0}, s{sLay}, 24')
    em(f's_add_u32 s{sOut}, s{sOut}, s{t0}')
    em(f's_lshr_b32 s{t0}, s{sW}, 1')
    em(f's_lshl_b32 s{t0}, s{t0}, 18')
    em(f's_add_u32 s{sOut}, s{sOut}, s{t0}')
    em(f's_bfe_u32 s{t0}, s{wR}, 0x50001')
    em(f's_lshl_b32 s{t1}, s{t0}, 13')
    em(f's_add_u32 s{sOut}, s{sOut}, s{t1}')
    em(f's_lshl_b32 s{sProg}, s{t0}, 7')
    em(f's_and_b32 s{t0}, s{wR}, 1')
    em(f's_lshl_b32 s{t1}, s{sMat}, 1')
    em(f's_add_u32 s{t1}, s{t1}, s{t0}')
    em(f's_lshl_b32 s{t1}, s{t1}, 2')
    em(f's_add_u32 s{sProg}, s{sProg}, s{t1}')
    em(f's_add_u32 s{sProg}, s{sProg}, {WS_HFLAG}')
    em(f's_lshl_b32 s{t0}, s{t0}, 1')
    em(f's_and_b32 s{t1}, s{sW}, 1')
    em(f's_add_u32 s{t0}, s{t0}, s{t1}')
    em(f's_cmp_eq_u32 s{sMat}, 2')
    em(f's_cselect_b32 s{t1}, 11, 10')
    em(f's_movk_i32 s{sD_}, 4096')
    em(f's_cselect_b32 s{sD_}, 1024, s{sD_}')
    em(f's_lshl_b32 s{t0}, s{t0}, s{t1}')
    em(f's_add_u32 s{sOut}, s{sOut}, s{t0}')
    em(f's_add_u32 s{sE_}, s{sOut}, s{sD_}')
    em(f's_lshl_b32 s{sFl}, s{sLay}, 9')
    em(f's_add_u32 s{sFl}, s{sFl}, {WS_HTF}')
    em(f's_lshl_b32 s{sNeed}, s{sLay}, 6')
    em(f's_mul_i32 s{sF_}, s{sW}, 20480')

    def fetch(buf):
        wait_flags(em, sFl, 4, 1, va, vb)
        em(f's_add_u32 s{sFl}, s{sFl}, 16')
        for i in range(5):
            em(f's_add_u32 m0, s{sF_}, {buf * 81920 + 4096 * i}')
            em(f's_add_u32 s{t0}, s{sHs}, {4096 * i}')
            for k in range(4):
                em.vm(f'buffer_load_dwordx4 v{vL16}, {WSR}, s{t0} offen offset:{1024 * k} sc1 lds')
        em(f's_add_u32 s{sHs}, s{sHs}, 81920')

    fetch(0)
    em(f's_mov_b32 s{sIt}, 0')
    em.label('QKV_LOOP')
    for buf in range(2):
        em.wait_all()
        em('s_barrier')
        lab = em.newlabel('QKVP')
        em(f's_cmp_lg_u32 s{sW}, 0')
        em(f's_cbranch_scc1 {lab}')
        em(f'v_mov_b32 v{va}, 0')
        em(f'v_mov_b32 v{vb}, s{sNeed}')
        em(f'buffer_store_dword v{vb}, v{va}, {WSR}, s{sProg} offen sc1')
        em.label(lab)
        lab = em.newlabel('QKVN')
        if buf == 1:
            em(f's_cmp_eq_u32 s{sIt}, 30')
            em(f's_cbranch_scc1 {lab}')
        fetch(1 - buf)
        em.label(lab)
        em.forget()
        isv = em.newlabel('QKVV')
        join = em.newlabel('QKVJ')
        em(f's_cmp_eq_u32 s{sMat}, 2')
        em(f's_cbranch_scc1 {isv}')
        for vt_ in range(2):
            if vt_:
                em.label(isv)
                em.forget()
            tok = {}

            def rd(i):
                tt, ks = i & 1, i >> 1
                tok[i] = em.ds(f'ds_read_b128 {v(HF + 4 * (i % 8), 4)}, v{vrd + buf} offset:{tt * 20480 + ks * 1024}')
            for i in range(8):
                rd(i)
            for i in range(40):
                tt, ks = i & 1, i >> 1
                em.wait(l=tok[i])
                for ct in range(2):
                    acc = ACC + 4 * (2 * ct + tt)
                    wf = r(WQR + (ks * 2 + ct) * 4, 4)
                    hf = v(HF + 4 * (i % 8), 4)
                    c = '0' if ks == 0 else v(acc, 4)
                    em(f'{MF} {v(acc, 4)}, {wf}, {hf}, {c}' if vt_ == 0 else f'{MF} {v(acc, 4)}, {hf}, {wf}, {c}')
                if i + 8 < 40:
                    rd(i + 8)
            for o in range(2):
                for k in range(2):
                    acc = ACC + 4 * ((2 * k + o) if vt_ == 0 else (2 * o + k))
                    em(f'v_cvt_pk_bf16_f32 v{ST + 4 * o + 2 * k}, v{acc}, v{acc + 1}')
                    em(f'v_cvt_pk_bf16_f32 v{ST + 4 * o + 2 * k + 1}, v{acc + 2}, v{acc + 3}')
                em(f'buffer_store_dwordx4 {v(ST + 4 * o, 4)}, v{vL16}, {WSR}, s{sOut if o == 0 else sE_} offen sc1')
            if vt_ == 0:
                em(f's_branch {join}')
        em.label(join)
        em(f's_add_u32 s{sOut}, s{sOut}, {2 * 32 * 8192}')
        em(f's_add_u32 s{sE_}, s{sE_}, {2 * 32 * 8192}')
        em(f's_add_u32 s{sNeed}, s{sNeed}, 2')
    em(f's_add_u32 s{sIt}, s{sIt}, 2')
    em(f's_cmp_lt_u32 s{sIt}, 32')
    em('s_cbranch_scc1 QKV_LOOP')
    publish(em, sProg, f's{sNeed}', va, vb)


def red_task(em):
    LD = WK
    D = WK + 64
    AL, AH = WK + 76, WK + 80
    P = WK + 84
    va, vx, vg_, vwr, vrd, vf = WK + 94, WK + 95, WK + 96, WK + 97, WK + 98, WK + 99
    XR = LD
    em(f'v_and_b32 v{va}, 7, v{vL}')
    em(f'v_lshrrev_b32 v{vx}, 1, v{va}')
    em(f'v_and_b32 v{va}, 1, v{va}')
    em(f'v_lshlrev_b32 v{va}, 4, v{va}')
    em(f'v_mov_b32 v{vg_}, 0x3f80')
    em(f'v_lshlrev_b32 v{va}, v{va}, v{vg_}')
    em(f's_mov_b32 s{t0}, 0xff00ff00')
    em(f's_mov_b32 s{t1}, 0xff00ff00')
    assert t0 % 2 == 1
    em(f's_mov_b32 s{t2}, 0xff00ff00')
    for dd in range(4):
        em(f'v_cmp_eq_u32 vcc, {dd}, v{vx}')
        em(f'v_cndmask_b32 v{AL + dd}, 0, v{va}, vcc')
        em(f'v_cndmask_b32 v{AH + dd}, 0, v{AL + dd}, {s(t1, 2)}')
        em(f'v_cndmask_b32 v{AL + dd}, v{AL + dd}, 0, {s(t1, 2)}')
    em(f's_mov_b32 s{t0}, {APB}')
    em(f'v_mul_lo_u32 v{va}, v{vG}, s{t0}')
    em(f'v_and_b32 v{vx}, 15, v{vL}')
    em(f'v_lshl_add_u32 v{va}, v{vx}, 4, v{va}')
    em(f's_mul_i32 s{t3}, s{sSeg}, {32 * APB}')
    em(f's_mul_i32 s{t0}, s{sIt}, 5120')
    em(f's_add_u32 s{t3}, s{t3}, s{t0}')
    em(f's_mul_i32 s{t0}, s{sW}, 1280')
    em(f's_add_u32 s{t3}, s{t3}, s{t0}')
    em(f's_add_u32 s{t3}, s{t3}, {WS_AP}')
    em(f'v_and_b32 v{vrd}, 3, v{vL}')
    em(f'v_bfe_u32 v{vwr}, v{vL}, 2, 2')
    em(f'v_mul_u32_u24 v{vg_}, 1280, v{vrd}')
    em(f'v_lshl_add_u32 v{vg_}, v{vwr}, 4, v{vg_}')
    em(f'v_lshlrev_b32 v{vf}, 8, v{vwr}')
    em(f'v_lshl_add_u32 v{vf}, v{vrd}, 4, v{vf}')
    em(f'v_and_b32 v{vx}, 1, v{vG}')
    em(f'v_lshl_add_u32 v{vg_}, v{vx}, 3, v{vg_}')
    em(f'v_lshl_add_u32 v{vf}, v{vx}, 3, v{vf}')
    em(f'v_lshrrev_b32 v{vx}, 1, v{vG}')
    em(f'v_lshl_add_u32 v{vg_}, v{vx}, 6, v{vg_}')
    em(f'v_lshl_add_u32 v{vf}, v{vx}, 10, v{vf}')
    em(f'v_lshlrev_b32 v{vrd}, 4, v{vrd}')
    em(f's_lshl_b32 s{t0}, s{sW}, 2')
    em(f'v_add_u32 v{vwr}, s{t0}, v{vrd}')
    em(f's_lshl_b32 s{t0}, s{sSeg}, 3')
    em(f's_add_u32 s{t0}, s{t0}, s{sIt}')
    em(f's_mul_i32 s{t4}, s{t0}, 5120')
    em(f's_mul_i32 s{t5}, s{sW}, 320')
    em(f's_add_u32 s{t4}, s{t4}, s{t5}')
    em(f's_lshr_b32 s{t5}, s{t0}, 2')
    em(f's_mul_i32 s{t5}, s{t5}, 20480')
    em(f's_and_b32 s{t0}, s{t0}, 3')
    em(f's_lshl_b32 s{t0}, s{t0}, 6')
    em(f's_add_u32 s{t5}, s{t5}, s{t0}')
    em(f's_mul_i32 s{t0}, s{sW}, 5120')
    em(f's_add_u32 s{t5}, s{t5}, s{t0}')
    em(f's_lshl_b32 s{sFl}, s{sLay}, 6')
    em(f's_add_u32 s{sFl}, s{sFl}, s{sSeg}')
    em(f's_lshl_b32 s{sFl}, s{sFl}, 7')
    em(f's_add_u32 s{sFl}, s{sFl}, {WS_AWC}')
    wait_flags(em, sFl, 1, 32, P, P + 1)
    tok = {}

    def ld(i):
        n, u = divmod(i, 5)
        if u == 0:
            em(f's_add_u32 s{sA}, s{t3}, {4 * n * APB}')
        tok[i] = em.vm(f'buffer_load_dwordx4 {v(LD + 4 * (i % 16), 4)}, v{va}, {WSR}, s{sA} offen offset:{256 * u} sc1')
    for i in range(16):
        ld(i)
    for i in range(40):
        n, u = divmod(i, 5)
        em.wait(v=tok[i])
        d = D + 4 * (u >> 1)
        c = '0' if (n == 0 and u % 2 == 0) else v(d, 4)
        em(f'{MF} {v(d, 4)}, {v(AH if u & 1 else AL, 4)}, {v(LD + 4 * (i % 16), 4)}, {c}')
        if i + 16 < 40:
            ld(i + 16)
    big = P + 2
    em(f'v_mov_b32 v{big}, 0x40000000')
    em(f'v_cndmask_b32 v{va}, v{big}, v{vg_}, {s(sMLo32, 2)}')
    em(f'v_cndmask_b32 v{vx}, v{big}, v{vf}, {s(sMLo32, 2)}')
    l1 = em.newlabel('REDL1')
    j1 = em.newlabel('REDJ')
    em(f's_cmp_lg_u32 s{sLay}, 0')
    em(f's_cbranch_scc1 {l1}')
    for k in range(3):
        em(f'buffer_load_dwordx2 {v(XR + 2 * k, 2)}, v{vg_ if k < 2 else va}, {s(SX, 4)}, s{t4} offen offset:{128 * k}')
    em(f's_branch {j1}')
    em.label(l1)
    em(f's_add_u32 s{t0}, s{t5}, {WS_X2}')
    em(f's_add_u32 s{sA}, s{t0}, 4096')
    for k in range(3):
        em(f'buffer_load_dwordx2 {v(XR + 2 * k, 2)}, v{vf if k < 2 else vx}, {WSR}, s{t0 if k < 2 else sA} offen offset:{2048 * k if k < 2 else 0} sc1')
    em.label(j1)
    X = LD + 8
    PK = LD + 20
    for k in range(6):
        em(f'v_cvt_pk_bf16_f32 v{PK + k}, v{D + 2 * k}, v{D + 2 * k + 1}')
    unpack(em, D, PK, 6)
    em.wait_all()
    unpack(em, X, XR, 6)
    for k in range(0, 12, 2):
        em(f'v_pk_add_f32 {v(X + k, 2)}, {v(X + k, 2)}, {v(D + k, 2)}')
    for k in range(6):
        em(f'v_cvt_pk_bf16_f32 v{PK + k}, v{X + 2 * k}, v{X + 2 * k + 1}')
    em(f's_mul_i32 s{t0}, s{sLay}, {XB}')
    em(f's_add_u32 s{sA}, s{t0}, s{t5}')
    em(f's_add_u32 s{sA}, s{sA}, {WS_X1}')
    em(f's_add_u32 s{sB_}, s{sA}, 4096')
    em(f's_add_u32 s{t4}, s{t4}, s{t0}')
    em(f's_add_u32 s{t4}, s{t4}, {WS_G}')
    for k in range(3):
        em(f'buffer_store_dwordx2 {v(PK + 2 * k, 2)}, v{vf if k < 2 else vx}, {WSR}, s{sA if k < 2 else sB_} offen offset:{2048 * k if k < 2 else 0} sc1')

    def lane_sum(a_, b_):
        em(f'v_add_f32_dpp v{a_}, v{a_}, v{a_} row_ror:4 row_mask:0xf bank_mask:0xf')
        em(f'v_add_f32_dpp v{a_}, v{a_}, v{a_} row_ror:8 row_mask:0xf bank_mask:0xf')
        xg_sum(em, a_, b_)

    def maskfix():
        for k in range(8, 12):
            em(f'v_cndmask_b32 v{X + k}, 0, v{X + k}, {s(sMLo32, 2)}')
    unpack(em, X, PK, 6)
    ln_core(em, X, 12, P, vwr, vrd, 0, lane_sum, maskfix)
    PK2 = LD + 26
    for k in range(6):
        em(f'v_cvt_pk_bf16_f32 v{PK2 + k}, v{X + 2 * k}, v{X + 2 * k + 1}')
    unpack(em, X, PK2, 6)
    ln_core(em, X, 12, P, vwr, vrd, 512, lane_sum, maskfix)
    for k in range(6):
        em(f'v_cvt_pk_bf16_f32 v{PK2 + k}, v{X + 2 * k}, v{X + 2 * k + 1}')
    for k in range(3):
        em(f'buffer_store_dwordx2 {v(PK2 + 2 * k, 2)}, v{vg_ if k < 2 else va}, {WSR}, s{t4} offen offset:{128 * k} sc1')
    em(f's_lshl_b32 s{t0}, s{sLay}, 11')
    em(f's_lshl_b32 s{t1}, s{sSeg}, 5')
    em(f's_add_u32 s{t0}, s{t0}, s{t1}')
    em(f's_lshl_b32 s{t1}, s{sIt}, 2')
    em(f's_add_u32 s{t0}, s{t0}, s{t1}')
    em(f's_add_u32 s{t0}, s{t0}, {WS_GTF}')
    publish(em, t0, 1, P, P + 1)


L_G1G, L_G1W = 1024, 1024 + 32768


def g1_chunk(em):
    va, vb, vga, vwa = WK, WK + 1, WK + 2, WK + 4
    GF, WF = WK + 8, WK + 40
    em(f's_mul_i32 s{t4}, s{g1R}, 9710')
    em(f's_lshr_b32 s{t4}, s{t4}, 18')
    em(f's_mul_i32 s{t0}, s{t4}, 27')
    em(f's_sub_u32 s{t5}, s{g1R}, s{t0}')
    em(f'v_lshrrev_b32 v{va}, 3, v{vL}')
    em(f'v_bfe_u32 v{vb}, v{vL}, 4, 1')
    em(f'v_lshlrev_b32 v{vb}, 1, v{vb}')
    em(f's_and_b32 s{t0}, s{sW}, 1')
    em(f's_lshl_b32 s{t0}, s{t0}, 2')
    em(f'v_or_b32 v{vb}, s{t0}, v{vb}')
    em(f'v_and_b32 v{vga}, 7, v{vL}')
    em(f'v_xor_b32 v{vb}, v{vb}, v{vga}')
    em(f'v_mul_u32_u24 v{va}, 3456, v{va}')
    em(f'v_lshl_add_u32 v{va}, v{vb}, 4, v{va}')
    em(f's_lshr_b32 s{t0}, s{sSeg}, 2')
    em(f's_mul_i32 s{t1}, s{t0}, {128 * 3456}')
    em(f's_mul_i32 s{t2}, s{sW}, {8 * 3456}')
    em(f's_add_u32 s{t1}, s{t1}, s{t2}')
    em(f's_lshl_b32 s{t2}, s{t5}, 7')
    em(f's_add_u32 s{t1}, s{t1}, s{t2}')
    em(f's_lshl_b32 s{t3}, s{sW}, 10')
    for i in range(4):
        em(f's_add_u32 m0, s{t3}, {L_G1W + 4096 * i}')
        em(f's_add_u32 s{t2}, s{t1}, {32 * 3456 * i}')
        em.vm(f'buffer_load_dwordx4 v{va}, {s(SW1, 4)}, s{t2} offen lds')
    em(f'v_lshlrev_b32 v{vb}, 2, v{vG}')
    em(f'v_and_b32 v{va}, 15, v{vL}')
    em(f'v_xor_b32 v{vb}, v{vb}, v{va}')
    em(f'v_mul_u32_u24 v{va}, 1280, v{vG}')
    em(f'v_lshl_add_u32 v{va}, v{vb}, 4, v{va}')
    em(f's_mul_i32 s{t1}, s{t0}, {128 * 1280}')
    em(f's_mul_i32 s{t2}, s{sW}, {4 * 1280}')
    em(f's_add_u32 s{t1}, s{t1}, s{t2}')
    em(f's_lshl_b32 s{t2}, s{t4}, 8')
    em(f's_add_u32 s{t1}, s{t1}, s{t2}')
    em(f's_mul_i32 s{t2}, s{sLay}, {XB}')
    em(f's_add_u32 s{t1}, s{t1}, s{t2}')
    em(f's_add_u32 s{t1}, s{t1}, {WS_G}')
    em(f's_lshl_b32 s{sFl}, s{sLay}, 11')
    em(f's_lshl_b32 s{t0}, s{t0}, 7')
    em(f's_add_u32 s{sFl}, s{sFl}, s{t0}')
    em(f's_add_u32 s{sFl}, s{sFl}, {WS_GTF}')
    wait_flags(em, sFl, 32, 1, vga, vga + 1, sleep=6)
    for i in range(8):
        em(f's_add_u32 m0, s{t3}, {L_G1G + 4096 * i}')
        em(f's_add_u32 s{t2}, s{t1}, {16 * 1280 * i}')
        em.vm(f'buffer_load_dwordx4 v{va}, {WSR}, s{t2} offen sc1 lds')
    em(f'v_bfe_u32 v{vb}, v{vL}, 2, 2')
    em(f'v_lshl_add_u32 v{va}, v{vG}, 3, v{vb}')
    em(f's_and_b32 s{t0}, s{sW}, 1')
    em(f's_lshl_b32 s{t0}, s{t0}, 1')
    for i in range(2):
        em(f's_add_u32 s{t1}, s{t0}, {i}')
        em(f'v_xor_b32 v{vga + i}, s{t1}, v{vb}')
        em(f'v_lshlrev_b32 v{vga + i}, 6, v{vga + i}')
        em(f'v_lshl_add_u32 v{vga + i}, v{va}, 8, v{vga + i}')
        em(f'v_and_b32 v{vwa}, 3, v{vL}')
        em(f'v_lshl_add_u32 v{vga + i}, v{vwa}, 4, v{vga + i}')
    em(f'v_lshrrev_b32 v{vb}, 1, v{vb}')
    em(f'v_and_b32 v{vwa + 1}, 1, v{vG}')
    em(f'v_lshl_add_u32 v{vb}, v{vwa + 1}, 1, v{vb}')
    em(f'v_lshlrev_b32 v{va}, 7, v{va}')
    em(f'v_lshl_add_u32 v{va}, v{vwa}, 3, v{va}')
    em(f's_lshr_b32 s{t0}, s{sW}, 1')
    em(f's_lshl_b32 s{t0}, s{t0}, 1')
    for i in range(2):
        em(f's_add_u32 s{t1}, s{t0}, {i}')
        em(f'v_xor_b32 v{vwa + i}, s{t1}, v{vb}')
        em(f'v_lshl_add_u32 v{vwa + i}, v{vwa + i}, 5, v{va}')
    em.wait_all()
    em('s_barrier')
    toks = {}

    def rd(ks):
        b = ks & 1
        for t in range(2):
            for jh in range(2):
                em.ds(f'ds_read_b64_tr_b16 {v(WF + 8 * b + 4 * t + 2 * jh, 2)}, v{vwa + t} offset:{L_G1W + ks * 4096 + jh * 512}')
        for dt in range(4):
            for jh in range(2):
                toks[ks] = em.ds(f'ds_read_b64_tr_b16 {v(GF + 16 * b + 4 * dt + 2 * jh, 2)}, v{vga + (dt >> 1)} offset:{L_G1G + ks * 8192 + jh * 1024 + 8 * (dt & 1)}')
    rd(0)
    for ks in range(4):
        em.wait(l=toks[ks])
        if ks < 3:
            rd(ks + 1)
        b = ks & 1
        for t in range(2):
            for dt in range(4):
                acc = ACCU + 4 * (4 * t + dt)
                em(f'{MF} {v(acc, 4)}, {v(WF + 8 * b + 4 * t, 4)}, {v(GF + 16 * b + 4 * dt, 4)}, {v(acc, 4)}')
    em('s_barrier')


def g1_final(em):
    va, BI, E, ST = WK, WK + 2, WK + 16, WK + 24
    em(f's_mul_i32 s{t4}, s{g1R}, 9710')
    em(f's_lshr_b32 s{t4}, s{t4}, 18')
    em(f's_mul_i32 s{t0}, s{t4}, 27')
    em(f's_sub_u32 s{t5}, s{g1R}, s{t0}')
    em(f's_lshr_b32 s{t0}, s{sW}, 1')
    em(f's_lshl_b32 s{t1}, s{t5}, 1')
    em(f's_add_u32 s{t1}, s{t1}, s{t0}')
    em(f's_lshl_b32 s{t2}, s{t1}, 6')
    em(f'v_lshlrev_b32 v{va}, 3, v{vG}')
    em(f'buffer_load_dwordx2 {v(BI, 2)}, v{va}, {s(SB1, 4)}, s{t2} offen')
    em(f'buffer_load_dwordx2 {v(BI + 2, 2)}, v{va}, {s(SB1, 4)}, s{t2} offen offset:32')
    em(f's_and_b32 s{t0}, s{sW}, 1')
    em(f's_lshl_b32 s{t0}, s{t0}, 2')
    em(f's_lshl_b32 s{t3}, s{t4}, 3')
    em(f's_add_u32 s{t0}, s{t0}, s{t3}')
    em(f's_mul_i32 s{t0}, s{t0}, 54')
    em(f's_add_u32 s{t0}, s{t0}, s{t1}')
    em(f's_lshl_b32 s{t0}, s{t0}, 10')
    em(f's_mul_i32 s{t1}, s{sLay}, {UB}')
    em(f's_add_u32 s{t0}, s{t0}, s{t1}')
    em(f's_add_u32 s{t0}, s{t0}, {WS_U}')
    k0 = -2.0 * math.sqrt(2.0 / math.pi) * math.log2(math.e)
    em(f's_mov_b32 s{t2}, {f32(k0 * 0.044715)}')
    em(f'v_mov_b32 v{va + 1}, {f32(k0)}')
    em('s_waitcnt vmcnt(0)')
    unpack(em, BI + 4, BI, 4)
    for dt in range(4):
        for t in range(2):
            acc = ACCU + 4 * (4 * t + dt)
            xs = [acc + i for i in range(4)]
            for i in range(4):
                rbf(em, xs[i], xs[i])
            for i in range(4):
                em(f'v_add_f32 v{xs[i]}, v{xs[i]}, v{BI + 4 + 4 * t + i}')
            for i in range(4):
                rbf(em, xs[i], xs[i])
            for i in range(4):
                em(f'v_mul_f32 v{E + i}, v{xs[i]}, v{xs[i]}')
            for i in range(4):
                em(f'v_fma_f32 v{E + i}, v{E + i}, s{t2}, v{va + 1}')
            for i in range(4):
                em(f'v_mul_f32 v{E + i}, v{E + i}, v{xs[i]}')
            for i in range(4):
                em(f'v_exp_f32 v{E + i}, v{E + i}')
            for i in range(4):
                em(f'v_add_f32 v{E + i}, 1.0, v{E + i}')
            for i in range(4):
                em(f'v_rcp_f32 v{E + i}, v{E + i}')
            for i in range(4):
                em(f'v_mul_f32 v{E + i}, v{E + i}, v{xs[i]}')
            st = ST + 4 * (dt & 1) + 2 * t
            em(f'v_cvt_pk_bf16_f32 v{st}, v{E}, v{E + 1}')
            em(f'v_cvt_pk_bf16_f32 v{st + 1}, v{E + 2}, v{E + 3}')
        em(f'buffer_store_dwordx4 {v(ST + 4 * (dt & 1), 4)}, v{vL16}, {WSR}, s{t0} offen sc1')
        em(f's_add_u32 s{t0}, s{t0}, {54 * 1024}')
    em(f's_mul_i32 s{t0}, s{sLay}, 640')
    em(f's_lshl_b32 s{t1}, s{t4}, 7')
    em(f's_add_u32 s{t0}, s{t0}, s{t1}')
    em(f's_lshl_b32 s{t1}, s{t5}, 2')
    em(f's_add_u32 s{t0}, s{t0}, s{t1}')
    em(f's_add_u32 s{t0}, s{t0}, {WS_UTF}')
    publish(em, t0, 1, va, va + 1)


def g2_phase(em):
    va, vb, vo = WK, WK + 1, WK + 2
    UF = WK + 4
    XR = WK + 68
    E = WK + 84
    B2 = WK + 92
    em(f's_and_b32 s{t4}, s{g2R}, 31')
    em(f's_lshr_b32 s{t5}, s{g2R}, 5')
    em(f'v_and_b32 v{va}, 15, v{vL}')
    em(f'v_lshlrev_b32 v{vb}, 1, v{va}')
    em(f's_lshl_b32 s{t0}, s{t4}, 2')
    em(f's_add_u32 s{t0}, s{t0}, s{sW}')
    em(f's_lshl_b32 s{t1}, s{t0}, 5')
    em.vm(f'buffer_load_ushort v{B2}, v{vb}, {s(SB2, 4)}, s{t1} offen')
    em(f's_mul_i32 s{sE_}, s{t0}, 20480')
    em(f's_lshl_b32 s{t1}, s{t5}, 12')
    em(f's_add_u32 s{sE_}, s{sE_}, s{t1}')
    em(f'v_mul_u32_u24 v{vo}, 1280, v{va}')
    em(f'v_lshl_add_u32 v{vo}, v{vG}, 4, v{vo}')
    em(f's_mul_i32 s{sF_}, s{t0}, {16 * 1280}')
    em(f's_lshl_b32 s{t1}, s{t5}, 8')
    em(f's_add_u32 s{sF_}, s{sF_}, s{t1}')
    em(f's_lshl_b32 s{t0}, s{t5}, 3')
    em(f's_lshl_b32 s{t1}, s{sW}, 1')
    em(f's_add_u32 s{t0}, s{t0}, s{t1}')
    em(f's_mul_i32 s{sA}, s{t0}, {54 * 1024}')
    em(f's_mul_i32 s{t1}, s{sLay}, {UB}')
    em(f's_add_u32 s{sA}, s{sA}, s{t1}')
    em(f's_add_u32 s{sA}, s{sA}, {WS_U}')
    em(f's_mul_i32 s{t3}, s{sW}, 12288')
    em(f's_mul_i32 s{sFl}, s{sLay}, 640')
    em(f's_lshl_b32 s{t1}, s{t5}, 7')
    em(f's_add_u32 s{sFl}, s{sFl}, s{t1}')
    em(f's_add_u32 s{sFl}, s{sFl}, {WS_UTF}')
    em(f'v_add_u32 v{vb}, 49152, v{vL16}')
    em(f'v_add_u32 v{vo + 1}, 98304, v{vL16}')
    RB = [vL16, vb, vo + 1]
    wait_flags(em, sFl, 27, 1, E, E + 1, sleep=1)
    em(f's_mul_i32 s{t1}, s{sLay}, {XB}')
    em(f's_add_u32 s{t1}, s{t1}, s{sE_}')
    em(f's_add_u32 s{t1}, s{t1}, {WS_X1}')
    for p in range(4):
        em.vm(f'buffer_load_dwordx4 {v(XR + 4 * p, 4)}, v{vL16}, {WSR}, s{t1} offen offset:{1024 * p} sc1')
    tl(em, 6, dyn=sLay, va=E, vb=E + 1)
    ct = {}

    def fetch(c):
        for t in range(2):
            for hf in range(2):
                em(f's_add_u32 m0, s{t3}, {(c % 3) * 49152 + t * 6144 + hf * 3072}')
                em(f's_add_u32 s{t1}, s{sA}, {t * 54 * 1024 + c * 6144 + hf * 3072}')
                for k in range(3):
                    ct[c] = em.vm(f'buffer_load_dwordx4 v{vL16}, {WSR}, s{t1} offen offset:{1024 * k} sc1 lds')
    fetch(0)
    fetch(1)
    for c in range(9):
        em.wait(v=ct[c])
        em('s_barrier')
        if c + 2 < 9:
            fetch(c + 2)
        tok = {}

        def rd(i):
            k, dt = divmod(i, 8)
            tok[i] = em.ds(f'ds_read_b128 {v(UF + 4 * (i % 16), 4)}, v{RB[c % 3]} offset:{dt * 6144 + k * 1024}')
        for i in range(12):
            rd(i)
        for i in range(48):
            k, dt = divmod(i, 8)
            if i % 2 == 0:
                em.wait(l=tok[i + 1])
            acc = ACCU + 4 * dt
            cc = '0' if (c == 0 and k == 0) else v(acc, 4)
            em(f'{MF} {v(acc, 4)}, {v(UF + 4 * (i % 16), 4)}, {r(W2R + 4 * (6 * c + k), 4)}, {cc}')
            if i + 12 < 48:
                rd(i + 12)
    em.wait_all()
    em(f'v_lshlrev_b32 v{B2}, 16, v{B2}')
    em(f'v_mov_b32 v{B2 + 1}, v{B2}')
    em(f's_add_u32 s{t1}, s{sE_}, {WS_X2}')
    l1 = em.newlabel('G2L1')
    for p in range(4):
        acc = ACCU + 8 * p
        for k in range(4):
            em(f'v_cvt_pk_bf16_f32 v{UF + k}, v{acc + 2 * k}, v{acc + 2 * k + 1}')
        unpack(em, acc, UF, 4)
        for k in range(0, 8, 2):
            em(f'v_pk_add_f32 {v(acc + k, 2)}, {v(acc + k, 2)}, {v(B2, 2)}')
        for k in range(4):
            em(f'v_cvt_pk_bf16_f32 v{UF + k}, v{acc + 2 * k}, v{acc + 2 * k + 1}')
        unpack(em, acc, UF, 4)
        unpack(em, E, XR + 4 * p, 4)
        for k in range(0, 8, 2):
            em(f'v_pk_add_f32 {v(acc + k, 2)}, {v(acc + k, 2)}, {v(E + k, 2)}')
        for k in range(4):
            em(f'v_cvt_pk_bf16_f32 v{XR + 4 * p + k}, v{acc + 2 * k}, v{acc + 2 * k + 1}')
    em(f's_cmp_lg_u32 s{sLay}, 0')
    em(f's_cbranch_scc1 {l1}')
    for p in range(4):
        em(f'buffer_store_dwordx4 {v(XR + 4 * p, 4)}, v{vL16}, {WSR}, s{t1} offen offset:{1024 * p} sc1')
    em(f's_lshl_b32 s{t0}, s{t4}, 5')
    em(f's_lshl_b32 s{t1}, s{t5}, 2')
    em(f's_add_u32 s{t0}, s{t0}, s{t1}')
    em(f's_add_u32 s{t0}, s{t0}, {WS_XTF}')
    publish(em, t0, 1, va, vb)
    em('s_branch G2_DONE')
    em.label(l1)
    for p in range(4):
        em(f'buffer_store_dwordx4 {v(XR + 4 * p, 4)}, v{vo}, {s(SOUT, 4)}, s{sF_} offen offset:{64 * p}')
    em.label('G2_DONE')


def ht_flag(em):
    em(f's_lshl_b32 s{t0}, s{sLay}, 9')
    em(f's_lshl_b32 s{t1}, s{sIt}, 2')
    em(f's_add_u32 s{t0}, s{t0}, s{t1}')
    em(f's_add_u32 s{t0}, s{t0}, {WS_HTF}')
    publish(em, t0, 1, WK, WK + 1)


def gw_main(em, arrive, wait_start):
    for d, ka, nb in ((SX, KA_X, XB), (SW1, KA_W1, S * F * 2), (SW2, KA_W2, S * F * 2), (SB1, KA_B1, F * 2),
                      (SB2, KA_B2, S * 2), (SOUT, KA_OUT, XB)):
        srd(em, d, ka, nb)
    base_setup(em)
    em(f's_mov_b32 s{sLay}, 0')
    em('s_waitcnt lgkmcnt(0)')
    em(f's_sub_u32 s{t0}, s{wR}, 128')
    em(f's_cmp_ge_u32 s{t0}, {WS_FLAG_BYTES // 1024}')
    em('s_cbranch_scc1 GW_NOZ')
    em(f's_lshl_b32 s{t0}, s{t0}, 10')
    em(f'v_lshlrev_b32 v{WK}, 2, v0')
    em(f'v_mov_b32 v{WK + 1}, 0')
    em(f'buffer_store_dword v{WK + 1}, v{WK}, {WSR}, s{t0} offen sc1')
    em.label('GW_NOZ')
    arrive(em)
    em(f's_mov_b32 s{sIt}, s{wR}')
    em(f's_cmp_ge_u32 s{wR}, 128')
    em('s_cbranch_scc1 GW_NOLN')
    ln_tile(em, True)
    wait_start(em)
    ht_flag(em)
    em('s_barrier')
    em.label('GW_NOLN')
    tl(em, 1)
    gw_init(em)
    wait_start(em)
    em.label('GW_LAYER')
    tl(em, 2, dyn=sLay)
    qkv_phase(em)
    tl(em, 3, dyn=sLay)
    em(f's_cmp_lg_u32 s{sLay}, 0')
    em('s_cbranch_scc1 GW_NOW2')
    em('s_barrier')
    w2_init(em)
    for i in range(0, 32, 2):
        em(f'v_mov_b64 {v(ACCU + i, 2)}, 0')
    em(f's_mov_b32 s{sSeg}, 0')
    em.label('GW_SEG')
    em(f's_mul_i32 s{t0}, s{sSeg}, 43')
    em(f's_lshr_b32 s{t0}, s{t0}, 10')
    em(f's_mul_i32 s{t0}, s{t0}, 24')
    em(f's_sub_u32 s{t0}, s{sSeg}, s{t0}')
    em(f's_lshr_b32 s{t1}, s{wR}, 3')
    em(f's_cmp_lg_u32 s{t0}, s{t1}')
    em('s_cbranch_scc1 GW_NORED')
    em(f's_and_b32 s{sIt}, s{wR}, 7')
    red_task(em)
    tl(em, 8, dyn=sLay)
    em('s_barrier')
    em.label('GW_NORED')
    em(f's_and_b32 s{t0}, s{sSeg}, 3')
    em(f's_cmp_lg_u32 s{t0}, 3')
    em('s_cbranch_scc1 GW_NOG1')
    em(f's_cmp_ge_u32 s{g1R}, 135')
    em('s_cbranch_scc1 GW_NOG1')
    g1_chunk(em)
    em.label('GW_NOG1')
    em(f's_add_u32 s{sSeg}, s{sSeg}, 1')
    em(f's_cmp_lt_u32 s{sSeg}, 64')
    em('s_cbranch_scc1 GW_SEG')
    tl(em, 4, dyn=sLay)
    em(f's_cmp_ge_u32 s{g1R}, 135')
    em('s_cbranch_scc1 GW_NOG1F')
    g1_final(em)
    em.label('GW_NOG1F')
    tl(em, 5, dyn=sLay)
    em(f's_cmp_ge_u32 s{g2R}, 160')
    em('s_cbranch_scc1 G2_DONE')
    g2_phase(em)
    tl(em, 7, dyn=sLay)
    em(f's_cmp_lg_u32 s{sLay}, 0')
    em('s_cbranch_scc1 DONE')
    if C.OPT.get('l1'):
        em('s_branch DONE')
    em(f's_mov_b32 s{sLay}, 1')
    em(f's_sub_u32 s{sIt}, 191, s{wR}')
    em(f's_cmp_ge_u32 s{sIt}, 128')
    em('s_cbranch_scc1 GW_LAYER')
    em(f's_lshr_b32 s{t0}, s{sIt}, 2')
    em(f's_lshl_b32 s{t0}, s{t0}, 5')
    em(f's_add_u32 s{sFl}, s{t0}, {WS_XTF}')
    em('s_barrier')
    wait_flags(em, sFl, 5, 1, WK, WK + 1, sleep=1)
    ln_tile(em, False)
    ht_flag(em)
    em('s_barrier')
    em('s_branch GW_LAYER')


WOR = 192
AWB = 32768


def aw_main(em, arrive, wait_start):
    srd(em, SWM, KA_WO, DM * H * DH * 2)
    base_setup(em)
    em(f's_sub_u32 s{sHd}, s{wR}, 192')
    arrive(em)
    em('s_waitcnt lgkmcnt(0)')
    vt, vq, vkm, vvm, vst = 4, 6, 7, 8, 9
    MSK = 12
    ONES = 24
    CC = 28
    KF, QF, KMF = 32, 64, 80
    SC = 96
    A_ = 108
    P01, PM, SUM = 112, 116, 120
    VF, VMF = 32, 64
    O = 124
    OFR = 80
    WA = 156
    ST = 96
    em(f'v_lshrrev_b32 v{vt}, 2, v{vL}')
    em(f'v_mul_u32_u24 v{vt}, 1280, v{vt}')
    em(f'v_and_b32 v{vt + 1}, 3, v{vL}')
    em(f'v_lshl_add_u32 v{vt}, v{vt + 1}, 4, v{vt}')
    em(f's_lshr_b32 s{t0}, s{sW}, 1')
    em(f's_mul_i32 s{t0}, s{t0}, 640')
    em(f'v_add_u32 v{vt}, s{t0}, v{vt}')
    em(f'v_add_u32 v{vt + 1}, {32 * 1280}, v{vt}')
    em(f's_mul_i32 s{t1}, s{sHd}, {128 * 1280}')
    em(f's_mul_i32 s{t3}, s{sW}, 20480')
    em(f's_add_u32 s{t1}, s{t1}, s{t3}')
    for hf in range(2):
        for i in range(5):
            em(f's_add_u32 m0, s{t3}, {4096 * i}')
            em(f's_add_u32 s{t2}, s{t1}, {hf * 81920 + 4096 * i}')
            for k in range(4):
                em.vm(f'buffer_load_dwordx4 v{vL16}, {s(SWM, 4)}, s{t2} offen offset:{1024 * k} lds')
        em.wait_all()
        em('s_barrier')
        for s2 in range(2):
            st = 2 * hf + s2
            for T in range(20):
                for jh in range(2):
                    reg = WOR + (T * 4 + st) * 4 + 2 * jh
                    em.ds(f'ds_read_b64_tr_b16 {r(reg, 2)}, v{vt + s2} offset:{jh * 16 * 1280 + (T >> 1) * 64 + (T & 1) * 8}')
                if T % 6 == 5:
                    em('s_waitcnt lgkmcnt(0)')
        em.wait_all()
        em('s_barrier')
    em(f's_and_b32 s{t0}, s{sW}, 1')
    em(f's_lshl_b32 s{t1}, s{t0}, 4')
    em(f'v_and_b32 v{A_}, 15, v{vL}')
    em(f'v_add_u32 v{A_}, s{t1}, v{A_}')
    em(f'v_lshlrev_b32 v{A_ + 1}, 2, v{vG}')
    em(f'v_mov_b32 v{A_ + 2}, {f32(-1e30)}')
    for t in range(2):
        for i in range(4):
            em(f'v_add_u32 v{A_ + 3}, {16 * t + i}, v{A_ + 1}')
            em(f'v_cmp_gt_u32 vcc, v{A_ + 3}, v{A_}')
            em(f'v_cndmask_b32 v{MSK + 4 * t + i}, 0, v{A_ + 2}, vcc')
    for i in range(4):
        em(f'v_cndmask_b32 v{MSK + 8 + i}, v{A_ + 2}, 0, {s(sMLo32, 2)}')
        em(f'v_mov_b32 v{ONES + i}, 0x3f803f80')
    em(f'v_mov_b32 v{CC}, {f32((DH ** -0.5) * math.log2(math.e))}')
    em(f'v_mov_b32 v{CC + 1}, v{CC}')
    em(f's_lshl_b32 s{t1}, s{t0}, 12')
    em(f'v_add_u32 v{vq}, s{t1}, v{vL16}')
    em(f'v_lshrrev_b32 v{vkm}, 2, v{vL}')
    em(f'v_lshlrev_b32 v{vkm}, 4, v{vkm}')
    em(f'v_and_b32 v{A_}, 1, v{vL}')
    em(f'v_lshl_add_u32 v{vkm}, v{A_}, 3, v{vkm}')
    em(f'v_and_b32 v{vvm}, 15, v{vL}')
    em(f'v_lshlrev_b32 v{vvm}, 4, v{vvm}')
    em(f'v_and_b32 v{A_}, 1, v{vG}')
    em(f'v_lshl_add_u32 v{vvm}, v{A_}, 3, v{vvm}')
    em(f'v_bfe_u32 v{vst}, v{vL}, 2, 2')
    em(f'v_mul_u32_u24 v{vst}, 5120, v{vst}')
    em(f'v_lshl_add_u32 v{vst}, v{vG}, 6, v{vst}')
    em(f'v_and_b32 v{A_}, 3, v{vL}')
    em(f'v_lshl_add_u32 v{vst}, v{A_}, 4, v{vst}')
    em(f's_mul_i32 s{t1}, s{t0}, 20480')
    em(f's_lshr_b32 s{t2}, s{sW}, 1')
    em(f's_mul_i32 s{t2}, s{t2}, 2560')
    em(f's_add_u32 s{t1}, s{t1}, s{t2}')
    em(f'v_add_u32 v{vst}, s{t1}, v{vst}')
    em(f's_lshl_b32 s{sFl}, s{sHd}, 7')
    em(f's_add_u32 s{sFl}, s{sFl}, {WS_HFLAG}')
    em(f's_lshl_b32 s{sC_}, s{sHd}, 2')
    em(f's_add_u32 s{sC_}, s{sC_}, {WS_AWF}')
    em(f's_mov_b32 s{sA}, {WS_K}')
    em(f's_cmp_eq_u32 s{sW}, 1')
    em(f's_cselect_b32 s{sA}, {WS_V}, s{sA}')
    em(f's_cmp_eq_u32 s{sW}, 2')
    em(f's_cselect_b32 s{sA}, {WS_Q}, s{sA}')
    em(f's_cmp_eq_u32 s{sW}, 3')
    em(f's_cselect_b32 s{sA}, {WS_KM}, s{sA}')
    em(f's_cselect_b32 s{t0}, 12, 13')
    em(f's_lshl_b32 s{t1}, s{sHd}, s{t0}')
    em(f's_add_u32 s{sA}, s{sA}, s{t1}')
    em(f's_lshl_b32 s{sB_}, 32, s{t0}')
    em(f's_lshl_b32 s{sF_}, s{sW}, 13')
    em(f's_mul_i32 s{sD_}, s{sHd}, {APB}')
    em(f's_add_u32 s{sD_}, s{sD_}, {WS_AP}')
    tl(em, 1)
    wait_start(em)
    em(f's_mov_b32 s{sNeed}, 1')
    em(f's_mov_b32 s{sIt}, 0')
    em(f's_add_u32 s{sE_}, s{sFl}, 24')
    vb_ = 10
    BQ, BKM, BVM = 188, 189, 190

    def dma(boff):
        for hf in range(2):
            em(f's_add_u32 s{t1}, s{sF_}, s{boff}')
            em(f's_add_u32 m0, s{t1}, {4096 * hf}')
            em(f's_add_u32 s{t0}, s{sA}, {4096 * hf}')
            for k in range(4):
                em(f'buffer_load_dwordx4 v{vL16}, {WSR}, s{t0} offen offset:{1024 * k} sc1 lds')
            if hf == 0:
                yield
        em(f's_add_u32 s{sA}, s{sA}, s{sB_}')

    sRq, sHave = sSeg, sMat
    em(f's_mov_b32 s{sRq}, 0')
    em(f's_mov_b32 s{sHave}, 0')
    NLAST = 64 if C.OPT.get('l1') else 128

    def poll_min(soff, n, need, once=False):
        lp, ok = em.newlabel('AWP'), em.newlabel('AWPOK')
        em(f's_cmp_ge_u32 s{sRq}, s{need}')
        em(f's_cbranch_scc1 {ok}')
        em(f'v_and_b32 v{A_}, 7, v{vL}')
        em(f'v_min_u32 v{A_}, {n - 1}, v{A_}')
        em(f'v_lshlrev_b32 v{A_}, 2, v{A_}')
        em(f's_mov_b32 s{sSpin}, 0')
        em.label(lp)
        em(f'buffer_load_dword v{A_ + 1}, v{A_}, {WSR}, s{soff} offen sc1')
        em(f's_add_u32 s{sSpin}, s{sSpin}, 1')
        em(f's_cmp_gt_u32 s{sSpin}, {SPIN_LIMIT}')
        em('s_cbranch_scc1 ABORT')
        em('s_waitcnt vmcnt(0)')
        if n > 1:
            em(f'v_min_u32_dpp v{A_ + 1}, v{A_ + 1}, v{A_ + 1} quad_perm:[1,0,3,2] row_mask:0xf bank_mask:0xf')
            em(f'v_min_u32_dpp v{A_ + 1}, v{A_ + 1}, v{A_ + 1} quad_perm:[2,3,0,1] row_mask:0xf bank_mask:0xf')
            em(f'v_min_u32_dpp v{A_ + 1}, v{A_ + 1}, v{A_ + 1} row_half_mirror row_mask:0xf bank_mask:0xf')
        em(f'v_readfirstlane_b32 s{sRq}, v{A_ + 1}')
        em('s_nop 1')
        if not once:
            em(f's_cmp_ge_u32 s{sRq}, s{need}')
            em(f's_cbranch_scc1 {ok}')
            em('s_sleep 1')
            em(f's_branch {lp}')
        em.label(ok)

    def prefetch(need, boff, km):
        lab, l3 = em.newlabel('AWQ'), em.newlabel('AWQ3')
        em(f's_cmp_eq_u32 s{sW}, 3')
        em(f's_cbranch_scc1 {l3}')
        poll_min(sFl, 6, need)
        for _ in dma(boff):
            pass
        em(f's_branch {lab}')
        em.label(l3)
        if km:
            poll_min(sE_, 1, need, once=True)
            em(f's_cmp_lt_u32 s{sRq}, s{need}')
            em(f's_cbranch_scc1 {lab}')
            for _ in dma(boff):
                break
            em(f's_add_u32 s{sA}, s{sA}, s{sB_}')
            em(f's_mov_b32 s{sHave}, 1')
        em.label(lab)

    def flag(val):
        lab = em.newlabel('AWF')
        em(f's_cmp_lg_u32 s{sW}, 0')
        em(f's_cbranch_scc1 {lab}')
        em(f's_sub_u32 s{t0}, s{val}, 1')
        em(f's_cbranch_scc1 {lab}')
        em(f's_lshl_b32 s{t0}, s{t0}, 7')
        em(f's_add_u32 s{t0}, s{t0}, {WS_AWC}')
        em(f'v_mov_b32 v{A_ + 2}, 0')
        em(f'v_mov_b32 v{A_ + 3}, 1')
        em('s_mov_b64 exec, 1')
        em(f'buffer_atomic_add v{A_ + 3}, v{A_ + 2}, {WSR}, s{t0} offen sc1')
        em('s_mov_b64 exec, -1')
        em.label(lab)

    prefetch(sNeed, sIt, False)
    em('s_waitcnt vmcnt(0)')
    ph = C.OPT.get('awph')
    if ph:
        for i in range(8):
            em(f's_mov_b32 s{sAcc + i}, 0')
        em('s_memtime s[94:95]')
        em('s_waitcnt lgkmcnt(0)')
    em.label('AW_SEG')
    em.forget()
    em(f'v_add_u32 v{vb_}, s{sIt}, v{vL16}')
    em(f'v_add_u32 v{BQ}, s{sIt}, v{vq}')
    em(f'v_add_u32 v{BKM}, s{sIt}, v{vkm}')
    em(f'v_add_u32 v{BVM}, s{sIt}, v{vvm}')
    em(f's_cmp_lg_u32 s{sW}, 3')
    em('s_cbranch_scc1 AW_FD')
    em(f's_cmp_lg_u32 s{sHave}, 0')
    em('s_cbranch_scc1 AW_FD')
    poll_min(sE_, 1, sNeed)
    stamp(em, 0, ph)
    for _ in dma(sIt):
        break
    em(f's_add_u32 s{sA}, s{sA}, s{sB_}')
    em('s_waitcnt vmcnt(0)')
    em.label('AW_FD')
    em(f's_mov_b32 s{sHave}, 0')
    em('s_barrier')
    stamp(em, 1, ph)
    em(f's_xor_b32 s{sIt}, s{sIt}, {AWB}')
    qt_ = [em.ds(f'ds_read_b128 {v(QF + 4 * st, 4)}, v{BQ} offset:{16384 + 1024 * st}') for st in range(4)]
    kt = {}
    for st in range(4):
        for t in range(2):
            kt[t, st] = em.ds(f'ds_read_b128 {v(KF + 4 * (4 * t + st), 4)}, v{vb_} offset:{4096 * t + 1024 * st}')
    for st in range(4):
        em.wait(l=kt[1, st])
        for t in range(2):
            c = v(MSK + 4 * t, 4) if st == 0 else v(SC + 4 * t, 4)
            em(f'{MF} {v(SC + 4 * t, 4)}, {v(KF + 4 * (4 * t + st), 4)}, {v(QF + 4 * st, 4)}, {c}')
        if st == 0:
            for s2 in range(4):
                em.ds(f'ds_read_b64_tr_b16 {v(KMF + 4 * s2, 2)}, v{BKM} offset:{24576 + 512 * s2}')
                kt[2, s2] = em.ds(f'ds_read_b64_tr_b16 {v(KMF + 4 * s2 + 2, 2)}, v{BKM} offset:{24576 + 512 * s2 + 256}')
    for st in range(4):
        em.wait(l=kt[2, st])
        c = v(MSK + 8, 4) if st == 0 else v(SC + 8, 4)
        em(f'{MF} {v(SC + 8, 4)}, {v(KMF + 4 * st, 4)}, {v(QF + 4 * st, 4)}, {c}')
    vt_ = {}
    for et in range(8):
        em.ds(f'ds_read_b128 {v(VF + 4 * et, 4)}, v{vb_} offset:{8192 + 1024 * et}')
        vt_[et] = em.ds(f'ds_read_b64 {v(VMF + 2 * et, 2)}, v{BVM} offset:{24576 + 2048 + 256 * et}')
    B_ = A_ + 1
    em(f'v_max3_f32 v{A_}, v{SC}, v{SC + 1}, v{SC + 2}')
    for i in range(3, 11, 2):
        em(f'v_max3_f32 v{A_}, v{A_}, v{SC + i}, v{SC + i + 1}')
    em(f'v_max_f32 v{A_}, v{A_}, v{SC + 11}')
    em(f'v_mov_b32 v{B_}, v{A_}')
    em(f'v_permlane32_swap_b32 v{A_}, v{B_}')
    em(f'v_max_f32 v{A_}, v{A_}, v{B_}')
    em(f'v_mov_b32 v{B_}, v{A_}')
    em(f'v_permlane16_swap_b32 v{A_}, v{B_}')
    em(f'v_max_f32 v{A_}, v{A_}, v{B_}')
    em(f'v_mul_f32 v{A_}, v{CC}, v{A_}')
    em(f'v_mov_b32 v{B_}, v{A_}')
    for i in range(0, 12, 2):
        em(f'v_pk_fma_f32 {v(SC + i, 2)}, {v(SC + i, 2)}, {v(CC, 2)}, {v(A_, 2)} neg_lo:[0,0,1] neg_hi:[0,0,1]')
    for i in range(12):
        em(f'v_exp_f32 v{SC + i}, v{SC + i}')
    for i in range(6):
        em(f'v_cvt_pk_bf16_f32 v{P01 + i}, v{SC + 2 * i}, v{SC + 2 * i + 1}')
    em(f'{MF} {v(SUM, 4)}, {v(ONES, 4)}, {v(P01, 4)}, 0')
    for et in range(8):
        em.wait(l=vt_[et])
        em(f'{MF} {v(O + 4 * et, 4)}, {v(VF + 4 * et, 4)}, {v(P01, 4)}, 0')
    em(f'{MF16} {v(SUM, 4)}, {v(ONES, 2)}, {v(PM, 2)}, {v(SUM, 4)}')
    for et in range(8):
        em(f'{MF16} {v(O + 4 * et, 4)}, {v(VMF + 2 * et, 2)}, {v(PM, 2)}, {v(O + 4 * et, 4)}')
    em(f'v_rcp_f32 v{A_}, v{SUM}')
    em('s_nop 0')
    em(f'v_mov_b32 v{B_}, v{A_}')
    for et in range(8):
        for k in range(2):
            em(f'v_pk_mul_f32 {v(O + 4 * et + 2 * k, 2)}, {v(O + 4 * et + 2 * k, 2)}, {v(A_, 2)}')
            em(f'v_cvt_pk_bf16_f32 v{OFR + 2 * et + k}, v{O + 4 * et + 2 * k}, v{O + 4 * et + 2 * k + 1}')
    stamp(em, 2, ph)
    em('s_waitcnt vmcnt(0)')
    em('s_barrier')
    em(f's_sub_u32 s{t2}, s{sNeed}, 1')
    em(f's_cmp_eq_u32 s{t2}, 64')
    em(f's_cselect_b32 s{t2}, 0, s{t2}')
    flag(t2)
    em(f's_and_b32 s{t2}, s{sNeed}, 63')
    em(f's_cmp_eq_u32 s{t2}, 0')
    em('s_cbranch_scc1 AW_NOPF')
    em(f's_add_u32 s{t2}, s{sNeed}, 1')
    prefetch(t2, sIt, True)
    em.label('AW_NOPF')
    stamp(em, 3, ph)
    STG = [O + 4 * i for i in range(8)] + [SC, SC + 4]
    pend = []
    for p in range(10):
        acc = WA + 8 * (p % 4)
        for st in range(4):
            for t in range(2):
                c = '0' if st == 0 else v(acc + 4 * t, 4)
                em(f'{MF} {v(acc + 4 * t, 4)}, {r(WOR + ((2 * p + t) * 4 + st) * 4, 4)}, {v(OFR + 4 * st, 4)}, {c}')
                if st >= 2 and pend:
                    em(pend.pop(0))
        if p == 9:
            em('s_waitcnt vmcnt(0)')
            for k in range(9):
                em(f'buffer_store_dwordx4 {v(STG[k], 4)}, v{vst}, {WSR}, s{sD_} offen offset:{256 * k} sc1')
        pend = [f'v_cvt_pk_bf16_f32 v{STG[p] + k}, v{acc + 2 * k}, v{acc + 2 * k + 1}' for k in range(4)]
    for i in pend:
        em(i)
    em(f'buffer_store_dwordx4 {v(STG[9], 4)}, v{vst}, {WSR}, s{sD_} offen offset:{256 * 9} sc1')
    stamp(em, 4, ph)
    em(f's_add_u32 s{sD_}, s{sD_}, {32 * APB}')
    em(f's_and_b32 s{t2}, s{sNeed}, 63')
    em(f's_cmp_lg_u32 s{t2}, 0')
    em('s_cbranch_scc1 AW_MID')
    em('s_waitcnt vmcnt(0)')
    em('s_barrier')
    flag(sNeed)
    if C.OPT.get('tl'):
        em(f's_sub_u32 s{t0}, s{sNeed}, 1')
        em(f's_lshr_b32 s{t0}, s{t0}, 6')
        tl(em, 4, dyn=t0, va=A_, vb=A_ + 1)
    em(f's_sub_u32 s{sD_}, s{sD_}, {64 * 32 * APB}')
    em(f's_cmp_eq_u32 s{sNeed}, {NLAST}')
    em('s_cbranch_scc1 AW_MID')
    em(f's_add_u32 s{t2}, s{sNeed}, 1')
    prefetch(t2, sIt, False)
    em('s_waitcnt vmcnt(0)')
    em.label('AW_MID')
    stamp(em, 5, ph)
    em(f's_add_u32 s{sNeed}, s{sNeed}, 1')
    em(f's_cmp_le_u32 s{sNeed}, {64 if C.OPT.get("l1") else 128}')
    em('s_cbranch_scc1 AW_SEG')
    if ph:
        em(f's_lshl_b32 s{t0}, s{sHd}, 2')
        em(f's_add_u32 s{t0}, s{t0}, s{sW}')
        em(f's_lshl_b32 s{t0}, s{t0}, 5')
        em(f's_add_u32 s{t0}, s{t0}, {WS_HIST + 0x1a0000}')
        for i in range(8):
            em(f'v_mov_b32 v{A_}, s{sAcc + i}')
            em(f'v_mov_b32 v{A_ + 1}, {4 * i}')
            em(f'buffer_store_dword v{A_}, v{A_ + 1}, {WSR}, s{t0} offen')
    em('s_branch DONE')
```

```python
import sys
sys.path.insert(0, 'gen'); sys.path.insert(0, 'mb')
from common import *
import chain as C
import workers as W
NAME = 'interleave_layers__memory_aug_recurrent_mem_tr__mixer_token_mlp__prompt'

def build(opts=(), stamps=False):
    C.OPT.clear()
    C.OPT.update({'ack': 'noack' not in opts})
    for o in opts:
        k_, _, v_ = o.partition('=')
        C.OPT[k_] = int(v_) if v_ else True
    em = Em()
    elect(em)
    C.tl(em, 0)
    em(f's_cmp_eq_u32 s{sXcc}, 0')
    em('s_cbranch_scc1 ROLE_CHAIN')
    em(f's_sub_u32 s36, s{sXcc}, 1')
    em(f's_mul_i32 s{W.wR}, s{sRank}, 7')
    em(f's_add_u32 s{W.wR}, s{W.wR}, s36')
    em(f's_mul_i32 s{W.g1R}, s36, 20')
    em(f's_add_u32 s{W.g1R}, s{W.g1R}, s{sRank}')
    em(f's_cmp_lt_u32 s{sRank}, 20')
    em(f's_cselect_b32 s{W.g1R}, s{W.g1R}, 999')
    em(f's_mul_i32 s{W.g2R}, s36, 23')
    em(f's_add_u32 s{W.g2R}, s{W.g2R}, s{sRank}')
    em(f's_cmp_lt_u32 s{sRank}, 23')
    em(f's_cselect_b32 s{W.g2R}, s{W.g2R}, 999')
    if C.OPT.get('chainonly'):
        arrive(em)
        em('s_branch DONE')
    em(f's_cmp_ge_u32 s{W.wR}, 192')
    em('s_cbranch_scc1 ROLE_AW')
    W.gw_main(em, arrive, wait_start)
    em.label('ROLE_AW')
    W.aw_main(em, arrive, wait_start)
    em.label('ROLE_CHAIN')
    em(f's_mov_b32 s{C.sH}, s{sRank}')
    C.chain_init(em)
    arrive(em)
    C.tl(em, 1)
    C.chain_load_weights(em)
    wait_start(em)
    C.chain_main(em, hist=bool(C.OPT.get('hist')), stamps=stamps, nlayers=1 if C.OPT.get('l1') else 2, ph=bool(C.OPT.get('ph')))
    tail(em)
    ref = open(f'cdna_kernels/{NAME}.s.ref').read().split('\n')
    pre = '\n'.join(l for l in ref if l.startswith(';') and '@launch' not in l and 'Override' not in l and 'grid=ceil' not in l) + '\n'
    return header(NAME + '_kernel', pre=pre) + em.text() + footer(NAME + '_kernel')

if __name__ == '__main__':
    out = sys.argv[1]
    txt = build(sys.argv[2:], stamps='stamps' in sys.argv)
    open(out, 'w').write(txt)
    print('bytes', len(txt), 'lines', txt.count('\n'))
    if out.endswith('.s') and 'co' in sys.argv:
        from mblib import assemble
        assemble(txt, NAME + '_kernel', 15, out[:-2] + '.co')
```

```python
from emit import *
from layout import *

SWS, SDBG, SWQ, SWK, SWV, SWO, SM0 = 4, 8, 12, 16, 20, 24, 28
sH, sW, sT, sS, sLayer = 40, 41, 42, 43, 44
sMemRd, sMemWr, sMemRst, sPart, sT0, sT1 = 45, 46, 47, 48, 49, 50
sBase = [None, 51, 52, 53]
sStream, sKV, sKM, sVM, sReady, sIsRed = 54, 55, 56, 57, 58, 59
sMaskHi8, sMaskLo32, sC = 60, 62, 64
sOXw = 65
sOXr = [None, 66, 67, 68]
sSpin, sKm0, sFlag, sT2 = 69, 72, 73, 74
sTime = 76
SPIN_LIMIT = 1 << 20

vL16, vIdx, vLW, vPartSt, vPartLd, vMemSt, vTr, vQXw, vTA = 1, 2, 3, 4, 5, 6, 7, 8, 9
T0, T1 = 10, 11
SB = [12, 20, 28]
LB = [36, 44]
AB2, AB3 = 52, 56
accQ, accK, accV = 60, 64, 68
S0, S1, S2, X4 = 72, 76, 80, 84
RBASE = 88

NFR = 80
OPT = {}
FR = []
for m_ in 'qkv':
    for j in range(20):
        FR.append((m_, j))
for p in range(5):
    for x in range(4):
        FR.append(('o', p, x))
FID = {d: i for i, d in enumerate(FR)}
PH1 = []
for j in range(20):
    PH1 += [('q', j), ('k', j)] + ([('v', j)] if j < 17 else [])
SL_ = [[PH1[1], PH1[23], PH1[50], ('o', 1, 1)],
       [PH1[2], PH1[32], ('o', 2, 2)],
       [PH1[14], PH1[41], ('o', 1, 3)]]
LEND = [PH1[32], PH1[41]]
LF_ = [PH1[i] for i in (4, 7, 10, 16, 19, 25, 28, 34, 37)] + \
      [('o', 4, 0), ('o', 0, 0), ('o', 4, 2), ('o', 0, 1), ('o', 0, 3), ('o', 2, 1), ('o', 3, 1), ('o', 3, 2)]
NL1 = 9
SLIST = [[FID[d] for d in l] for l in SL_]
LFR = [FID[d] for d in LF_]
SFR = sum(SLIST, [])
assert len(LFR) == 17 and not set(LFR) & set(SFR)
RFR = [i for i in range(NFR) if i not in LFR and i not in SFR]
assert RBASE + 8 * len(RFR) <= 512, len(RFR)
RREG = {f: RBASE + 8 * n for n, f in enumerate(RFR)}
LSLOT = {f: n for n, f in enumerate(LFR)}
SSLOT = {f: n for n, f in enumerate(SFR)}
FSLOT = {f: n for n, f in enumerate(RFR + LFR)}
NFS = len(FSLOT)
SBUF = {f: b for b, l in enumerate(SLIST) for f in l}
SBR = SB
sSB = 80
sTag = 33
sPP = 30
sC2 = 70

WSR = s(SWS, 4)


def srd(em, d, ka, nbytes, tmp=None):
    em(f's_load_dwordx2 {s(d, 2)}, s[0:1], {ka}')
    em(f's_mov_b32 {s(d + 2)}, {nbytes}')
    em(f's_mov_b32 {s(d + 3)}, 0x20000')


def chain_init(em, hist=False):
    srd(em, SM0, KA_MEM0, M * DM * 2)
    L, G, A_, B_, C_ = 80, 81, 82, 83, 84
    em.l_done = em.l_iss
    em(f'v_lshrrev_b32 v{A_}, 6, v0')
    em(f'v_and_b32 v{L}, 63, v0')
    em(f'v_readfirstlane_b32 s{sW}, v{A_}')
    em(f'v_lshrrev_b32 v{G}, 4, v{L}')
    em(f'v_lshlrev_b32 v{vL16}, 4, v{L}')
    em(f's_mov_b32 s{sMaskHi8}, 0xff00ff00')
    em(f's_mov_b32 s{sMaskHi8 + 1}, 0xff00ff00')
    em(f's_mov_b32 s{sMaskLo32}, -1')
    em(f's_mov_b32 s{sMaskLo32 + 1}, 0')
    import struct, math
    c = struct.unpack('<I', struct.pack('<f', (DH ** -0.5) * math.log2(math.e)))[0]
    em(f's_mov_b32 s{sC}, {hex(c)}')
    em(f's_mov_b32 s{sC2}, {hex(c)}')
    em(f's_mov_b32 s{sC2 + 1}, {hex(c)}')
    em(f'v_mov_b32 v{A_}, 0x4444')
    em(f'v_mov_b32 v{B_}, 0xeeee')
    em(f'v_cndmask_b32 v{vIdx}, v{A_}, v{B_}, {s(sMaskHi8, 2)}')
    em(f's_mul_i32 s{sT0}, s{sW}, {LW_WAVE}')
    em(f's_add_u32 s{sT0}, s{sT0}, {L_W}')
    em(f'v_add_u32 v{vLW}, s{sT0}, v{vL16}')
    em(f's_mul_i32 s{sT0}, s{sW}, {20 * 4096}')
    em(f's_lshl_b32 s{sT1}, s{sH}, 7')
    em(f's_add_u32 s{sT0}, s{sT0}, s{sT1}')
    em(f'v_lshrrev_b32 v{A_}, 3, v{L}')
    em(f'v_lshlrev_b32 v{A_}, 12, v{A_}')
    em(f'v_and_b32 v{B_}, 7, v{L}')
    em(f'v_lshl_add_u32 v{A_}, v{B_}, 4, v{A_}')
    em(f'v_add_u32 v{vPartSt}, s{sT0}, v{A_}')
    em(f's_lshl_b32 s{sT2}, s{sH}, 1')
    em(f's_add_u32 s{sT2}, s{sT2}, s{sW}')
    em(f's_mov_b32 s{sIsRed}, 1')
    em(f's_cmp_lt_u32 s{sW}, 2')
    em(f's_cbranch_scc1 CH_U_OK')
    em(f's_add_u32 s{sT2}, s{sH}, 64')
    em(f's_cmp_eq_u32 s{sW}, 2')
    em(f's_cselect_b32 s{sT0}, 1, 0')
    em(f's_cmp_lt_u32 s{sH}, 16')
    em(f's_cselect_b32 s{sT1}, 1, 0')
    em(f's_and_b32 s{sIsRed}, s{sT0}, s{sT1}')
    em(f's_mul_i32 s{sT2}, s{sT2}, s{sIsRed}')
    em.label('CH_U_OK')
    em(f'v_bfe_u32 v{A_}, v{L}, 3, 1')
    em(f'v_lshl_add_u32 v{B_}, v{A_}, 2, v{G}')
    em(f'v_lshlrev_b32 v{B_}, 7, v{B_}')
    em(f'v_and_b32 v{C_}, 7, v{L}')
    em(f'v_lshl_add_u32 v{B_}, v{C_}, 4, v{B_}')
    em(f's_lshl_b32 s{sT0}, s{sT2}, 12')
    em(f'v_add_u32 v{vPartLd}, s{sT0}, v{B_}')
    em(f's_lshr_b32 s{sT0}, s{sT2}, 2')
    em(f's_lshl_b32 s{sT0}, s{sT0}, 9')
    em(f's_and_b32 s{sT1}, s{sT2}, 1')
    em(f's_lshl_b32 s{sT1}, s{sT1}, 8')
    em(f's_add_u32 s{sT0}, s{sT0}, s{sT1}')
    em(f's_bfe_u32 s{sT1}, s{sT2}, 0x10001')
    em(f's_lshl_b32 s{sT1}, s{sT1}, 6')
    em(f's_add_u32 s{sT0}, s{sT0}, s{sT1}')
    em(f'v_lshl_add_u32 v{A_}, v{G}, 1, v{A_}')
    em(f'v_lshlrev_b32 v{A_}, 4, v{A_}')
    em(f'v_lshrrev_b32 v{B_}, 2, v{C_}')
    em(f'v_lshl_add_u32 v{A_}, v{B_}, 7, v{A_}')
    em(f'v_and_b32 v{B_}, 3, v{C_}')
    em(f'v_lshl_add_u32 v{A_}, v{B_}, 2, v{A_}')
    em(f'v_add_u32 v{A_}, s{sT0}, v{A_}')
    em(f'v_mov_b32 v{B_}, 0x40000000')
    em(f'v_cndmask_b32 v{vMemSt}, v{B_}, v{A_}, {s(sMaskLo32, 2)}')
    em(f'v_lshrrev_b32 v{A_}, 2, v{L}')
    em(f'v_lshlrev_b32 v{A_}, 4, v{A_}')
    em(f'v_and_b32 v{B_}, 1, v{L}')
    em(f'v_lshl_add_u32 v{vTr}, v{B_}, 3, v{A_}')
    em(f'v_lshrrev_b32 v{A_}, 5, v{L}')
    em(f'v_lshlrev_b32 v{A_}, 8, v{A_}')
    em(f'v_and_b32 v{B_}, 15, v{L}')
    em(f'v_lshl_add_u32 v{A_}, v{B_}, 4, v{A_}')
    em(f'v_and_b32 v{B_}, 1, v{G}')
    em(f'v_lshl_add_u32 v{A_}, v{B_}, 3, v{A_}')
    em(f's_lshl_b32 s{sT0}, s{sW}, 9')
    em(f'v_add_u32 v{vQXw}, s{sT0}, v{A_}')
    em(f'v_and_b32 v{B_}, 7, v{L}')
    em(f'v_lshlrev_b32 v{A_}, 7, v{G}')
    em(f'v_lshl_add_u32 v{A_}, v{B_}, 4, v{A_}')
    em(f's_mul_i32 s{sT0}, s{sW}, 2560')
    em(f'v_add_u32 v{vTA}, s{sT0}, v{A_}')
    for x in (1, 2, 3):
        em(f's_add_u32 s{sT1}, s{sW}, {x}')
        em(f's_and_b32 s{sT1}, s{sT1}, 3')
        em(f's_mul_i32 s{sBase[x]}, s{sT1}, 2560')
        em(f's_sub_u32 s{sBase[x]}, s{sBase[x]}, s{sT0}')
        em(f's_lshl_b32 s{sOXr[x]}, s{sT1}, 9')
        em(f's_add_u32 s{sOXr[x]}, s{sOXr[x]}, {L_OX}')
        em(f's_sub_u32 s{sOXr[x]}, s{sOXr[x]}, s{sT0}')
    em(f's_lshl_b32 s{sT1}, s{sW}, 11')
    em(f's_sub_u32 s{sOXw}, {L_OX}, s{sT1}')
    em(f's_add_u32 s{sKm0}, s{sT1}, {L_KS}')
    em(f's_lshl_b32 s{sT0}, s{sH}, 2')
    em(f's_add_u32 s{sT0}, s{sT0}, s{sW}')
    em(f's_mul_i32 s{sT0}, s{sT0}, {len(SFR) * 2048}')
    em(f's_add_u32 s{sStream}, s{sT0}, {WS_STREAM}')
    em(f's_lshl_b32 s{sFlag}, s{sH}, 7')
    em(f's_add_u32 s{sFlag}, s{sFlag}, {WS_HFLAG}')
    em('s_waitcnt lgkmcnt(0)')

    P = 52
    for i in range(4):
        em(f'v_mov_b32 v{P + i}, -1')
    em(f's_cmp_eq_u32 s{sIsRed}, 0')
    em('s_cbranch_scc1 CH_NOPOISON')
    em(f's_mov_b32 s{sT0}, {WS_PART}')
    for n in range(4):
        em(f'buffer_store_dwordx4 {v(P, 4)}, v{vPartLd}, {WSR}, s{sT0} offen offset:{1024 * n}')
    for slot in range(2):
        em(f's_mov_b32 s{sT0}, {WS_MEMB + slot * 10240}')
        em(f'buffer_store_dword v{P}, v{vMemSt}, {WSR}, s{sT0} offen')
    em.label('CH_NOPOISON')
    em(f's_mul_i32 s{sT0}, s{sH}, 10240')
    em(f's_add_u32 s{sT0}, s{sT0}, {WS_MEMB0}')
    em(f'v_bfe_u32 v{A_}, v0, 2, 3')
    em(f'v_mul_u32_u24 v{A_}, 1280, v{A_}')
    em(f'v_bfe_u32 v{B_}, v0, 5, 2')
    em(f'v_and_b32 v{C_}, 3, v0')
    em(f'v_lshl_add_u32 v{B_}, v{B_}, 2, v{C_}')
    em(f'v_lshl_add_u32 v{A_}, v{B_}, 1, v{A_}')
    em(f'v_cmp_gt_u32 vcc, 128, v0')
    em(f'v_lshlrev_b32 v{C_}, 2, v0')

    def colbase(kb):
        wp, jj = divmod(kb, 5)
        return (160 * wp + 64 * (jj >> 1) + 16 * (jj & 1), 32) if jj < 4 else (160 * wp + 128, 16)
    for it in range(10):
        (c0, d0), (c1, d1) = colbase(2 * it), colbase(2 * it + 1)
        for k, (x0, x1) in enumerate(((c0, c1), (c0 + d0, c1 + d1))):
            em(f'v_mov_b32 v{86 + k}, {2 * x0}')
            em(f'v_mov_b32 v{B_}, {2 * x1}')
            em(f'v_cndmask_b32 v{86 + k}, v{B_}, v{86 + k}, vcc')
            em(f'v_add_u32 v{86 + k}, v{86 + k}, v{A_}')
        em(f'buffer_load_ushort v{56 + 2 * it}, v86, {s(SM0, 4)}, 0 offen')
        em(f'buffer_load_ushort v{57 + 2 * it}, v87, {s(SM0, 4)}, 0 offen')
    em('s_waitcnt vmcnt(0)')
    for it in range(10):
        em(f'v_lshl_or_b32 v{56 + 2 * it}, v{57 + 2 * it}, 16, v{56 + 2 * it}')
        em(f's_add_u32 s{sT1}, s{sT0}, {1024 * it}')
        em(f'buffer_store_dword v{56 + 2 * it}, v{C_}, {WSR}, s{sT1} offen')
    em('s_nop 1')
    em(f'v_and_b32 v{A_}, 15, v{L}')
    em(f'v_and_b32 v{B_}, 1, v{A_}')
    em(f'v_lshrrev_b32 v{C_}, 1, v{A_}')
    em(f'v_lshl_add_u32 v{B_}, v{B_}, 2, v{C_}')
    em(f'v_mov_b32 v{C_}, 99')
    em(f'v_cndmask_b32 v{B_}, v{B_}, v{C_}, {s(sMaskHi8, 2)}')
    em(f'v_mov_b32 v{A_}, 0x3f80')
    em(f'v_mov_b32 v{C_}, 0x3f800000')
    for dd in range(4):
        em(f'v_mov_b32 v{56 + dd}, 0')
        em(f'v_cmp_eq_u32 vcc, {2 * dd}, v{B_}')
        em(f'v_cndmask_b32 v{56 + dd}, v{56 + dd}, v{A_}, vcc')
        em(f'v_cmp_eq_u32 vcc, {2 * dd + 1}, v{B_}')
        em(f'v_cndmask_b32 v{56 + dd}, v{56 + dd}, v{C_}, vcc')
    em(f'v_add_u32 v{A_}, {L_SEL}, v{vL16}')
    em(f'ds_write_b128 v{A_}, {v(56, 4)}')
    em.wait_all()


def chain_load_weights(em):
    srd(em, SWQ, KA_WQ, DM * H * DH * 2)
    srd(em, SWK, KA_WK, DM * H * DH * 2)
    srd(em, SWV, KA_WV, DM * H * DH * 2)
    srd(em, SWO, KA_WO, DM * H * DH * 2)
    L, G, A_, B_ = 60, 61, 62, 63
    vSq, vSq2, vSo8, vSo4 = 64, 65, 66, 67
    vTq = [68, 69, 70, 71]
    vTo8, vTo4 = 72, 73
    RING = 24576
    sA, sB_, sColQ, sColO, sBlk, sFs = 80, 81, 82, 83, 84, 85
    em(f'v_and_b32 v{L}, 63, v0')
    em(f'v_lshrrev_b32 v{G}, 4, v{L}')
    em(f'v_lshrrev_b32 v{A_}, 1, v{G}')
    em(f'v_lshlrev_b32 v{vSq}, 13, v{A_}')
    em(f'v_and_b32 v{B_}, 15, v{L}')
    em(f'v_lshl_add_u32 v{vSq}, v{B_}, 4, v{vSq}')
    em(f'v_and_b32 v{A_}, 1, v{G}')
    em(f'v_lshl_add_u32 v{vSq2}, v{A_}, 17, v{vSq}')
    em(f'v_lshl_add_u32 v{vSq}, v{A_}, 18, v{vSq}')
    em(f'v_lshrrev_b32 v{A_}, 3, v{L}')
    em(f'v_mul_u32_u24 v{vSo8}, 1280, v{A_}')
    em(f'v_and_b32 v{B_}, 7, v{L}')
    em(f'v_lshl_add_u32 v{vSo8}, v{B_}, 4, v{vSo8}')
    em(f'v_lshrrev_b32 v{A_}, 2, v{L}')
    em(f'v_mul_u32_u24 v{vSo4}, 1280, v{A_}')
    em(f'v_and_b32 v{B_}, 3, v{L}')
    em(f'v_lshl_add_u32 v{vSo4}, v{B_}, 4, v{vSo4}')
    em(f'v_bfe_u32 v{A_}, v{L}, 3, 1')
    em(f'v_lshlrev_b32 v{A_}, 5, v{A_}')
    em(f'v_lshl_add_u32 v{A_}, v{B_}, 3, v{A_}')
    em(f'v_bfe_u32 v{B_}, v{L}, 2, 1')
    em(f'v_lshl_add_u32 v{vTq[0]}, v{G}, 2, v{B_}')
    em(f'v_lshl_add_u32 v{vTq[0]}, v{vTq[0]}, 8, v{A_}')
    em(f's_lshl_b32 s{sA}, s{sW}, 6')
    em(f's_add_u32 s{sA}, s{sA}, {RING}')
    em(f'v_add_u32 v{vTq[0]}, s{sA}, v{vTq[0]}')
    for x in (3, 2, 1, 0):
        em(f's_add_u32 s{sA}, s{sW}, {x}')
        em(f's_and_b32 s{sA}, s{sA}, 3')
        em(f's_lshl_b32 s{sA}, s{sA}, 13')
        em(f'v_add_u32 v{vTq[x]}, s{sA}, v{vTq[0]}')
    em(f'v_and_b32 v{vTo8}, 1, v{G}')
    em(f'v_lshlrev_b32 v{vTo8}, 4, v{vTo8}')
    em(f'v_lshrrev_b32 v{vTo4}, 1, v{G}')
    em(f'v_lshl_add_u32 v{vTo8}, v{vTo4}, 2, v{vTo8}')
    em(f'v_add_u32 v{vTo8}, v{vTo8}, v{B_}')
    em(f's_lshl_b32 s{sBlk}, s{sW}, 13')
    em(f's_add_u32 s{sBlk}, s{sBlk}, {RING}')
    em(f'v_add_u32 v{A_}, s{sBlk}, v{A_}')
    em(f'v_lshl_add_u32 v{vTo4}, v{vTo8}, 6, v{A_}')
    em(f'v_lshl_add_u32 v{vTo8}, v{vTo8}, 7, v{A_}')
    em(f's_mul_i32 s{sColQ}, s{sW}, {160 * 8192}')
    em(f's_lshl_b32 s{sA}, s{sH}, 8')
    em(f's_add_u32 s{sColQ}, s{sColQ}, s{sA}')
    em(f's_mul_i32 s{sColO}, s{sH}, {128 * 1280}')
    em(f's_mul_i32 s{sA}, s{sW}, 320')
    em(f's_add_u32 s{sColO}, s{sColO}, s{sA}')
    em(f's_lshl_b32 s{sFs}, s{sH}, 2')
    em(f's_add_u32 s{sFs}, s{sFs}, s{sW}')
    em(f's_mul_i32 s{sFs}, s{sFs}, {len(LFR) * 2048}')
    em(f's_add_u32 s{sFs}, s{sFs}, {WS_FRAG}')
    em('s_waitcnt lgkmcnt(0)')
    rounds = [('w', m_, jj) for jj in range(5) for m_ in 'qkv'] + [('o', x, pp) for x in range(4) for pp in range(3)]
    tok = {}

    def issue(n):
        rd = rounds[n]
        sl = (n % 4) * 32768
        if rd[0] == 'w':
            jj = rd[2]
            rb = 64 * (jj >> 1) + 16 * (jj & 1) if jj < 4 else 128
            sr, va = {'q': SWQ, 'k': SWK, 'v': SWV}[rd[1]], (vSq if jj < 4 else vSq2)
            for i in range(8):
                em(f's_add_u32 m0, s{sBlk}, {sl + 1024 * i}')
                em(f's_add_u32 s{sA}, s{sColQ}, {(rb + 2 * i) * 8192}')
                tok[n] = em.vm(f'buffer_load_dwordx4 v{va}, {s(sr, 4)}, s{sA} offen lds')
        else:
            x, pp = rd[1], rd[2]
            em(f's_add_u32 s{sB_}, s{sW}, {x}')
            em(f's_and_b32 s{sB_}, s{sB_}, 3')
            em(f's_mul_i32 s{sB_}, s{sB_}, {32 * 1280}')
            em(f's_add_u32 s{sB_}, s{sB_}, s{sColO}')
            ni, rows, va = (4, 8, vSo8) if pp < 2 else (2, 16, vSo4)
            for i in range(ni):
                em(f's_add_u32 m0, s{sBlk}, {sl + 1024 * i}')
                em(f's_add_u32 s{sA}, s{sB_}, {128 * pp + rows * i * 1280}')
                tok[n] = em.vm(f'buffer_load_dwordx4 v{va}, {s(SWO, 4)}, s{sA} offen lds')

    TMP = [12, 20, 28, 36, 44, 52]
    ntmp = [0]
    for n in range(3):
        issue(n)
    for n, rd in enumerate(rounds):
        sl = (n % 4) * 32768
        em.wait(v=tok[n])
        em('s_barrier')
        if n + 3 < len(rounds):
            issue(n + 3)
        outs = []
        if rd[0] == 'w':
            items = [(FID[(rd[1], 5 * x + rd[2])], vTq[x], 4096, 512, 0) for x in range(4)]
        elif rd[2] < 2:
            items = [(FID[('o', 2 * rd[2] + i, rd[1])], vTo8, 1024, 256, 64 * i) for i in range(2)]
        else:
            items = [(FID[('o', 4, rd[1])], vTo4, 512, 128, 0)]
        for f, va, hs, ls, co in items:
            if f in RREG:
                dst = RREG[f]
            else:
                dst = TMP[ntmp[0] % 6]; ntmp[0] += 1
                outs.append((f, dst))
            for q_ in range(4):
                off = sl + (q_ >> 1) * hs + (q_ & 1) * ls + co
                if off < 65536:
                    em.ds(f'ds_read_b64_tr_b16 {r(dst + 2 * q_, 2)}, v{va} offset:{off}')
                else:
                    if q_ == 0:
                        em(f'v_add_u32 v{B_}, 65536, v{va}')
                    em.ds(f'ds_read_b64_tr_b16 {r(dst + 2 * q_, 2)}, v{B_} offset:{off - 65536}')
        em.wait_all(v=False)
        for f, dst in outs:
            if f in SSLOT:
                em(f's_add_u32 s{sA}, s{sStream}, {SSLOT[f] * 2048}')
            else:
                em(f's_add_u32 s{sA}, s{sFs}, {LSLOT[f] * 2048}')
            em(f'buffer_store_dwordx4 {v(dst, 4)}, v{vL16}, {WSR}, s{sA} offen')
            em(f'buffer_store_dwordx4 {v(dst + 4, 4)}, v{vL16}, {WSR}, s{sA} offen offset:1024')
    em.wait_all()
    em('s_barrier')
    em(f's_mul_i32 s{sT2}, s{sW}, {LW_WAVE}')
    em(f's_add_u32 s{sT2}, s{sT2}, {L_W}')
    for i in range(0, 2 * len(LFR), 4):
        em(f's_add_u32 m0, s{sT2}, {1024 * i}')
        em(f's_add_u32 s{sA}, s{sFs}, {1024 * i}')
        for k in range(min(4, 2 * len(LFR) - i)):
            em(f'buffer_load_dwordx4 v{vL16}, {WSR}, s{sA} offen offset:{1024 * k} sc1 lds')
    em.wait_all()


class Op:
    def __init__(self, text):
        self.text = text
        self.tok = None


class Q:
    def __init__(self, em):
        self.em = em
        self.q = []

    def push(self, *texts):
        o = None
        for t in texts:
            o = Op(t)
            self.q.append(o)
        return o

    def issue(self, o):
        t = o.text
        if t.startswith('ds_'):
            o.tok = ('l', self.em.ds(t))
        elif t.startswith('buffer_'):
            k = self.em.vm(t)
            o.tok = ('v', k) if k is not None else ('x', 0)
        else:
            self.em(t)
            o.tok = ('x', 0)

    def drain(self, n=99):
        while n > 0 and self.q:
            self.issue(self.q.pop(0))
            n -= 1

    def now(self, *texts):
        o = None
        for t in texts:
            o = Op(t)
            self.issue(o)
        return o

    def need(self, *ops):
        l = v_ = None
        for o in ops:
            if o is None:
                continue
            while o.tok is None:
                self.drain(1)
            if o.tok[0] == 'l':
                l = max(l or 0, o.tok[1])
            elif o.tok[0] == 'v':
                v_ = max(v_ or 0, o.tok[1])
        self.em.wait(l=l, v=v_)


def sl_txt(f):
    b = SBR[SBUF[f]]
    sl = SSLOT[f]
    o = (sl & 1) * 2048
    if OPT.get('nosl'):
        return ['s_nop 0']
    return [f'buffer_load_dwordx4 {v(b, 4)}, v{vL16}, {WSR}, s{sSB + sl // 2} offen offset:{o}',
            f'buffer_load_dwordx4 {v(b + 4, 4)}, v{vL16}, {WSR}, s{sSB + sl // 2} offen offset:{o + 1024}']


def ll_txt(f, buf):
    return [f'ds_read_b128 {v(buf, 4)}, v{vLW} offset:{LSLOT[f] * 2048}',
            f'ds_read_b128 {v(buf + 4, 4)}, v{vLW} offset:{LSLOT[f] * 2048 + 1024}']


KVT = T1


def kv_check(em, out_of_line):
    lab = em.newlabel('CH_KVOK')
    lp = em.newlabel('CH_KVPOLL')
    em(f's_cmp_lt_u32 s{sReady}, s{sT0}')
    em(f's_cbranch_scc1 {lp}')
    em.label(lab)
    out_of_line.append((lab, lp))


def kv_slow(em, lab, lp):
    em.label(lp)
    em(f's_mov_b32 s{sSpin}, 0')
    em(f'v_accvgpr_write_b32 a255, v{KVT}') if False else None
    em.label(lp + 'L')
    em(f'v_and_b32 v{KVT}, 48, v{vL16}')
    em(f'v_lshrrev_b32 v{KVT}, 2, v{KVT}')
    em(f'buffer_load_dword v{KVT}, v{KVT}, {WSR}, s{sFlag} offen offset:8 sc1')
    em(f's_add_u32 s{sSpin}, s{sSpin}, 1')
    em(f's_cmp_gt_u32 s{sSpin}, {SPIN_LIMIT}')
    em('s_cbranch_scc1 ABORT')
    em('s_waitcnt vmcnt(0)')
    em(f'v_min_u32_dpp v{KVT}, v{KVT}, v{KVT} quad_perm:[1,0,3,2] row_mask:0xf bank_mask:0xf')
    em(f'v_min_u32_dpp v{KVT}, v{KVT}, v{KVT} quad_perm:[2,3,0,1] row_mask:0xf bank_mask:0xf')
    em(f'v_readfirstlane_b32 s{sReady}, v{KVT}')
    em('s_nop 1')
    em(f's_cmp_lt_u32 s{sReady}, s{sT0}')
    em(f's_cbranch_scc1 {lp}L')
    em(f's_branch {lab}')


def k_txt():
    if OPT.get('nokv'):
        return ['s_nop 0']
    return [f's_mov_b32 m0, s{sKm0}',
            f's_add_u32 s{sKV}, s{sKV}, {32 * 8192}',
            f'buffer_load_dwordx4 v{vL16}, {WSR}, s{sKV} offen sc1 nt lds',
            f'buffer_load_dwordx4 v{vL16}, {WSR}, s{sKV} offen offset:1024 sc1 nt lds']


NST = 8
sAcc = 86


def stamp(em, i, on, fine=False):
    if not on:
        return
    if OPT.get('ph2'):
        if not fine:
            i = {0: 0, 1: 6}.get(i, 7)
    elif fine:
        return
    em('s_memrealtime s[96:97]' if OPT.get('abs') else 's_memtime s[96:97]')
    em('s_waitcnt lgkmcnt(0)')
    em.l_done = em.l_iss
    if OPT.get('abs'):
        em(f's_cmp_eq_u32 s{sT}, {OPT["abs"] + (1 if i == 0 and False else 0)}')
        em(f's_cselect_b32 s{sAcc + i}, s96, s{sAcc + i}')
        return
    em('s_sub_u32 s98, s96, s94')
    em(f's_add_u32 s{sAcc + i}, s{sAcc + i}, s98')
    em('s_mov_b32 s94, s96')


WS_TL = WS_HIST + 0x190000


def tl(em, slot, va=10, vb=11, dyn=None):
    if not OPT.get('tl'):
        return
    em('s_memrealtime s[100:101]')
    em('s_lshl_b32 s99, s39, 5')
    em('s_add_u32 s99, s99, s38')
    em('s_lshl_b32 s99, s99, 7')
    em(f's_add_u32 s99, s99, {WS_TL + 4 * slot}')
    if dyn is not None:
        em(f's_lshl_b32 s98, s{dyn}, 6')
        em('s_add_u32 s99, s99, s98')
    em('s_waitcnt lgkmcnt(0)')
    em.l_done = em.l_iss
    em(f'v_mov_b32 v{va}, s100')
    em(f'v_mov_b32 v{vb}, 0')
    em(f'buffer_store_dword v{va}, v{vb}, {WSR}, s99 offen')


def zero_txt(reg, n):
    return [f'v_mov_b64 {v(reg + i, 2)}, 0' for i in range(0, n, 2)]


def chain_main(em, hist=False, nlayers=2, stamps=False, ph=False):
    SM = 'v_smfmac_f32_16x16x64_bf16'
    MF = 'v_mfma_f32_16x16x32_bf16'
    MF16 = 'v_mfma_f32_16x16x16_bf16'
    ool = []
    q = Q(em)
    em(f's_mov_b32 s{sT}, 0')
    em(f's_mov_b32 s{sLayer}, 0')
    em(f's_mov_b32 s{sReady}, 0')
    em(f's_mov_b32 s{sPart}, {WS_PART}')
    em(f's_mov_b32 s{sPP}, {WS_PART + 32768}')
    em(f's_mov_b32 s{sPP + 1}, {WS_PART + 65536}')
    em(f's_lshl_b32 s{sKV}, s{sH}, 13')
    em(f's_lshl_b32 s{sT0}, s{sW}, 11')
    em(f's_add_u32 s{sKV}, s{sKV}, s{sT0}')
    em(f's_add_u32 s{sKV}, s{sKV}, {WS_K - 32 * 8192}')
    em(f's_lshl_b32 s{sKM}, s{sH}, 12')
    em(f's_add_u32 s{sKM}, s{sKM}, {WS_KM}')
    for i in range((len(SFR) + 1) // 2):
        em(f's_add_u32 s{sSB + i}, s{sStream}, {4096 * i}')
    if ph:
        for i in range(NST):
            em(f's_mov_b32 s{sAcc + i}, 0')
        em('s_memtime s[94:95]')
        em('s_waitcnt lgkmcnt(0)')
    em.label('CH_LAYER')
    em(f's_mov_b32 s{sS}, 0')
    em(f's_mul_i32 s{sMemRd}, s{sH}, 10240')
    em(f's_add_u32 s{sMemRd}, s{sMemRd}, {WS_MEMB0}')
    em(f's_lshl_b32 s{sT0}, s{sLayer}, 6')
    em(f's_add_u32 s{sT0}, s{sT0}, 1')
    for b in (0, 1):
        q.now(*sl_txt(SLIST[b][0]))
    tl(em, 2, dyn=sLayer)
    kv_check(em, ool)
    tl(em, 3, dyn=sLayer)
    q.now(*k_txt())
    if stamps:
        em(f's_memtime {s(sTime, 2)}')
        em('s_waitcnt lgkmcnt(0)')
    em(f's_mul_i32 s{sT0}, s{sW}, 2560')
    em(f'v_add_u32 v{T0}, s{sT0}, v{vL16}')
    em(f'v_lshrrev_b32 v{T1}, 1, v{vL16}')
    em(f'v_add_u32 v{T1}, s{sT0}, v{T1}')
    em.label('CH_STEP')
    em('s_barrier')
    em.forget()
    W0 = SB[2]
    m = SB[2] + 4
    TW = 0
    op = {}
    lbuf = {}

    def polls():
        em(f'buffer_load_dwordx4 {v(S1, 4)}, v{vTA}, {WSR}, s{sMemRd} offen sc1')
        em(f'buffer_load_dwordx4 {v(S2, 4)}, v{vTA}, {WSR}, s{sMemRd} offen offset:512 sc1')
        em(f'buffer_load_dwordx4 {v(AB2, 4)}, v{T0}, {WSR}, s{sMemRd} offen offset:1024 sc1')
        em(f'buffer_load_dwordx2 {v(AB3, 2)}, v{T1}, {WSR}, s{sMemRd} offen offset:2048 sc1')

    em.nops(OPT.get('e1', 0))
    polls()
    em(f's_and_b32 s{sTag}, s{sT}, 1')
    em(f's_mul_i32 s{sMemRst}, s{sTag}, 10240')
    em(f's_sub_u32 s{sMemWr}, {WS_MEMB + 10240}, s{sMemRst}')
    em(f's_add_u32 s{sMemRst}, s{sMemRst}, {WS_MEMB}')
    em(f'v_add_u32 v{TW}, 512, v{vTA}')
    em(f'v_cndmask_b32 v{TW}, v{vTA}, v{TW}, {s(sMaskHi8, 2)}')
    for n in range(2):
        op[LFR[n]] = q.now(*ll_txt(LFR[n], LB[n])); lbuf[LFR[n]] = LB[n]
    em(f's_mov_b32 s{sSpin}, 0')
    em.label('CH_POLL2')
    q.now(*zero_txt(accQ, 12))
    if OPT.get('n2'):
        em(f's_add_u32 s{sAcc + 7}, s{sAcc + 7}, 1')
    em('s_waitcnt vmcnt(2)')
    for i in range(4):
        em(f'v_cndmask_b32 v{W0 + i}, v{S1 + i}, v{S2 + i}, {s(sMaskHi8, 2)}')
    em.v_done = em.v_iss
    SM = 'v_smfmac_f32_16x16x64_bf16'
    NSPEC = 3
    spec = []
    for d in PH1[:NSPEC]:
        f = FID[d]
        b = r(RREG[f], 8) if f in RREG else v(SBR[SBUF[f]], 8)
        spec.append(f'{SM} {v({"q": accQ, "k": accK, "v": accV}[d[0]], 4)}, {v(S1, 4)}, {b}, v{vIdx}')
    q.now(f'ds_write_b128 v{TW}, {v(W0, 4)} offset:{L_MEM}')
    em(spec[0])
    em(f'v_max3_u32 v{m}, v{W0}, v{W0 + 1}, v{W0 + 2}')
    em('s_waitcnt vmcnt(0)')
    q.now(f'ds_write_b128 v{T0}, {v(AB2, 4)} offset:{L_MEM + 1024}')
    em(spec[1])
    wl = q.now(f'ds_write_b64 v{T1}, {v(AB3, 2)} offset:{L_MEM + 2048}')
    em(f'v_max3_u32 v{m + 1}, v{AB2}, v{AB2 + 1}, v{AB2 + 2}')
    em(f'v_max3_u32 v{m}, v{m}, v{W0 + 3}, v{AB2 + 3}')
    em(f'v_max3_u32 v{m + 1}, v{m + 1}, v{AB3}, v{AB3 + 1}')
    em(f'v_max_u32 v{m}, v{m}, v{m + 1}')
    em(f'v_cmp_eq_u32 vcc, -1, v{m}')
    em(spec[2])
    em('s_cbranch_vccnz CH_POLL2R')
    stamp(em, 0, ph)
    ACC = {'q': accQ, 'k': accK, 'v': accV}

    def smf(acc, areg, f, aop=None, reload=True):
        if f in RREG:
            b = r(RREG[f], 8)
            q.need(aop)
        elif f in SSLOT:
            q.need(aop, None if OPT.get('nosw') else op.get(f))
            b = v(SBR[SBUF[f]], 8)
        else:
            q.need(aop, op[f])
            b = v(lbuf[f], 8)
        em(f'{SM} {v(acc, 4)}, {v(areg, 4)}, {b}, v{vIdx}')
        if f in SSLOT and reload:
            l = SLIST[SBUF[f]]
            nf = l[(l.index(f) + 1) % len(l)]
            op[nf] = q.push(*sl_txt(nf))

    ABX = [S1, S2, S0, X4]
    abuf = {j: ABX[j % 4] for j in range(20)}
    op[SLIST[2][0]] = q.push(*sl_txt(SLIST[2][0]))
    aop = {0: None, 1: None}

    def apush(j):
        x, jj = j // 5, j % 5
        t = [vTA, T0, T1, T0][x]
        o = q.push(f'ds_read_b128 {v(abuf[j], 4)}, v{t} offset:{L_MEM + 512 * jj}')
        if jj == 4 and x < 3:
            q.push(f'v_add_u32 v{[T0, T1, T0][x]}, s{sBase[x + 1]}, v{vTA}')
        return o

    for j in (2, 3):
        aop[j] = apush(j)
    lq = list(LFR[2:NL1])
    KREG = {}
    kop = {}

    def kpush(reg):
        ks = KORD[len(KREG)]
        KREG[ks] = reg
        kop[ks] = q.push(f'ds_read_b128 {v(reg, 4)}, v{vL16} offset:{L_KS + 1024 * ks}')

    VS = [AB2, AB3]
    hold = [PH1[50]]
    for n, d in enumerate(PH1):
        f = FID[d]
        j = d[1]
        if n < NSPEC:
            if f in SSLOT:
                op[SLIST[SBUF[f]][1]] = q.push(*sl_txt(SLIST[SBUF[f]][1]))
            if n < NSPEC - 1:
                continue
        else:
            smf(ACC[d[0]], abuf[j], f, aop[j], reload=d not in LEND and d not in hold)
        last = n + 1 == len(PH1) or PH1[n + 1][1] != j
        if last:
            if j == 1:
                q.drain()
                q.need(wl)
                stamp(em, 1, ph, True)
                em('s_barrier')
                stamp(em, 2, ph, True)
            if j < 16:
                aop[j + 4] = apush(j + 4)
            if j == 9:
                stamp(em, 3, ph, True)
            if j == OPT.get('vj', 9) and not OPT.get('nokv'):
                q.push(f's_add_u32 s{sT1}, s{sKV}, {WS_V - WS_K}')
                for i in range(2):
                    vsop = q.push(f'buffer_load_dwordx4 {v(VS[i], 4)}, v{vL16}, {WSR}, s{sT1} offen offset:{1024 * i} sc1 nt')
            if j == 13:
                q.push(f's_lshl_b32 s{sT0}, s{sLayer}, 6', f's_add_u32 s{sT0}, s{sT0}, s{sS}', f's_add_u32 s{sT0}, s{sT0}, 2',
                       f's_cmp_eq_u32 s{sS}, {NSEG - 1}', f's_cselect_b32 s{sT0}, 0, s{sT0}')
            if j == OPT.get('kj', 15) and OPT.get('kp', 5) == 4:
                q.drain()
                q.need(*kop.values())
                em('s_barrier')
                kv_check(em, ool)
                q.push(*k_txt())
        if f in LSLOT:
            if lq:
                nf = lq.pop(0)
                op[nf] = q.push(*ll_txt(nf, lbuf[f])); lbuf[nf] = lbuf[f]
            else:
                kpush(lbuf[f]); kpush(lbuf[f] + 4)
        if d in LEND:
            kpush(SBR[SBUF[f]]); kpush(SBR[SBUF[f]] + 4)
        if d in hold:
            q.push(f's_lshl_b32 s{sT2}, s{sLayer}, 6', f's_add_u32 s{sT2}, s{sT2}, s{sS}', f'v_mov_b32 v{SB[0]}, s{sT2}',
                   f'buffer_store_dword v{SB[0]}, off, {WSR}, s{sFlag} offset:24 sc1')
        q.drain(2)
    if OPT.get('nokv'):
        vsop = None
    assert len(KREG) == 8
    stamp(em, 1, ph)
    em.nops(OPT.get('x1', 0))
    smf(accV, abuf[17], FID[('v', 17)])
    q.drain()
    smf(accV, abuf[18], FID[('v', 18)])
    em(f'v_cvt_pk_bf16_f32 v{accQ}, v{accQ}, v{accQ + 1}')
    em(f'v_cvt_pk_bf16_f32 v{accQ + 1}, v{accQ + 2}, v{accQ + 3}')
    q.now(f'ds_write_b64 v{vQXw}, {v(accQ, 2)} offset:{L_QX}')
    em(f'v_cvt_pk_bf16_f32 v{accK}, v{accK}, v{accK + 1}')
    em(f'v_cvt_pk_bf16_f32 v{accK + 1}, v{accK + 2}, v{accK + 3}')
    wq = q.now(f'ds_write_b64 v{vQXw}, {v(accK, 2)} offset:{L_KX}')
    smf(accV, abuf[19], FID[('v', 19)])
    q.now(f'buffer_store_dwordx2 {v(accK, 2)}, v{vQXw}, {WSR}, s{sKM} offen sc1')
    q.need(wq, *kop.values())
    em('s_barrier')

    def trd(reg, base, st):
        return [f'ds_read_b64_tr_b16 {v(reg, 2)}, v{vTr} offset:{base + st * 512}',
                f'ds_read_b64_tr_b16 {v(reg + 2, 2)}, v{vTr} offset:{base + st * 512 + 256}']

    QF = [X4, accQ, accK, KREG[0]]
    qop = [q.now(*trd(QF[st], L_QX, st)) for st in range(3)]
    op[SLIST[0][3]] = q.now(*sl_txt(SLIST[0][3]))
    VM = accV
    em(f'v_cvt_pk_bf16_f32 v{VM}, v{accV}, v{accV + 1}')
    em(f'v_cvt_pk_bf16_f32 v{VM + 1}, v{accV + 2}, v{accV + 3}')
    q.now(f'buffer_store_dwordx2 {v(VM, 2)}, v{vQXw}, {WSR}, s{sKM} offen offset:2048 sc1')
    em(f's_add_u32 s{sKM}, s{sKM}, {32 * 4096}')
    em(f's_cmp_eq_u32 s{sS}, {NSEG - 1}')
    em('s_cbranch_scc1 CH_LAYER_END')
    if OPT.get('kp', 5) == 3:
        kv_check(em, ool)
        q.push(*k_txt())
    KM = [KREG[4], KREG[1], KREG[5], KREG[2]]
    kmop = {}
    for st in range(4):
        q.need(qop[st])
        for t, acc in ((0, S0), (1, S1)):
            c = '0' if st == 0 else v(acc, 4)
            em(f'{MF} {v(acc, 4)}, {v(KREG[4 * t + st], 4)}, {v(QF[st], 4)}, {c}')
            if st == 0 and t == 0:
                qop.append(q.push(*trd(QF[3], L_QX, 3)))
            if st == 0 and t == 1:
                kmop[0] = q.push(*trd(KM[0], L_KX, 0))
            if st == 1:
                kmop[1 + t] = q.push(*trd(KM[1 + t], L_KX, 1 + t))
            if st == 2 and t == 0:
                kmop[3] = q.push(*trd(KM[3], L_KX, 3))
            if st == 3 and t == 1:
                op[SLIST[2][2]] = q.push(*sl_txt(SLIST[2][2]))
            q.drain(2)
    assert {KREG[0], KREG[4]} == {SB[1], SB[1] + 4} and {KREG[3], KREG[7]} == {SB[2], SB[2] + 4}
    ONES = KREG[6]
    A_, B_ = T0, T1
    for st in range(4):
        q.need(kmop[st])
        c = '0' if st == 0 else v(S2, 4)
        em(f'{MF} {v(S2, 4)}, {v(KM[st], 4)}, {v(QF[st], 4)}, {c}')
        em(f'v_mov_b32 v{ONES + st}, 0x3f803f80')
        if st == 2:
            em(f'v_max3_f32 v{A_}, v{S0}, v{S0 + 1}, v{S0 + 2}')
        if st == 3:
            em(f'v_max3_f32 v{A_}, v{A_}, v{S0 + 3}, v{S1}')
    stamp(em, 2, ph)
    op[SLIST[1][2]] = q.now(*sl_txt(SLIST[1][2]))
    KP = OPT.get('kp', 5)
    if KP == 0:
        kv_check(em, ool)
        q.now(*k_txt())
    em(f'v_max3_f32 v{A_}, v{A_}, v{S1 + 1}, v{S1 + 2}')
    em(f'v_max_f32 v{A_}, v{A_}, v{S1 + 3}')
    em(f'v_add_u32 v0, s{sOXw}, v{vTA}')
    WA = [accV, S0, S1, S2, X4]
    em(f'v_mov_b64 {v(X4, 2)}, 0')
    em(f'v_mov_b64 {v(X4 + 2, 2)}, 0')
    em(f'v_mov_b64 {v(accV + 2, 2)}, 0')
    em(f'v_max3_f32 v{A_}, v{A_}, v{S2}, v{S2 + 1}')
    em(f'v_max3_f32 v{A_}, v{A_}, v{S2 + 2}, v{S2 + 3}')
    em(f'v_mov_b32 v{B_}, v{A_}')
    em(f's_mov_b64 vcc, {s(sMaskLo32, 2)}')
    em('s_nop 0')
    em(f'v_permlane32_swap_b32 v{A_}, v{B_}')
    em(f'v_max_f32 v{A_}, v{A_}, v{B_}')
    em(f'v_mov_b32 v{B_}, v{A_}')
    em(f'v_permlane16_swap_b32 v{A_}, v{B_}')
    em(f'v_max_f32 v{A_}, v{A_}, v{B_}')
    em(f'v_mul_f32 v{A_}, s{sC}, v{A_}')
    em(f'v_mov_b32 v{B_}, v{A_}')
    P01 = accK
    PM = accQ
    for i in range(0, 12, 2):
        em(f'v_pk_fma_f32 {v(S0 + i, 2)}, {v(S0 + i, 2)}, {s(sC2, 2)}, {v(A_, 2)} neg_lo:[0,0,1] neg_hi:[0,0,1]')
    for i in range(12):
        em(f'v_exp_f32 v{S0 + i}, v{S0 + i}')
    kt_ = []
    if KP == 1:
        kv_check(em, ool)
        kt_ = k_txt()
    if KP == 5:
        kv_check(em, ool)
        q.now(*k_txt())
    for i in range(4):
        em(f'v_cvt_pk_bf16_f32 v{P01 + i}, v{S0 + 2 * i}, v{S0 + 2 * i + 1}')
    em(f'v_cvt_pk_bf16_f32 v{PM + 2}, v{S2}, v{S2 + 1}')
    em(f'v_cvt_pk_bf16_f32 v{PM + 3}, v{S2 + 2}, v{S2 + 3}')
    O0, O1, SUM = KREG[1], KREG[5], KREG[2]
    zt = zero_txt(S0, 12)
    em(f'{MF} {v(SUM, 4)}, {v(ONES, 4)}, {v(P01, 4)}, 0')
    q.now(*kt_[:1])
    em(f'v_cndmask_b32 v{PM}, 0, v{PM + 2}, vcc')
    em(f'v_cndmask_b32 v{PM + 1}, 0, v{PM + 3}, vcc')
    q.need(vsop)
    em(f'{MF} {v(O0, 4)}, {v(VS[0], 4)}, {v(P01, 4)}, 0')
    em(f'v_xor_b32 v{PM + 2}, v{PM + 2}, v{PM}')
    em(f'v_xor_b32 v{PM + 3}, v{PM + 3}, v{PM + 1}')
    em(f'{MF} {v(O1, 4)}, {v(VS[1], 4)}, {v(P01, 4)}, 0')
    q.now(*kt_[1:3])
    q.now(zt[0])
    em(f'{MF16} {v(SUM, 4)}, {v(ONES, 2)}, {v(PM, 2)}, {v(SUM, 4)}')
    q.now(*kt_[3:])
    q.now(*zt[1:3])
    em(f'{MF16} {v(O0, 4)}, {v(VM, 2)}, {v(PM, 2)}, {v(O0, 4)}')
    q.now(*zt[3:5])
    em(f'{MF16} {v(O1, 4)}, {v(VM, 2)}, {v(PM + 2, 2)}, {v(O1, 4)}')
    q.now(zt[5])
    q.now(*zero_txt(accV, 2))
    em(f'v_rcp_f32 v{A_}, v{SUM}')
    em('s_nop 0')
    em(f'v_mov_b32 v{B_}, v{A_}')
    for o in (O0, O0 + 2, O1, O1 + 2):
        em(f'v_pk_mul_f32 {v(o, 2)}, {v(o, 2)}, {v(A_, 2)}')
    OF = [AB2, AB3, accQ, accK]
    em(f'v_cvt_pk_bf16_f32 v{OF[0]}, v{O0}, v{O0 + 1}')
    em(f'v_cvt_pk_bf16_f32 v{OF[0] + 1}, v{O0 + 2}, v{O0 + 3}')
    em(f'v_cvt_pk_bf16_f32 v{OF[0] + 2}, v{O1}, v{O1 + 1}')
    em(f'v_cvt_pk_bf16_f32 v{OF[0] + 3}, v{O1 + 2}, v{O1 + 3}')
    wo = q.now(f'ds_write_b128 v0, {v(OF[0], 4)}')
    lq = list(LFR[NL1:])
    for n in range(2):
        nf = lq.pop(0)
        op[nf] = q.push(*ll_txt(nf, LB[n])); lbuf[nf] = LB[n]

    def wstep(p, x, aop_=None, nd=2):
        f = FID[('o', p, x)]
        smf(WA[p], OF[x], f, aop_, reload=(f in SSLOT and SBUF[f] < 2 and not OPT.get('nopt')))
        if f in LSLOT and lq:
            nf = lq.pop(0)
            o = Op(None)
            a_, b_ = ll_txt(nf, lbuf[f])
            q.q[0:0] = [Op(a_), Op(b_)]
            op[nf] = q.q[1]; lbuf[nf] = lbuf[f]
        q.drain(nd)

    em(f'v_add_u32 v{T0}, s{sOXr[1]}, v{vTA}')
    wstep(2, 0)
    em(f'v_add_u32 v{T1}, s{sOXr[2]}, v{vTA}')
    wstep(3, 0)
    em(f'v_add_u32 v0, s{sOXr[3]}, v{vTA}')
    q.need(wo)
    em('s_barrier')
    stamp(em, 3, ph)
    em.nops(OPT.get('x3', 0))
    oop = {}
    for x, t_ in ((1, T0), (2, T1), (3, 0)):
        oop[x] = q.now(f'ds_read_b128 {v(OF[x], 4)}, v{t_}')
    if KP == 2:
        kv_check(em, ool)
        q.push(*k_txt())
    wstep(1, 0); wstep(4, 0); wstep(0, 0)

    def cvt2(dst, acc):
        return [f'v_cvt_pk_bf16_f32 v{dst}, v{acc}, v{acc + 1}',
                f'v_cvt_pk_bf16_f32 v{dst + 1}, v{acc + 2}, v{acc + 3}']

    a4 = WA[4]
    tg = lambda reg: f'v_and_or_b32 v{reg}, v{reg}, -2, s{sTag}'
    PSF = {1: ' sc0', 2: ' nt'}.get(OPT.get('psf'), '')
    st4 = lambda reg, so: f'buffer_store_dwordx4 {v(reg, 4)}, v{vPartSt}, {WSR}, s{so} offen{PSF}'
    EPI = {4: cvt2(a4, a4) + [f'v_mov_b64 {v(a4 + 2, 2)}, {v(a4, 2)}',
                              f'v_permlane32_swap_b32 v{a4}, v{a4 + 2}', f'v_permlane32_swap_b32 v{a4 + 1}, v{a4 + 3}',
                              tg(a4), f's_mov_b64 exec, {s(sMaskLo32, 2)}', st4(a4, sPP + 1), 's_mov_b64 exec, -1'],
           0: cvt2(WA[0], WA[0]) + [tg(WA[0])],
           1: cvt2(WA[0] + 2, WA[1]) + [st4(WA[0], sPart)],
           2: cvt2(WA[2], WA[2]) + [tg(WA[2])],
           3: cvt2(WA[2] + 2, WA[3]) + [st4(WA[2], sPP)]}
    SEL = OF[0]
    pend = []
    age = 0
    WSEQ = [(p, x) for p in (4, 0, 1) for x in (1, 2, 3)] + [(2, 1), (2, 2), (3, 1), (2, 3), (3, 2), (3, 3)]
    for p, x in WSEQ:
        if True:
            if p == 1 and x == 1:
                q.need(*[op[SLIST[b][-1]] for b in range(3)])
            wstep(p, x, oop[x])
            if p == 4 and x == 1:
                selop = q.push(f'ds_read_b128 {v(SEL, 4)}, v{vL16} offset:{L_SEL}')
            age += 1
            if age >= 2:
                k = 0
                while pend and (k < 2 or 'exec, -1' in pend[0] or 'buffer_store' in pend[0]):
                    if 'exec, s' in pend[0] and (p, x) < (1, 1) and p != 4 or ('exec, s' in pend[0] and p == 4):
                        break
                    q.now(pend.pop(0)); k += 1
        if x == 3:
            if not pend:
                age = 0
            pend += EPI[p]
    q.drain()
    em(f's_mov_b32 s{sSpin}, 0')
    em(f's_cmp_eq_u32 s{sIsRed}, 0')
    q.need(selop)
    q.now(*pend)
    stamp(em, 4, ph)
    if ph:
        em(f's_cmp_eq_u32 s{sIsRed}, 0')
    em('s_cbranch_scc1 %s' % ('CH_NORED' if OPT.get('stl') else 'CH_RED_DONE'))
    PD = LB[0]
    PLF = {1: 'sc0 sc1', 2: 'nt', 3: 'sc1 nt'}.get(OPT.get('plf'), 'sc1')
    D = OF[1]
    NEG, m = T0, T1
    em(f'v_mov_b32 v{NEG}, -1')
    if OPT.get('ack'):
        em('s_waitcnt vmcnt(0)')
        if OPT.get('abs') or OPT.get('acks'):
            stamp(em, 7, ph)
    em.nops(OPT.get('d1', 0))
    if OPT.get('mp1'):
        MK = [86, 88, 90, 92] if not ph else [12, 14, 16, 18]
        tq = [S0, S0 + 1, S0 + 2, S0 + 3]

        def ld(n):
            em(f'buffer_load_dwordx4 {v(PD + 4 * n, 4)}, v{vPartLd}, {WSR}, s{sPart} offen offset:{1024 * n} sc1')

        def check(base):
            for n in range(4):
                em(f's_waitcnt vmcnt({base - n})')
                c = '0' if n == 0 else v(D, 4)
                em(f'{MF} {v(D, 4)}, {v(SEL, 4)}, {v(PD + 4 * n, 4)}, {c}')
                em(f'v_and_b32 v{tq[n]}, 1, v{PD + 4 * n}')
                em(f'v_cmp_ne_u32 {s(MK[n], 2)}, s{sTag}, v{tq[n]}')
            em(f's_or_b64 vcc, {s(MK[0], 2)}, {s(MK[1], 2)}')
            em(f's_or_b64 {s(34, 2)}, {s(MK[2], 2)}, {s(MK[3], 2)}')
            em(f's_or_b64 vcc, vcc, {s(34, 2)}')

        def reissue():
            for n in range(4):
                em(f's_mov_b64 exec, {s(MK[n], 2)}')
                ld(n)
            em('s_mov_b64 exec, -1')
        for n in range(4):
            ld(n)
        check(3)
        em('s_cbranch_scc1 CH_P1R')
        em.label('CH_P1OK')
        p1ool = (check, reissue)
    else:
        em.label('CH_POLL1')
        for n in range(4):
            em(f'buffer_load_dwordx4 {v(PD + 4 * n, 4)}, v{vPartLd}, {WSR}, s{sPart} offen offset:{1024 * n} {PLF}')
        em(f's_add_u32 s{sSpin}, s{sSpin}, 1')
        em(f's_cmp_gt_u32 s{sSpin}, {SPIN_LIMIT}')
        em('s_cbranch_scc1 ABORT')
        if ph and not OPT.get('ph2') and not OPT.get('abs') and not OPT.get('acks') and not OPT.get('n2'):
            em(f's_add_u32 s{sAcc + 7}, s{sAcc + 7}, 1')
        for n in range(4):
            em(f's_waitcnt vmcnt({3 - n})')
            c = '0' if n == 0 else v(D, 4)
            em(f'{MF} {v(D, 4)}, {v(SEL, 4)}, {v(PD + 4 * n, 4)}, {c}')
            if n == 0:
                em(f'v_xor_b32 v{m}, s{sTag}, v{PD}')
            else:
                em(f'v_bitop3_b32 v{m}, v{m}, v{PD + 4 * n}, s{sTag} bitop3:0xf6')
        em(f'v_and_b32 v{m}, 1, v{m}')
        em(f'v_cmp_ne_u32 vcc, 0, v{m}')
        em('s_cbranch_vccnz CH_POLL1')
    stamp(em, 5, ph)
    for i in range(4):
        em(f'v_add_f32_dpp v{D + i}, v{D + i}, v{D + i} row_ror:8 row_mask:0xf bank_mask:0xf')
    em(f'v_cvt_pk_bf16_f32 v{D}, v{D}, v{D + 1}')
    em(f'v_cvt_pk_bf16_f32 v{D + 1}, v{D + 2}, v{D + 3}')
    em(f'v_cndmask_b32 v{D}, v{D}, v{D + 1}, {s(sMaskHi8, 2)}')
    em(f'v_min_u32 v{D}, -2, v{D}')
    em(f'buffer_store_dword v{D}, v{vMemSt}, {WSR}, s{sMemWr} offen')
    em(f'buffer_store_dword v{NEG}, v{vMemSt}, {WSR}, s{sMemRst} offen')
    if hist:
        em(f's_mul_i32 s{sT0}, s{sT}, 10240')
        em(f's_add_u32 s{sT0}, s{sT0}, {WS_HIST}')
        em(f'buffer_store_dword v{D}, v{vMemSt}, {WSR}, s{sT0} offen')
    em.label('CH_RED_DONE')
    em(f's_mul_i32 s{sT0}, s{sW}, 2560')
    em(f'v_add_u32 v{T0}, s{sT0}, v{vL16}')
    em(f'v_lshrrev_b32 v{T1}, 1, v{vL16}')
    em(f'v_add_u32 v{T1}, s{sT0}, v{T1}')
    em(f's_mov_b32 s{sMemRd}, s{sMemWr}')
    em(f's_add_u32 s{sT}, s{sT}, 1')
    em(f's_add_u32 s{sS}, s{sS}, 1')
    stamp(em, 6, ph)
    em('s_branch CH_STEP')

    em.label('CH_NORED')
    if OPT.get('stl'):
        em('s_memrealtime s[96:97]')
        em(f's_lshl_b32 s98, s{sT}, 2')
        em(f's_lshl_b32 s99, s{sH}, 9')
        em('s_add_u32 s98, s98, s99')
        em(f's_add_u32 s98, s98, {WS_HIST + 0x1b0000}')
        em('s_waitcnt lgkmcnt(0)')
        em(f'v_mov_b32 v{T0}, s96')
        em(f'v_mov_b32 v{T1}, 0')
        em(f'buffer_store_dword v{T0}, v{T1}, {WSR}, s98 offen')
    em('s_branch CH_RED_DONE')
    for lab, lp in ool:
        kv_slow(em, lab, lp)
    em.label('CH_POLL2R')
    polls()
    em(f's_add_u32 s{sSpin}, s{sSpin}, 1')
    em(f's_cmp_gt_u32 s{sSpin}, {SPIN_LIMIT}')
    em('s_cbranch_scc1 ABORT')
    em('s_branch CH_POLL2')
    if OPT.get('mp1'):
        check, reissue = p1ool
        em.label('CH_P1R')
        em.label('CH_P1L')
        reissue()
        em(f's_add_u32 s{sSpin}, s{sSpin}, 1')
        em(f's_cmp_gt_u32 s{sSpin}, {SPIN_LIMIT}')
        em('s_cbranch_scc1 ABORT')
        check(3)
        em('s_cbranch_scc1 CH_P1L')
        em('s_branch CH_P1OK')

    em.label('CH_LAYER_END')
    if KP == 4:
        em(f's_sub_u32 s{sKV}, s{sKV}, {32 * 8192}')
    em(f's_add_u32 s{sLayer}, s{sLayer}, 1')
    em(f's_lshl_b32 s{sT0}, s{sLayer}, 6')
    em(f'v_mov_b32 v{T0}, s{sT0}')
    em(f'v_mov_b32 v{T1}, 24')
    em('s_waitcnt vmcnt(0) lgkmcnt(0)')
    em('s_barrier')
    em(f'buffer_store_dword v{T0}, v{T1}, {WSR}, s{sFlag} offen sc1')
    if OPT.get('tl'):
        em(f's_sub_u32 s{sT0}, s{sLayer}, 1')
        tl(em, 4, dyn=sT0)
    if stamps:
        em(f's_memtime {s(sTime + 2, 2)}')
        em('s_waitcnt lgkmcnt(0)')
        em(f's_sub_u32 s{sT0}, s{sTime + 2}, s{sTime}')
        em(f'v_mov_b32 v{T0}, s{sT0}')
        em(f's_lshl_b32 s{sT0}, s{sLayer}, 2')
        em(f's_add_u32 s{sT0}, s{sT0}, 4')
        em(f'v_mov_b32 v{T1}, s{sT0}')
        em(f'buffer_store_dword v{T0}, v{T1}, {s(SDBG, 4)}, 0 offen')
    em(f's_cmp_lt_u32 s{sLayer}, {nlayers}')
    em('s_cbranch_scc1 CH_LAYER')
    em('s_waitcnt vmcnt(0)')
    if ph:
        em(f's_lshl_b32 s{sT0}, s{sH}, 2')
        em(f's_add_u32 s{sT0}, s{sT0}, s{sW}')
        em(f's_lshl_b32 s{sT0}, s{sT0}, 5')
        em(f's_add_u32 s{sT0}, s{sT0}, {WS_HIST + 0x180000}')
        for i in range(NST):
            em(f'v_mov_b32 v{T0}, s{sAcc + i}')
            em(f'v_mov_b32 v{T1}, {4 * i}')
            em(f'buffer_store_dword v{T0}, v{T1}, {WSR}, s{sT0} offen')
        em('s_waitcnt vmcnt(0)')


KORD = [0, 4, 1, 5, 2, 6, 3, 7]
```

```python
import struct, math
from emit import *
from layout import *
import chain as C
from chain import stamp, sAcc, tl, Q, srd, WSR, SPIN_LIMIT, sSpin

MF = 'v_mfma_f32_16x16x32_bf16'
MF16 = 'v_mfma_f32_16x16x16_bf16'
SX, SWM, SW1, SW2, SB1, SB2, SOUT = 12, 16, 20, 24, 28, 40, 44
wR, sW, sLay = 48, 49, 50
t0, t1, t2, t3, t4, t5 = 51, 52, 53, 54, 55, 56
sIt, sNeed, sHd, sFl, sA, sB_, sC_, sD_ = 57, 58, 59, 60, 61, 62, 63, 64
sMLo32, sE_, sF_ = 66, 68, 70
sSeg, sMat = 71, 72
g1R, g2R, sNw = 73, 74, 75
OPT = {}


def f32(x):
    return hex(struct.unpack('<I', struct.pack('<f', x))[0])


def wait_flags(em, soff, n, need, va, vb, sleep=4):
    lp = em.newlabel('WF')
    ok = em.newlabel('WFOK')
    em(f's_cmp_lg_u32 s{sW}, 0')
    em(f's_cbranch_scc1 {ok}')
    em(f'v_min_u32 v{va}, {n if isinstance(n, str) else n - 1}, v1')
    em(f'v_lshlrev_b32 v{va}, 2, v{va}')
    em(f's_mov_b32 s{sSpin}, 0')
    em.label(lp)
    em(f'buffer_load_dword v{vb}, v{va}, {WSR}, s{soff} offen sc1')
    em(f's_add_u32 s{sSpin}, s{sSpin}, 1')
    em(f's_cmp_gt_u32 s{sSpin}, {SPIN_LIMIT}')
    em('s_cbranch_scc1 ABORT')
    em('s_waitcnt vmcnt(0)')
    em(f'v_cmp_gt_u32 vcc, {need}, v{vb}')
    em(f's_cbranch_vccz {ok}')
    em(f's_sleep {sleep}')
    em(f's_branch {lp}')
    em.label(ok)
    em('s_barrier')


def publish(em, soff, val, va, vb):
    lab = em.newlabel('PUB')
    em.wait_all()
    em('s_barrier')
    em(f's_cmp_lg_u32 s{sW}, 0')
    em(f's_cbranch_scc1 {lab}')
    em(f'v_mov_b32 v{va}, 0')
    em(f'v_mov_b32 v{vb}, {val}')
    em(f'buffer_store_dword v{vb}, v{va}, {WSR}, s{soff} offen sc1')
    em.label(lab)


def rbf(em, dst, src):
    em(f'v_cvt_pk_bf16_f32 v{dst}, v{src}, v{src}')
    em(f'v_and_b32 v{dst}, 0xffff0000, v{dst}')


def xg_sum(em, a_, b_):
    em(f'v_mov_b32 v{b_}, v{a_}')
    em(f'v_permlane32_swap_b32 v{a_}, v{b_}')
    em(f'v_add_f32 v{a_}, v{a_}, v{b_}')
    em(f'v_mov_b32 v{b_}, v{a_}')
    em(f'v_permlane16_swap_b32 v{a_}, v{b_}')
    em(f'v_add_f32 v{a_}, v{a_}, v{b_}')


def xw_sum(em, a_, tmp4, vwr, vrd, off):
    em(f'ds_write_b32 v{vwr}, v{a_} offset:{off}')
    em('s_waitcnt lgkmcnt(0)')
    em('s_barrier')
    em(f'ds_read_b128 {v(tmp4, 4)}, v{vrd} offset:{off}')
    em('s_waitcnt lgkmcnt(0)')
    em(f'v_add_f32 v{a_}, v{tmp4}, v{tmp4 + 1}')
    em(f'v_add_f32 v{tmp4 + 2}, v{tmp4 + 2}, v{tmp4 + 3}')
    em(f'v_add_f32 v{a_}, v{a_}, v{tmp4 + 2}')


def ln_core(em, X, n, P, vwr, vrd, off, lane_sum, maskfix=None):
    a_, b_, T4, M_, R_ = P, P + 1, P + 2, P + 6, P + 8
    em(f'v_pk_add_f32 {v(a_, 2)}, {v(X, 2)}, {v(X + 2, 2)}')
    for i in range(4, n, 2):
        em(f'v_pk_add_f32 {v(a_, 2)}, {v(a_, 2)}, {v(X + i, 2)}')
    em(f'v_add_f32 v{a_}, v{a_}, v{b_}')
    lane_sum(a_, b_)
    xw_sum(em, a_, T4, vwr, vrd, off)
    em(f'v_mul_f32 v{M_}, {f32(-1.0 / DM)}, v{a_}')
    em(f'v_mov_b32 v{M_ + 1}, v{M_}')
    for i in range(0, n, 2):
        em(f'v_pk_add_f32 {v(X + i, 2)}, {v(X + i, 2)}, {v(M_, 2)}')
    if maskfix:
        maskfix()
    em(f'v_pk_mul_f32 {v(a_, 2)}, {v(X, 2)}, {v(X, 2)}')
    for i in range(2, n, 2):
        em(f'v_pk_fma_f32 {v(a_, 2)}, {v(X + i, 2)}, {v(X + i, 2)}, {v(a_, 2)}')
    em(f'v_add_f32 v{a_}, v{a_}, v{b_}')
    lane_sum(a_, b_)
    xw_sum(em, a_, T4, vwr, vrd, off + 256)
    em(f'v_mul_f32 v{a_}, {f32(1.0 / DM)}, v{a_}')
    rbf(em, a_, a_)
    em(f'v_add_f32 v{a_}, {f32(1e-5)}, v{a_}')
    rbf(em, a_, a_)
    em(f'v_sqrt_f32 v{a_}, v{a_}')
    rbf(em, b_, M_)
    rbf(em, a_, a_)
    em(f'v_rcp_f32 v{R_}, v{a_}')
    em(f'v_sub_f32 v{b_}, v{b_}, v{M_}')
    em(f'v_mov_b32 v{R_ + 1}, v{R_}')
    em(f'v_mul_f32 v{M_}, v{b_}, v{R_}')
    em(f'v_mov_b32 v{M_ + 1}, v{M_}')
    for i in range(0, n, 2):
        em(f'v_pk_fma_f32 {v(X + i, 2)}, {v(X + i, 2)}, {v(R_, 2)}, {v(M_, 2)}')
    if maskfix:
        maskfix()


def unpack(em, dst, src, n):
    for i in range(n):
        em(f'v_and_b32 v{dst + 2 * i + 1}, 0xffff0000, v{src + i}')
        em(f'v_lshlrev_b32 v{dst + 2 * i}, 16, v{src + i}')


vL, vL16 = 1, 2
vG = 3
WK = 4
ACCU = 104
W2R = 136
WQR = 352


def base_setup(em):
    em(f'v_and_b32 v{vL}, 63, v0')
    em(f'v_lshrrev_b32 v{vG}, 6, v0')
    em(f'v_lshlrev_b32 v{vL16}, 4, v{vL}')
    em(f'v_readfirstlane_b32 s{sW}, v{vG}')
    em(f'v_lshrrev_b32 v{vG}, 4, v{vL}')
    em(f's_mov_b32 s{sMLo32}, -1')
    em(f's_mov_b32 s{sMLo32 + 1}, 0')


def ln_tile(em, layer0):
    R, X, P, vwr, vrd, va = WK, WK + 20, WK + 60, WK + 70, WK + 71, WK + 72
    em(f'v_and_b32 v{vrd}, 15, v{vL}')
    if layer0:
        em(f'v_mul_u32_u24 v{va}, 1280, v{vrd}')
        em(f'v_lshl_add_u32 v{va}, v{vG}, 4, v{va}')
        em(f's_mul_i32 s{t0}, s{sIt}, {16 * 1280}')
        em(f's_mul_i32 s{t1}, s{sW}, 320')
        em(f's_add_u32 s{t0}, s{t0}, s{t1}')
        for i in range(5):
            em.vm(f'buffer_load_dwordx4 {v(R + 4 * i, 4)}, v{va}, {s(SX, 4)}, s{t0} offen offset:{64 * i}')
    else:
        em(f's_mul_i32 s{t0}, s{sIt}, 20480')
        em(f's_mul_i32 s{t1}, s{sW}, 5120')
        em(f's_add_u32 s{t0}, s{t0}, s{t1}')
        em(f's_add_u32 s{t0}, s{t0}, {WS_X2}')
        em(f's_add_u32 s{t1}, s{t0}, 4096')
        for i in range(5):
            so, o = (t0, 1024 * i) if i < 4 else (t1, 0)
            em.vm(f'buffer_load_dwordx4 {v(R + 4 * i, 4)}, v{vL16}, {WSR}, s{so} offen offset:{o} sc1')
    em(f'v_lshlrev_b32 v{vrd}, 4, v{vrd}')
    em(f's_lshl_b32 s{t2}, s{sW}, 2')
    em(f'v_add_u32 v{vwr}, s{t2}, v{vrd}')
    em.wait_all()
    unpack(em, X, R, 20)
    ln_core(em, X, 40, P, vwr, vrd, 0, lambda a_, b_: xg_sum(em, a_, b_))
    em(f's_mul_i32 s{t0}, s{sIt}, 20480')
    em(f's_mul_i32 s{t1}, s{sW}, 5120')
    em(f's_add_u32 s{t0}, s{t0}, s{t1}')
    em(f's_mul_i32 s{t1}, s{sLay}, {XB}')
    em(f's_add_u32 s{t0}, s{t0}, s{t1}')
    em(f's_add_u32 s{t0}, s{t0}, {WS_H}')
    em(f's_add_u32 s{t1}, s{t0}, 4096')
    for i in range(5):
        for k in range(4):
            em(f'v_cvt_pk_bf16_f32 v{R + 4 * i + k}, v{X + 8 * i + 2 * k}, v{X + 8 * i + 2 * k + 1}')
        so, o = (t0, 1024 * i) if i < 4 else (t1, 0)
        em.vm(f'buffer_store_dwordx4 {v(R + 4 * i, 4)}, v{vL16}, {WSR}, s{so} offen offset:{o} sc1')


def stage_rows128(em, sr, nrows, stride, soff, va):
    assert nrows % 32 == 0
    em(f'v_lshrrev_b32 v{va}, 3, v{vL}')
    em(f's_mov_b32 s{t2}, {stride}')
    em(f'v_mul_lo_u32 v{va}, v{va}, s{t2}')
    em(f'v_and_b32 v{va + 1}, 7, v{vL}')
    em(f'v_lshl_add_u32 v{va}, v{va + 1}, 4, v{va}')
    em(f's_mul_i32 s{t2}, s{sW}, {8 * stride}')
    em(f's_add_u32 s{t2}, s{t2}, s{soff}')
    em(f's_lshl_b32 s{t3}, s{sW}, 10')
    for i in range(nrows // 32):
        em(f's_add_u32 m0, s{t3}, {4096 * i}')
        if i:
            em(f's_add_u32 s{t2}, s{t2}, {32 * stride}')
        else:
            em('s_nop 0')
        em.vm(f'buffer_load_dwordx4 v{va}, {s(sr, 4)}, s{t2} offen lds')
    em.wait_all()
    em('s_barrier')


def gw_init(em):
    va, vt = WK, WK + 2
    em(f's_load_dwordx2 {s(t2, 2) if t2 % 2 == 0 else s(t3, 2)}, s[0:1], {KA_WK}')
    em(f's_load_dwordx2 {s(SWM, 2)}, s[0:1], {KA_WQ}')
    em(f's_load_dwordx2 {s(sD_, 2)}, s[0:1], {KA_WV}')
    em(f's_mov_b32 s{SWM + 2}, {DM * H * DH * 2}')
    em(f's_mov_b32 s{SWM + 3}, 0x20000')
    em(f's_lshr_b32 s{sMat}, s{wR}, 6')
    em('s_waitcnt lgkmcnt(0)')
    pk = t2 if t2 % 2 == 0 else t3
    em(f's_cmp_eq_u32 s{sMat}, 1')
    em(f's_cselect_b64 {s(SWM, 2)}, {s(pk, 2)}, {s(SWM, 2)}')
    em(f's_cmp_eq_u32 s{sMat}, 2')
    em(f's_cselect_b64 {s(SWM, 2)}, {s(sD_, 2)}, {s(SWM, 2)}')
    em(f's_and_b32 s{t0}, s{wR}, 63')
    em(f's_lshl_b32 s{t0}, s{t0}, 7')
    stage_rows128(em, SWM, 640, 8192, t0, va)
    em(f'v_bfe_u32 v{vt}, v{vL}, 2, 2')
    em(f'v_lshl_add_u32 v{vt}, v{vG}, 3, v{vt}')
    em(f'v_lshlrev_b32 v{vt}, 7, v{vt}')
    em(f'v_and_b32 v{vt + 1}, 3, v{vL}')
    em(f'v_lshl_add_u32 v{vt}, v{vt + 1}, 3, v{vt}')
    em(f's_and_b32 s{t0}, s{sW}, 1')
    em(f's_lshl_b32 s{t0}, s{t0}, 6')
    em(f'v_add_u32 v{vt}, s{t0}, v{vt}')
    em(f'v_add_u32 v{vt + 1}, {10 * 4096}, v{vt}')
    for ks in range(20):
        for ct in range(2):
            for jh in range(2):
                reg = WQR + (ks * 2 + ct) * 4 + 2 * jh
                b = vt if ks < 10 else vt + 1
                em.ds(f'ds_read_b64_tr_b16 {r(reg, 2)}, v{b} offset:{(ks % 10) * 4096 + jh * 512 + ct * 32}')
        if ks % 3 == 2:
            em('s_waitcnt lgkmcnt(0)')
    em.wait_all()
    em('s_barrier')


def w2_init(em):
    va, vt, TM = WK, WK + 2, WK + 8
    em(f's_cmp_ge_u32 s{g2R}, 160')
    em('s_cbranch_scc1 GW_NOW2')
    em(f's_and_b32 s{t0}, s{g2R}, 15')
    em(f's_lshl_b32 s{t4}, s{t0}, 8')
    em(f's_lshl_b32 s{t0}, s{t0}, 2')
    em(f's_add_u32 s{t0}, s{t0}, s{sW}')
    em(f's_mul_i32 s{t5}, s{t0}, {54 * 1024}')
    em(f's_add_u32 s{t5}, s{t5}, {WS_W2S}')
    em(f'v_lshlrev_b32 v{va}, 12, v{vG}')
    em(f'v_and_b32 v{va + 1}, 15, v{vL}')
    em(f'v_lshl_add_u32 v{va}, v{va + 1}, 4, v{va}')
    em(f's_lshl_b32 s{t2}, s{sW}, 14')
    em(f's_add_u32 s{t4}, s{t4}, s{t2}')
    em(f's_lshl_b32 s{t3}, s{sW}, 10')
    em(f'v_lshrrev_b32 v{vt}, 2, v{vL}')
    em(f'v_lshlrev_b32 v{vt}, 8, v{vt}')
    em(f'v_and_b32 v{vt + 1}, 3, v{vL}')
    em(f'v_lshl_add_u32 v{vt}, v{vt + 1}, 3, v{vt}')
    em(f's_lshl_b32 s{t0}, s{sW}, 6')
    em(f'v_add_u32 v{vt}, s{t0}, v{vt}')
    em(f'v_add_u32 v{vt + 1}, {6 * 8192}, v{vt}')
    em(f'v_add_u32 v{vt + 2}, {12 * 8192}, v{vt}')
    for rnd in range(3):
        for i in range(36):
            em(f's_add_u32 m0, s{t3}, {4096 * i}')
            em(f's_add_u32 s{t2}, s{t4}, {(576 * rnd + 16 * i) * 4096}')
            em.vm(f'buffer_load_dwordx4 v{va}, {s(SW2, 4)}, s{t2} offen lds')
        em.wait_all()
        em('s_barrier')
        for k in range(18):
            for tt in range(2):
                for jh in range(2):
                    reg = (W2R + (18 * rnd + k) * 4 if tt == 0 else TM + 4 * k) + 2 * jh
                    em.ds(f'ds_read_b64_tr_b16 {r(reg, 2)}, v{vt + k // 6} offset:{(k % 6) * 8192 + jh * 4096 + 32 * tt}')
            if k % 3 == 2:
                em('s_waitcnt lgkmcnt(0)')
        em.wait_all()
        for k in range(18):
            if k % 4 == 0:
                em(f's_add_u32 s{t2}, s{t5}, {(18 * rnd + k) * 1024}')
            em(f'buffer_store_dwordx4 {v(TM + 4 * k, 4)}, v{vL16}, {WSR}, s{t2} offen offset:{1024 * (k % 4)} sc1')
        em('s_barrier')
    em.wait_all()
    em.label('GW_NOW2')


def qkv_phase(em):
    ACC = WK
    HF = WK + 16
    ST = WK + 48
    va, vb, vrd = WK + 56, WK + 57, WK + 58
    sHs, sOut, sProg = sA, sB_, sC_
    em(f's_lshr_b32 s{t0}, s{sW}, 1')
    em(f's_mul_i32 s{t0}, s{t0}, 40960')
    em(f'v_add_u32 v{vrd}, s{t0}, v{vL16}')
    em(f'v_add_u32 v{vrd + 1}, 81920, v{vrd}')
    em(f's_mul_i32 s{sHs}, s{sLay}, {XB}')
    em(f's_mul_i32 s{t0}, s{sW}, 20480')
    em(f's_add_u32 s{sHs}, s{sHs}, s{t0}')
    em(f's_add_u32 s{sHs}, s{sHs}, {WS_H}')
    em(f's_lshl_b32 s{sOut}, s{sMat}, 25')
    em(f's_add_u32 s{sOut}, s{sOut}, {WS_Q}')
    em(f's_lshl_b32 s{t0}, s{sLay}, 24')
    em(f's_add_u32 s{sOut}, s{sOut}, s{t0}')
    em(f's_lshr_b32 s{t0}, s{sW}, 1')
    em(f's_lshl_b32 s{t0}, s{t0}, 18')
    em(f's_add_u32 s{sOut}, s{sOut}, s{t0}')
    em(f's_bfe_u32 s{t0}, s{wR}, 0x50001')
    em(f's_lshl_b32 s{t1}, s{t0}, 13')
    em(f's_add_u32 s{sOut}, s{sOut}, s{t1}')
    em(f's_lshl_b32 s{sProg}, s{t0}, 7')
    em(f's_and_b32 s{t0}, s{wR}, 1')
    em(f's_lshl_b32 s{t1}, s{sMat}, 1')
    em(f's_add_u32 s{t1}, s{t1}, s{t0}')
    em(f's_lshl_b32 s{t1}, s{t1}, 2')
    em(f's_add_u32 s{sProg}, s{sProg}, s{t1}')
    em(f's_add_u32 s{sProg}, s{sProg}, {WS_HFLAG}')
    em(f's_lshl_b32 s{t0}, s{t0}, 1')
    em(f's_and_b32 s{t1}, s{sW}, 1')
    em(f's_add_u32 s{t0}, s{t0}, s{t1}')
    em(f's_cmp_eq_u32 s{sMat}, 2')
    em(f's_cselect_b32 s{t1}, 11, 10')
    em(f's_movk_i32 s{sD_}, 4096')
    em(f's_cselect_b32 s{sD_}, 1024, s{sD_}')
    em(f's_lshl_b32 s{t0}, s{t0}, s{t1}')
    em(f's_add_u32 s{sOut}, s{sOut}, s{t0}')
    em(f's_add_u32 s{sE_}, s{sOut}, s{sD_}')
    em(f's_cmp_eq_u32 s{sLay}, 0')
    em(f's_movk_i32 s{sFl}, {WS_XTF}')
    em(f's_cselect_b32 s{sFl}, {WS_HTF}, s{sFl}')
    em(f's_cselect_b32 s{sNw}, 3, 9')
    em(f's_lshl_b32 s{sNeed}, s{sLay}, 6')
    em(f's_mul_i32 s{sF_}, s{sW}, 20480')

    def fetch(buf):
        wait_flags(em, sFl, f's{sNw}', 1, va, vb)
        em(f's_cmp_eq_u32 s{sLay}, 0')
        em(f's_cselect_b32 s{t0}, 16, {64 * buf}')
        em(f's_add_u32 s{sFl}, s{sFl}, s{t0}')
        for i in range(5):
            em(f's_add_u32 m0, s{sF_}, {buf * 81920 + 4096 * i}')
            em(f's_add_u32 s{t0}, s{sHs}, {4096 * i}')
            for k in range(4):
                em.vm(f'buffer_load_dwordx4 v{vL16}, {WSR}, s{t0} offen offset:{1024 * k} sc1 lds')
        em(f's_add_u32 s{sHs}, s{sHs}, 81920')

    fetch(0)
    em(f's_mov_b32 s{sIt}, 0')
    em.label('QKV_LOOP')
    for buf in range(2):
        em.wait_all()
        em('s_barrier')
        lab = em.newlabel('QKVP')
        em(f's_cmp_lg_u32 s{sW}, 0')
        em(f's_cbranch_scc1 {lab}')
        em(f'v_mov_b32 v{va}, 0')
        em(f'v_mov_b32 v{vb}, s{sNeed}')
        em(f'buffer_store_dword v{vb}, v{va}, {WSR}, s{sProg} offen sc1')
        em.label(lab)
        lab = em.newlabel('QKVN')
        if buf == 1:
            em(f's_cmp_eq_u32 s{sIt}, 30')
            em(f's_cbranch_scc1 {lab}')
        fetch(1 - buf)
        em.label(lab)
        em.forget()
        isv = em.newlabel('QKVV')
        join = em.newlabel('QKVJ')
        em(f's_cmp_eq_u32 s{sMat}, 2')
        em(f's_cbranch_scc1 {isv}')
        for vt_ in range(2):
            if vt_:
                em.label(isv)
                em.forget()
            tok = {}

            def rd(i):
                tt, ks = i & 1, i >> 1
                tok[i] = em.ds(f'ds_read_b128 {v(HF + 4 * (i % 8), 4)}, v{vrd + buf} offset:{tt * 20480 + ks * 1024}')
            for i in range(8):
                rd(i)
            for i in range(40):
                tt, ks = i & 1, i >> 1
                em.wait(l=tok[i])
                for ct in range(2):
                    acc = ACC + 4 * (2 * ct + tt)
                    wf = r(WQR + (ks * 2 + ct) * 4, 4)
                    hf = v(HF + 4 * (i % 8), 4)
                    c = '0' if ks == 0 else v(acc, 4)
                    em(f'{MF} {v(acc, 4)}, {wf}, {hf}, {c}' if vt_ == 0 else f'{MF} {v(acc, 4)}, {hf}, {wf}, {c}')
                if i + 8 < 40:
                    rd(i + 8)
            for o in range(2):
                for k in range(2):
                    acc = ACC + 4 * ((2 * k + o) if vt_ == 0 else (2 * o + k))
                    em(f'v_cvt_pk_bf16_f32 v{ST + 4 * o + 2 * k}, v{acc}, v{acc + 1}')
                    em(f'v_cvt_pk_bf16_f32 v{ST + 4 * o + 2 * k + 1}, v{acc + 2}, v{acc + 3}')
                em(f'buffer_store_dwordx4 {v(ST + 4 * o, 4)}, v{vL16}, {WSR}, s{sOut if o == 0 else sE_} offen sc1')
            if vt_ == 0:
                em(f's_branch {join}')
        em.label(join)
        em(f's_add_u32 s{sOut}, s{sOut}, {2 * 32 * 8192}')
        em(f's_add_u32 s{sE_}, s{sE_}, {2 * 32 * 8192}')
        em(f's_add_u32 s{sNeed}, s{sNeed}, 2')
    em(f's_add_u32 s{sIt}, s{sIt}, 2')
    em(f's_cmp_lt_u32 s{sIt}, 32')
    em('s_cbranch_scc1 QKV_LOOP')
    publish(em, sProg, f's{sNeed}', va, vb)


def red_task(em):
    LD = WK
    D = WK + 64
    AL, AH = WK + 76, WK + 80
    P = WK + 84
    va, vx, vg_, vwr, vrd, vf = WK + 94, WK + 95, WK + 96, WK + 97, WK + 98, WK + 99
    XR = LD
    em(f'v_and_b32 v{va}, 7, v{vL}')
    em(f'v_lshrrev_b32 v{vx}, 1, v{va}')
    em(f'v_and_b32 v{va}, 1, v{va}')
    em(f'v_lshlrev_b32 v{va}, 4, v{va}')
    em(f'v_mov_b32 v{vg_}, 0x3f80')
    em(f'v_lshlrev_b32 v{va}, v{va}, v{vg_}')
    em(f's_mov_b32 s{t0}, 0xff00ff00')
    em(f's_mov_b32 s{t1}, 0xff00ff00')
    assert t0 % 2 == 1
    em(f's_mov_b32 s{t2}, 0xff00ff00')
    for dd in range(4):
        em(f'v_cmp_eq_u32 vcc, {dd}, v{vx}')
        em(f'v_cndmask_b32 v{AL + dd}, 0, v{va}, vcc')
        em(f'v_cndmask_b32 v{AH + dd}, 0, v{AL + dd}, {s(t1, 2)}')
        em(f'v_cndmask_b32 v{AL + dd}, v{AL + dd}, 0, {s(t1, 2)}')
    em(f's_mov_b32 s{t0}, {APB}')
    em(f'v_mul_lo_u32 v{va}, v{vG}, s{t0}')
    em(f'v_and_b32 v{vx}, 15, v{vL}')
    em(f'v_lshl_add_u32 v{va}, v{vx}, 4, v{va}')
    em(f's_mul_i32 s{t3}, s{sSeg}, {32 * APB}')
    em(f's_mul_i32 s{t0}, s{sIt}, 5120')
    em(f's_add_u32 s{t3}, s{t3}, s{t0}')
    em(f's_mul_i32 s{t0}, s{sW}, 1280')
    em(f's_add_u32 s{t3}, s{t3}, s{t0}')
    em(f's_add_u32 s{t3}, s{t3}, {WS_AP}')
    em(f'v_and_b32 v{vrd}, 3, v{vL}')
    em(f'v_bfe_u32 v{vwr}, v{vL}, 2, 2')
    em(f'v_mul_u32_u24 v{vg_}, 1280, v{vrd}')
    em(f'v_lshl_add_u32 v{vg_}, v{vwr}, 4, v{vg_}')
    em(f'v_lshlrev_b32 v{vf}, 8, v{vwr}')
    em(f'v_lshl_add_u32 v{vf}, v{vrd}, 4, v{vf}')
    em(f'v_and_b32 v{vx}, 1, v{vG}')
    em(f'v_lshl_add_u32 v{vg_}, v{vx}, 3, v{vg_}')
    em(f'v_lshl_add_u32 v{vf}, v{vx}, 3, v{vf}')
    em(f'v_lshrrev_b32 v{vx}, 1, v{vG}')
    em(f'v_lshl_add_u32 v{vg_}, v{vx}, 6, v{vg_}')
    em(f'v_lshl_add_u32 v{vf}, v{vx}, 10, v{vf}')
    em(f'v_lshlrev_b32 v{vrd}, 4, v{vrd}')
    em(f's_lshl_b32 s{t0}, s{sW}, 2')
    em(f'v_add_u32 v{vwr}, s{t0}, v{vrd}')
    em(f's_lshl_b32 s{t0}, s{sSeg}, 3')
    em(f's_add_u32 s{t0}, s{t0}, s{sIt}')
    em(f's_mul_i32 s{t4}, s{t0}, 5120')
    em(f's_mul_i32 s{t5}, s{sW}, 320')
    em(f's_add_u32 s{t4}, s{t4}, s{t5}')
    em(f's_lshr_b32 s{t5}, s{t0}, 2')
    em(f's_mul_i32 s{t5}, s{t5}, 20480')
    em(f's_and_b32 s{t0}, s{t0}, 3')
    em(f's_lshl_b32 s{t0}, s{t0}, 6')
    em(f's_add_u32 s{t5}, s{t5}, s{t0}')
    em(f's_mul_i32 s{t0}, s{sW}, 5120')
    em(f's_add_u32 s{t5}, s{t5}, s{t0}')
    em(f's_lshl_b32 s{sFl}, s{sLay}, 6')
    em(f's_add_u32 s{sFl}, s{sFl}, s{sSeg}')
    em(f's_lshl_b32 s{sFl}, s{sFl}, 7')
    em(f's_add_u32 s{sFl}, s{sFl}, {WS_AWC}')
    wait_flags(em, sFl, 1, 32, P, P + 1)
    tok = {}

    def ld(i):
        n, u = divmod(i, 5)
        if u == 0:
            em(f's_add_u32 s{sA}, s{t3}, {4 * n * APB}')
        tok[i] = em.vm(f'buffer_load_dwordx4 {v(LD + 4 * (i % 16), 4)}, v{va}, {WSR}, s{sA} offen offset:{256 * u} sc1')
    for i in range(16):
        ld(i)
    for i in range(40):
        n, u = divmod(i, 5)
        em.wait(v=tok[i])
        d = D + 4 * (u >> 1)
        c = '0' if (n == 0 and u % 2 == 0) else v(d, 4)
        em(f'{MF} {v(d, 4)}, {v(AH if u & 1 else AL, 4)}, {v(LD + 4 * (i % 16), 4)}, {c}')
        if i + 16 < 40:
            ld(i + 16)
    big = P + 2
    em(f'v_mov_b32 v{big}, 0x40000000')
    em(f'v_cndmask_b32 v{va}, v{big}, v{vg_}, {s(sMLo32, 2)}')
    em(f'v_cndmask_b32 v{vx}, v{big}, v{vf}, {s(sMLo32, 2)}')
    l1 = em.newlabel('REDL1')
    j1 = em.newlabel('REDJ')
    em(f's_cmp_lg_u32 s{sLay}, 0')
    em(f's_cbranch_scc1 {l1}')
    for k in range(3):
        em(f'buffer_load_dwordx2 {v(XR + 2 * k, 2)}, v{vg_ if k < 2 else va}, {s(SX, 4)}, s{t4} offen offset:{128 * k}')
    em(f's_branch {j1}')
    em.label(l1)
    em(f's_add_u32 s{t0}, s{t5}, {WS_X2}')
    em(f's_add_u32 s{sA}, s{t0}, 4096')
    for k in range(3):
        em(f'buffer_load_dwordx2 {v(XR + 2 * k, 2)}, v{vf if k < 2 else vx}, {WSR}, s{t0 if k < 2 else sA} offen offset:{2048 * k if k < 2 else 0} sc1')
    em.label(j1)
    X = LD + 8
    PK = LD + 20
    for k in range(6):
        em(f'v_cvt_pk_bf16_f32 v{PK + k}, v{D + 2 * k}, v{D + 2 * k + 1}')
    unpack(em, D, PK, 6)
    em.wait_all()
    unpack(em, X, XR, 6)
    for k in range(0, 12, 2):
        em(f'v_pk_add_f32 {v(X + k, 2)}, {v(X + k, 2)}, {v(D + k, 2)}')
    for k in range(6):
        em(f'v_cvt_pk_bf16_f32 v{PK + k}, v{X + 2 * k}, v{X + 2 * k + 1}')
    em(f's_mul_i32 s{t0}, s{sLay}, {XB}')
    em(f's_add_u32 s{sA}, s{t0}, s{t5}')
    em(f's_add_u32 s{sA}, s{sA}, {WS_X1}')
    em(f's_add_u32 s{sB_}, s{sA}, 4096')
    em(f's_add_u32 s{t4}, s{t4}, s{t0}')
    em(f's_add_u32 s{t4}, s{t4}, {WS_G}')
    for k in range(3):
        em(f'buffer_store_dwordx2 {v(PK + 2 * k, 2)}, v{vf if k < 2 else vx}, {WSR}, s{sA if k < 2 else sB_} offen offset:{2048 * k if k < 2 else 0} sc1')

    def lane_sum(a_, b_):
        em(f'v_add_f32_dpp v{a_}, v{a_}, v{a_} row_ror:4 row_mask:0xf bank_mask:0xf')
        em(f'v_add_f32_dpp v{a_}, v{a_}, v{a_} row_ror:8 row_mask:0xf bank_mask:0xf')
        xg_sum(em, a_, b_)

    def maskfix():
        for k in range(8, 12):
            em(f'v_cndmask_b32 v{X + k}, 0, v{X + k}, {s(sMLo32, 2)}')
    unpack(em, X, PK, 6)
    ln_core(em, X, 12, P, vwr, vrd, 0, lane_sum, maskfix)
    PK2 = LD + 26
    for k in range(6):
        em(f'v_cvt_pk_bf16_f32 v{PK2 + k}, v{X + 2 * k}, v{X + 2 * k + 1}')
    unpack(em, X, PK2, 6)
    ln_core(em, X, 12, P, vwr, vrd, 512, lane_sum, maskfix)
    for k in range(6):
        em(f'v_cvt_pk_bf16_f32 v{PK2 + k}, v{X + 2 * k}, v{X + 2 * k + 1}')
    for k in range(3):
        em(f'buffer_store_dwordx2 {v(PK2 + 2 * k, 2)}, v{vg_ if k < 2 else va}, {WSR}, s{t4} offen offset:{128 * k} sc1')
    em(f's_lshl_b32 s{t0}, s{sLay}, 11')
    em(f's_lshl_b32 s{t1}, s{sSeg}, 5')
    em(f's_add_u32 s{t0}, s{t0}, s{t1}')
    em(f's_lshl_b32 s{t1}, s{sIt}, 2')
    em(f's_add_u32 s{t0}, s{t0}, s{t1}')
    em(f's_add_u32 s{t0}, s{t0}, {WS_GTF}')
    publish(em, t0, 1, P, P + 1)


L_G1G, L_G1W = 1024, 1024 + 32768


def g1_chunk(em):
    va, vb, vga, vwa = WK, WK + 1, WK + 2, WK + 4
    GF, WF = WK + 8, WK + 40
    em(f's_mul_i32 s{t4}, s{g1R}, 9710')
    em(f's_lshr_b32 s{t4}, s{t4}, 18')
    em(f's_mul_i32 s{t0}, s{t4}, 27')
    em(f's_sub_u32 s{t5}, s{g1R}, s{t0}')
    em(f'v_lshrrev_b32 v{va}, 3, v{vL}')
    em(f'v_bfe_u32 v{vb}, v{vL}, 4, 1')
    em(f'v_lshlrev_b32 v{vb}, 1, v{vb}')
    em(f's_and_b32 s{t0}, s{sW}, 1')
    em(f's_lshl_b32 s{t0}, s{t0}, 2')
    em(f'v_or_b32 v{vb}, s{t0}, v{vb}')
    em(f'v_and_b32 v{vga}, 7, v{vL}')
    em(f'v_xor_b32 v{vb}, v{vb}, v{vga}')
    em(f'v_mul_u32_u24 v{va}, 3456, v{va}')
    em(f'v_lshl_add_u32 v{va}, v{vb}, 4, v{va}')
    em(f's_lshr_b32 s{t0}, s{sSeg}, 2')
    em(f's_mul_i32 s{t1}, s{t0}, {128 * 3456}')
    em(f's_mul_i32 s{t2}, s{sW}, {8 * 3456}')
    em(f's_add_u32 s{t1}, s{t1}, s{t2}')
    em(f's_lshl_b32 s{t2}, s{t5}, 7')
    em(f's_add_u32 s{t1}, s{t1}, s{t2}')
    em(f's_lshl_b32 s{t3}, s{sW}, 10')
    for i in range(4):
        em(f's_add_u32 m0, s{t3}, {L_G1W + 4096 * i}')
        em(f's_add_u32 s{t2}, s{t1}, {32 * 3456 * i}')
        em.vm(f'buffer_load_dwordx4 v{va}, {s(SW1, 4)}, s{t2} offen lds')
    em(f'v_lshlrev_b32 v{vb}, 2, v{vG}')
    em(f'v_and_b32 v{va}, 15, v{vL}')
    em(f'v_xor_b32 v{vb}, v{vb}, v{va}')
    em(f'v_mul_u32_u24 v{va}, 1280, v{vG}')
    em(f'v_lshl_add_u32 v{va}, v{vb}, 4, v{va}')
    em(f's_mul_i32 s{t1}, s{t0}, {128 * 1280}')
    em(f's_mul_i32 s{t2}, s{sW}, {4 * 1280}')
    em(f's_add_u32 s{t1}, s{t1}, s{t2}')
    em(f's_lshl_b32 s{t2}, s{t4}, 8')
    em(f's_add_u32 s{t1}, s{t1}, s{t2}')
    em(f's_mul_i32 s{t2}, s{sLay}, {XB}')
    em(f's_add_u32 s{t1}, s{t1}, s{t2}')
    em(f's_add_u32 s{t1}, s{t1}, {WS_G}')
    em(f's_lshl_b32 s{sFl}, s{sLay}, 11')
    em(f's_lshl_b32 s{t0}, s{t0}, 7')
    em(f's_add_u32 s{sFl}, s{sFl}, s{t0}')
    em(f's_add_u32 s{sFl}, s{sFl}, {WS_GTF}')
    wait_flags(em, sFl, 32, 1, vga, vga + 1, sleep=6)
    for i in range(8):
        em(f's_add_u32 m0, s{t3}, {L_G1G + 4096 * i}')
        em(f's_add_u32 s{t2}, s{t1}, {16 * 1280 * i}')
        em.vm(f'buffer_load_dwordx4 v{va}, {WSR}, s{t2} offen sc1 lds')
    em(f'v_bfe_u32 v{vb}, v{vL}, 2, 2')
    em(f'v_lshl_add_u32 v{va}, v{vG}, 3, v{vb}')
    em(f's_and_b32 s{t0}, s{sW}, 1')
    em(f's_lshl_b32 s{t0}, s{t0}, 1')
    for i in range(2):
        em(f's_add_u32 s{t1}, s{t0}, {i}')
        em(f'v_xor_b32 v{vga + i}, s{t1}, v{vb}')
        em(f'v_lshlrev_b32 v{vga + i}, 6, v{vga + i}')
        em(f'v_lshl_add_u32 v{vga + i}, v{va}, 8, v{vga + i}')
        em(f'v_and_b32 v{vwa}, 3, v{vL}')
        em(f'v_lshl_add_u32 v{vga + i}, v{vwa}, 4, v{vga + i}')
    em(f'v_lshrrev_b32 v{vb}, 1, v{vb}')
    em(f'v_and_b32 v{vwa + 1}, 1, v{vG}')
    em(f'v_lshl_add_u32 v{vb}, v{vwa + 1}, 1, v{vb}')
    em(f'v_lshlrev_b32 v{va}, 7, v{va}')
    em(f'v_lshl_add_u32 v{va}, v{vwa}, 3, v{va}')
    em(f's_lshr_b32 s{t0}, s{sW}, 1')
    em(f's_lshl_b32 s{t0}, s{t0}, 1')
    for i in range(2):
        em(f's_add_u32 s{t1}, s{t0}, {i}')
        em(f'v_xor_b32 v{vwa + i}, s{t1}, v{vb}')
        em(f'v_lshl_add_u32 v{vwa + i}, v{vwa + i}, 5, v{va}')
    em.wait_all()
    em('s_barrier')
    toks = {}

    def rd(ks):
        b = ks & 1
        for t in range(2):
            for jh in range(2):
                em.ds(f'ds_read_b64_tr_b16 {v(WF + 8 * b + 4 * t + 2 * jh, 2)}, v{vwa + t} offset:{L_G1W + ks * 4096 + jh * 512}')
        for dt in range(4):
            for jh in range(2):
                toks[ks] = em.ds(f'ds_read_b64_tr_b16 {v(GF + 16 * b + 4 * dt + 2 * jh, 2)}, v{vga + (dt >> 1)} offset:{L_G1G + ks * 8192 + jh * 1024 + 8 * (dt & 1)}')
    rd(0)
    for ks in range(4):
        em.wait(l=toks[ks])
        if ks < 3:
            rd(ks + 1)
        b = ks & 1
        for t in range(2):
            for dt in range(4):
                acc = ACCU + 4 * (4 * t + dt)
                em(f'{MF} {v(acc, 4)}, {v(WF + 8 * b + 4 * t, 4)}, {v(GF + 16 * b + 4 * dt, 4)}, {v(acc, 4)}')
    em('s_barrier')


def g1_final(em):
    va, BI, E, ST = WK, WK + 2, WK + 16, WK + 24
    em(f's_mul_i32 s{t4}, s{g1R}, 9710')
    em(f's_lshr_b32 s{t4}, s{t4}, 18')
    em(f's_mul_i32 s{t0}, s{t4}, 27')
    em(f's_sub_u32 s{t5}, s{g1R}, s{t0}')
    em(f's_lshr_b32 s{t0}, s{sW}, 1')
    em(f's_lshl_b32 s{t1}, s{t5}, 1')
    em(f's_add_u32 s{t1}, s{t1}, s{t0}')
    em(f's_lshl_b32 s{t2}, s{t1}, 6')
    em(f'v_lshlrev_b32 v{va}, 3, v{vG}')
    em(f'buffer_load_dwordx2 {v(BI, 2)}, v{va}, {s(SB1, 4)}, s{t2} offen')
    em(f'buffer_load_dwordx2 {v(BI + 2, 2)}, v{va}, {s(SB1, 4)}, s{t2} offen offset:32')
    em(f's_and_b32 s{t0}, s{sW}, 1')
    em(f's_lshl_b32 s{t0}, s{t0}, 2')
    em(f's_lshl_b32 s{t3}, s{t4}, 3')
    em(f's_add_u32 s{t0}, s{t0}, s{t3}')
    em(f's_mul_i32 s{t0}, s{t0}, 54')
    em(f's_add_u32 s{t0}, s{t0}, s{t1}')
    em(f's_lshl_b32 s{t0}, s{t0}, 10')
    em(f's_mul_i32 s{t1}, s{sLay}, {UB}')
    em(f's_add_u32 s{t0}, s{t0}, s{t1}')
    em(f's_add_u32 s{t0}, s{t0}, {WS_U}')
    k0 = -2.0 * math.sqrt(2.0 / math.pi) * math.log2(math.e)
    em(f's_mov_b32 s{t2}, {f32(k0 * 0.044715)}')
    em(f'v_mov_b32 v{va + 1}, {f32(k0)}')
    em('s_waitcnt vmcnt(0)')
    unpack(em, BI + 4, BI, 4)
    K1, K0, ONE = WK + 32, WK + 34, WK + 36
    for i in range(2):
        em(f'v_mov_b32 v{K1 + i}, s{t2}')
        em(f'v_mov_b32 v{K0 + i}, v{va + 1}')
        em(f'v_mov_b32 v{ONE + i}, 1.0')
    for dt in range(4):
        E8 = WK + 40 + 8 * (dt & 1)
        prs = [(ACCU + 4 * (4 * t + dt) + 2 * k, E8 + 4 * t + 2 * k, BI + 4 + 4 * t + 2 * k) for t in range(2) for k in range(2)]
        for x, e, b in prs:
            em(f'v_pk_add_f32 {v(x, 2)}, {v(x, 2)}, {v(b, 2)}')
        for x, e, b in prs:
            em(f'v_pk_mul_f32 {v(e, 2)}, {v(x, 2)}, {v(x, 2)}')
        for x, e, b in prs:
            em(f'v_pk_fma_f32 {v(e, 2)}, {v(e, 2)}, {v(K1, 2)}, {v(K0, 2)}')
        for x, e, b in prs:
            em(f'v_pk_mul_f32 {v(e, 2)}, {v(e, 2)}, {v(x, 2)}')
        for i in range(8):
            em(f'v_exp_f32 v{E8 + i}, v{E8 + i}')
        for x, e, b in prs:
            em(f'v_pk_add_f32 {v(e, 2)}, {v(e, 2)}, {v(ONE, 2)}')
        for i in range(8):
            em(f'v_rcp_f32 v{E8 + i}, v{E8 + i}')
        for x, e, b in prs:
            em(f'v_pk_mul_f32 {v(e, 2)}, {v(e, 2)}, {v(x, 2)}')
        for k in range(4):
            em(f'v_cvt_pk_bf16_f32 v{ST + 4 * (dt & 1) + k}, v{E8 + 2 * k}, v{E8 + 2 * k + 1}')
        em(f'buffer_store_dwordx4 {v(ST + 4 * (dt & 1), 4)}, v{vL16}, {WSR}, s{t0} offen sc1')
        em(f's_add_u32 s{t0}, s{t0}, {54 * 1024}')
    em(f's_mul_i32 s{t0}, s{sLay}, 640')
    em(f's_lshl_b32 s{t1}, s{t4}, 7')
    em(f's_add_u32 s{t0}, s{t0}, s{t1}')
    em(f's_lshl_b32 s{t1}, s{t5}, 2')
    em(f's_add_u32 s{t0}, s{t0}, s{t1}')
    em(f's_add_u32 s{t0}, s{t0}, {WS_UTF}')
    publish(em, t0, 1, va, va + 1)


def g2_phase(em):
    va, vb, vo = WK, WK + 1, WK + 2
    UF = WK + 4
    WB = WK + 36
    NWB = 11
    XR = WK + 80
    B2 = WK + 96
    E = UF + 8
    sW2 = sB_
    em(f's_and_b32 s{t4}, s{g2R}, 15')
    em(f's_lshr_b32 s{t5}, s{g2R}, 4')
    em(f's_lshl_b32 s{t0}, s{t4}, 2')
    em(f's_add_u32 s{t0}, s{t0}, s{sW}')
    em(f's_mul_i32 s{sW2}, s{t0}, {54 * 1024}')
    em(f's_add_u32 s{sW2}, s{sW2}, {WS_W2S}')
    wt = {}

    def wld(k):
        if k % 4 == 0:
            em(f's_add_u32 s{sC_}, s{sW2}, {k * 1024}')
        wt[k] = em.vm(f'buffer_load_dwordx4 {v(WB + 4 * (k % NWB), 4)}, v{vL16}, {WSR}, s{sC_} offen offset:{1024 * (k % 4)}')
    for k in range(NWB):
        wld(k)
    em(f'v_and_b32 v{va}, 15, v{vL}')
    em(f'v_lshlrev_b32 v{vb}, 1, v{va}')
    em(f's_lshl_b32 s{t0}, s{t0}, 1')
    em(f's_lshl_b32 s{t1}, s{t0}, 5')
    em.vm(f'buffer_load_ushort v{B2}, v{vb}, {s(SB2, 4)}, s{t1} offen')
    em.vm(f'buffer_load_ushort v{B2 + 2}, v{vb}, {s(SB2, 4)}, s{t1} offen offset:32')
    em(f's_mul_i32 s{sE_}, s{t0}, 20480')
    em(f's_lshl_b32 s{t1}, s{t5}, 11')
    em(f's_add_u32 s{sE_}, s{sE_}, s{t1}')
    em(f'v_mul_u32_u24 v{vo}, 1280, v{va}')
    em(f'v_lshl_add_u32 v{vo}, v{vG}, 4, v{vo}')
    em(f's_mul_i32 s{sF_}, s{t0}, {16 * 1280}')
    em(f's_lshl_b32 s{t1}, s{t5}, 7')
    em(f's_add_u32 s{sF_}, s{sF_}, s{t1}')
    em(f's_lshl_b32 s{t0}, s{t5}, 2')
    em(f's_add_u32 s{t0}, s{t0}, s{sW}')
    em(f's_mul_i32 s{sA}, s{t0}, {54 * 1024}')
    em(f's_mul_i32 s{t1}, s{sLay}, {UB}')
    em(f's_add_u32 s{sA}, s{sA}, s{t1}')
    em(f's_add_u32 s{sA}, s{sA}, {WS_U}')
    em(f's_mul_i32 s{t3}, s{sW}, 6144')
    em(f's_mul_i32 s{sFl}, s{sLay}, 640')
    em(f's_lshr_b32 s{t1}, s{t5}, 1')
    em(f's_lshl_b32 s{t1}, s{t1}, 7')
    em(f's_add_u32 s{sFl}, s{sFl}, s{t1}')
    em(f's_add_u32 s{sFl}, s{sFl}, {WS_UTF}')
    em(f'v_add_u32 v{vb}, {2 * 24576}, v{vL16}')
    em(f'v_add_u32 v{vo + 1}, {4 * 24576}, v{vL16}')
    RB = [vL16, vb, vo + 1]
    wait_flags(em, sFl, 27, 1, E, E + 1, sleep=1)
    tl(em, 6, dyn=sLay, va=E, vb=E + 1)
    ct = {}

    def fetch(c):
        for hf in range(2):
            em(f's_add_u32 m0, s{t3}, {(c % 6) * 24576 + hf * 3072}')
            em(f's_add_u32 s{t1}, s{sA}, {c * 6144 + hf * 3072}')
            for k in range(3):
                ct[c] = em.vm(f'buffer_load_dwordx4 v{vL16}, {WSR}, s{t1} offen offset:{1024 * k} sc1 lds')
    for c in range(5):
        fetch(c)
    em(f's_mul_i32 s{t1}, s{sLay}, {XB}')
    em(f's_add_u32 s{t1}, s{t1}, s{sE_}')
    em(f's_add_u32 s{t1}, s{t1}, {WS_X1}')
    em(f's_add_u32 s{t0}, s{t1}, 20480')
    for tt in range(2):
        for p in range(2):
            em.vm(f'buffer_load_dwordx4 {v(XR + 8 * tt + 4 * p, 4)}, v{vL16}, {WSR}, s{t0 if tt else t1} offen offset:{1024 * p} sc1')
    tok = {}

    def rd(i):
        kf, dt = divmod(i, 4)
        c, k = divmod(kf, 6)
        tok[i] = em.ds(f'ds_read_b128 {v(UF + 4 * (i % 8), 4)}, v{RB[(c % 6) // 2]} offset:{(c & 1) * 24576 + dt * 6144 + k * 1024}')
    nrd = 0
    for kf in range(54):
        c, k = divmod(kf, 6)
        if k == 0:
            for cc in ([0, 1] if c == 0 else [c + 1]):
                if cc < 9:
                    em.wait(v=ct[cc])
            em('s_barrier')
            if c in (0, 1, 5):
                tl(em, {0: 9, 1: 10, 5: 11}[c], dyn=sLay, va=B2 + 1, vb=B2 + 3)
            if c >= 1 and c + 4 < 9:
                fetch(c + 4)
            if c == 0:
                for i in range(8):
                    rd(i)
                nrd = 8
        em.wait(v=wt[kf])
        for dt in range(4):
            i = 4 * kf + dt
            if dt % 2 == 0:
                em.wait(l=tok[i + 1])
            for tt in range(2):
                acc = ACCU + 16 * tt + 4 * dt
                cc = '0' if kf == 0 else v(acc, 4)
                b = r(W2R + 4 * kf, 4) if tt == 0 else v(WB + 4 * (kf % NWB), 4)
                em(f'{MF} {v(acc, 4)}, {v(UF + 4 * (i % 8), 4)}, {b}, {cc}')
            if nrd < 216:
                rd(nrd); nrd += 1
        if kf + NWB < 54:
            wld(kf + NWB)
    tl(em, 12, dyn=sLay, va=B2 + 1, vb=B2 + 3)
    em.wait_all()
    for tt in range(2):
        em(f'v_lshlrev_b32 v{B2 + 2 * tt}, 16, v{B2 + 2 * tt}')
        em(f'v_mov_b32 v{B2 + 2 * tt + 1}, v{B2 + 2 * tt}')
    em(f's_add_u32 s{t1}, s{sE_}, {WS_X2}')
    em(f's_add_u32 s{t0}, s{t1}, 20480')
    em(f's_add_u32 s{t2}, s{sF_}, {16 * 1280}')
    l1 = em.newlabel('G2L1')
    for n in range(4):
        acc = ACCU + 8 * n
        for k in range(4):
            em(f'v_cvt_pk_bf16_f32 v{UF + k}, v{acc + 2 * k}, v{acc + 2 * k + 1}')
        unpack(em, acc, UF, 4)
        for k in range(0, 8, 2):
            em(f'v_pk_add_f32 {v(acc + k, 2)}, {v(acc + k, 2)}, {v(B2 + 2 * (n >> 1), 2)}')
        for k in range(4):
            em(f'v_cvt_pk_bf16_f32 v{UF + k}, v{acc + 2 * k}, v{acc + 2 * k + 1}')
        unpack(em, acc, UF, 4)
        unpack(em, E, XR + 4 * n, 4)
        for k in range(0, 8, 2):
            em(f'v_pk_add_f32 {v(acc + k, 2)}, {v(acc + k, 2)}, {v(E + k, 2)}')
        for k in range(4):
            em(f'v_cvt_pk_bf16_f32 v{XR + 4 * n + k}, v{acc + 2 * k}, v{acc + 2 * k + 1}')
    tl(em, 13, dyn=sLay, va=E, vb=E + 1)
    em(f's_cmp_lg_u32 s{sLay}, 0')
    em(f's_cbranch_scc1 {l1}')
    SQ = WB
    for n in range(4):
        unpack(em, ACCU + 8 * n, XR + 4 * n, 4)
    for tt in range(2):
        X = ACCU + 16 * tt
        a_, b_ = UF, UF + 2
        em(f'v_pk_add_f32 {v(a_, 2)}, {v(X, 2)}, {v(X + 2, 2)}')
        em(f'v_pk_mul_f32 {v(b_, 2)}, {v(X, 2)}, {v(X, 2)}')
        em(f'v_pk_fma_f32 {v(b_, 2)}, {v(X + 2, 2)}, {v(X + 2, 2)}, {v(b_, 2)}')
        for i in range(4, 16, 2):
            em(f'v_pk_add_f32 {v(a_, 2)}, {v(a_, 2)}, {v(X + i, 2)}')
            em(f'v_pk_fma_f32 {v(b_, 2)}, {v(X + i, 2)}, {v(X + i, 2)}, {v(b_, 2)}')
        em(f'v_add_f32 v{SQ + 2 * tt}, v{a_}, v{a_ + 1}')
        em(f'v_add_f32 v{SQ + 2 * tt + 1}, v{b_}, v{b_ + 1}')
    for i in range(4):
        xg_sum(em, SQ + i, UF + i)
    em(f'v_cmp_gt_u32 vcc, 16, v{vL}')
    em(f'v_cndmask_b32 v{SQ}, v{SQ + 2}, v{SQ}, vcc')
    em(f'v_cndmask_b32 v{SQ + 1}, v{SQ + 3}, v{SQ + 1}, vcc')
    em(f'v_min_u32 v{SQ}, -2, v{SQ}')
    em(f'v_min_u32 v{SQ + 1}, -2, v{SQ + 1}')
    em(f'v_and_b32 v{va}, 31, v{vL}')
    em(f'v_lshlrev_b32 v{va}, 3, v{va}')
    em(f's_mul_i32 s{t2}, s{t4}, 10240')
    em(f's_lshl_b32 s{t3}, s{sW}, 8')
    em(f's_add_u32 s{t2}, s{t2}, s{t3}')
    em(f's_add_u32 s{t2}, s{t2}, {WS_ST}')
    em(f's_lshl_b32 s{t3}, s{t5}, 10')
    em(f's_add_u32 s{t3}, s{t3}, s{t2}')
    em(f's_mov_b64 exec, {s(sMLo32, 2)}')
    em(f'buffer_store_dwordx2 {v(SQ, 2)}, v{va}, {WSR}, s{t3} offen sc1')
    em('s_mov_b64 exec, -1')
    for n in range(4):
        em(f'buffer_store_dwordx4 {v(XR + 4 * n, 4)}, v{vL16}, {WSR}, s{t0 if n >> 1 else t1} offen offset:{1024 * (n & 1)} sc1')
    em(f'v_lshrrev_b32 v{vb}, 5, v{vL}')
    em(f'v_mul_u32_u24 v{vb}, 5120, v{vb}')
    em(f'v_add_u32 v{vb}, v{vb}, v{va}')
    em(f's_add_u32 s{t3}, s{t2}, 4096')
    em(f's_mov_b32 s{sSpin}, 0')
    PS = WB + 4
    em.label('G2_ST')
    for i in range(5):
        em(f'buffer_load_dwordx2 {v(PS + 2 * i, 2)}, v{vb}, {WSR}, s{t2 if i < 4 else t3} offen offset:{1024 * (i % 4)} sc1')
    em(f's_add_u32 s{sSpin}, s{sSpin}, 1')
    em(f's_cmp_gt_u32 s{sSpin}, {SPIN_LIMIT}')
    em('s_cbranch_scc1 ABORT')
    em('s_waitcnt vmcnt(0)')
    em(f'v_max3_u32 v{UF}, v{PS}, v{PS + 1}, v{PS + 2}')
    for i in range(3, 9, 2):
        em(f'v_max3_u32 v{UF}, v{UF}, v{PS + i}, v{PS + i + 1}')
    em(f'v_max_u32 v{UF}, v{UF}, v{PS + 9}')
    em(f'v_cmp_eq_u32 vcc, -1, v{UF}')
    em('s_cbranch_vccnz G2_ST')
    for i in range(1, 5):
        em(f'v_pk_add_f32 {v(PS, 2)}, {v(PS, 2)}, {v(PS + 2 * i, 2)}')
    em(f'v_mov_b64 {v(UF, 2)}, {v(PS, 2)}')
    em(f'v_permlane32_swap_b32 v{PS}, v{UF}')
    em(f'v_permlane32_swap_b32 v{PS + 1}, v{UF + 1}')
    em(f'v_pk_add_f32 {v(PS, 2)}, {v(PS, 2)}, {v(UF, 2)}')
    mean, var, R_, B_ = PS, PS + 1, PS + 2, PS + 3
    em(f'v_mul_f32 v{mean}, {f32(1.0 / DM)}, v{mean}')
    em(f'v_mul_f32 v{var}, {f32(1.0 / DM)}, v{var}')
    em(f'v_fma_f32 v{var}, -v{mean}, v{mean}, v{var}')
    em(f'v_max_f32 v{var}, 0, v{var}')
    rbf(em, var, var)
    em(f'v_add_f32 v{var}, {f32(1e-5)}, v{var}')
    rbf(em, var, var)
    em(f'v_sqrt_f32 v{var}, v{var}')
    rbf(em, mean, mean)
    rbf(em, var, var)
    em(f'v_rcp_f32 v{R_}, v{var}')
    em('s_nop 0')
    em(f'v_mul_f32 v{B_}, v{mean}, v{R_}')
    em(f'v_mov_b64 {v(UF, 2)}, {v(R_, 2)}')
    em(f'v_permlane16_swap_b32 v{R_}, v{UF}')
    em(f'v_permlane16_swap_b32 v{B_}, v{UF + 1}')
    for tt in range(2):
        src = R_ if tt == 0 else UF
        em(f'v_mov_b32 v{UF + 4}, v{src}')
        em(f'v_mov_b32 v{UF + 5}, v{src}')
        em(f'v_mov_b32 v{UF + 6}, v{src + 1}')
        em(f'v_mov_b32 v{UF + 7}, v{src + 1}')
        X = ACCU + 16 * tt
        for i in range(0, 16, 2):
            em(f'v_pk_fma_f32 {v(X + i, 2)}, {v(X + i, 2)}, {v(UF + 4, 2)}, {v(UF + 6, 2)} neg_lo:[0,0,1] neg_hi:[0,0,1]')
        em(f's_add_u32 s{t3}, s{t0 if tt else t1}, {WS_H + XB - WS_X2}')
        for p in range(2):
            H4 = WB + 16 + 8 * tt + 4 * p
            for k in range(4):
                em(f'v_cvt_pk_bf16_f32 v{H4 + k}, v{X + 8 * p + 2 * k}, v{X + 8 * p + 2 * k + 1}')
            em(f'buffer_store_dwordx4 {v(H4, 4)}, v{vL16}, {WSR}, s{t3} offen offset:{1024 * p} sc1')
    em(f's_lshl_b32 s{t0}, s{t4}, 6')
    em(f's_lshl_b32 s{t1}, s{t5}, 2')
    em(f's_add_u32 s{t0}, s{t0}, s{t1}')
    em(f's_add_u32 s{t0}, s{t0}, {WS_XTF}')
    publish(em, t0, 1, va, vb)
    em('s_branch G2_DONE')
    em.label(l1)
    for n in range(4):
        em(f'buffer_store_dwordx4 {v(XR + 4 * n, 4)}, v{vo}, {s(SOUT, 4)}, s{t2 if n >> 1 else sF_} offen offset:{64 * (n & 1)}')
    em.label('G2_DONE')


def ht_flag(em):
    em(f's_lshl_b32 s{t0}, s{sLay}, 9')
    em(f's_lshl_b32 s{t1}, s{sIt}, 2')
    em(f's_add_u32 s{t0}, s{t0}, s{t1}')
    em(f's_add_u32 s{t0}, s{t0}, {WS_HTF}')
    publish(em, t0, 1, WK, WK + 1)


def gw_main(em, arrive, wait_start):
    for d, ka, nb in ((SX, KA_X, XB), (SW1, KA_W1, S * F * 2), (SW2, KA_W2, S * F * 2), (SB1, KA_B1, F * 2),
                      (SB2, KA_B2, S * 2), (SOUT, KA_OUT, XB)):
        srd(em, d, ka, nb)
    base_setup(em)
    em(f's_mov_b32 s{sLay}, 0')
    em('s_waitcnt lgkmcnt(0)')
    em(f's_sub_u32 s{t0}, s{wR}, 128')
    em(f's_cmp_ge_u32 s{t0}, {WS_FLAG_BYTES // 1024}')
    em('s_cbranch_scc1 GW_NOZ')
    em(f's_lshl_b32 s{t0}, s{t0}, 10')
    em(f'v_lshlrev_b32 v{WK}, 2, v0')
    em(f'v_mov_b32 v{WK + 1}, 0')
    em(f'buffer_store_dword v{WK + 1}, v{WK}, {WSR}, s{t0} offen sc1')
    em.label('GW_NOZ')
    em(f's_cmp_ge_u32 s{wR}, 40')
    em('s_cbranch_scc1 GW_NOP')
    em(f's_lshl_b32 s{t0}, s{wR}, 12')
    em(f's_add_u32 s{t0}, s{t0}, {WS_ST}')
    em(f'v_lshlrev_b32 v{WK}, 4, v0')
    for i in range(4):
        em(f'v_mov_b32 v{WK + 4 + i}, -1')
    em(f'buffer_store_dwordx4 {v(WK + 4, 4)}, v{WK}, {WSR}, s{t0} offen sc1')
    em.label('GW_NOP')
    arrive(em)
    em(f's_mov_b32 s{sIt}, s{wR}')
    em(f's_cmp_ge_u32 s{wR}, 128')
    em('s_cbranch_scc1 GW_NOLN')
    ln_tile(em, True)
    wait_start(em)
    ht_flag(em)
    em('s_barrier')
    em.label('GW_NOLN')
    tl(em, 1)
    gw_init(em)
    wait_start(em)
    em.label('GW_LAYER')
    tl(em, 2, dyn=sLay)
    qkv_phase(em)
    tl(em, 3, dyn=sLay)
    em(f's_cmp_lg_u32 s{sLay}, 0')
    em('s_cbranch_scc1 GW_NOW2')
    em('s_barrier')
    w2_init(em)
    for i in range(0, 32, 2):
        em(f'v_mov_b64 {v(ACCU + i, 2)}, 0')
    em(f's_mov_b32 s{sSeg}, 0')
    em.label('GW_SEG')
    em(f's_mul_i32 s{t0}, s{sSeg}, 43')
    em(f's_lshr_b32 s{t0}, s{t0}, 8')
    em(f's_mul_i32 s{t0}, s{t0}, 6')
    em(f's_sub_u32 s{t0}, s{sSeg}, s{t0}')
    em(f's_sub_u32 s{t1}, s{wR}, 140')
    em(f's_and_b32 s{sIt}, s{t1}, 7')
    em(f's_lshr_b32 s{t1}, s{t1}, 3')
    em(f's_cmp_lg_u32 s{t0}, s{t1}')
    em('s_cbranch_scc1 GW_NORED')
    red_task(em)
    tl(em, 8, dyn=sLay)
    em('s_barrier')
    em.label('GW_NORED')
    em(f's_and_b32 s{t0}, s{sSeg}, 3')
    em(f's_cmp_lg_u32 s{t0}, 3')
    em('s_cbranch_scc1 GW_NOG1')
    em(f's_cmp_ge_u32 s{g1R}, 135')
    em('s_cbranch_scc1 GW_NOG1')
    g1_chunk(em)
    em.label('GW_NOG1')
    em(f's_add_u32 s{sSeg}, s{sSeg}, 1')
    em(f's_cmp_lt_u32 s{sSeg}, 64')
    em('s_cbranch_scc1 GW_SEG')
    tl(em, 4, dyn=sLay)
    em(f's_cmp_ge_u32 s{g1R}, 135')
    em('s_cbranch_scc1 GW_NOG1F')
    g1_final(em)
    em.label('GW_NOG1F')
    tl(em, 5, dyn=sLay)
    em(f's_cmp_ge_u32 s{g2R}, 160')
    em('s_cbranch_scc1 G2_DONE')
    g2_phase(em)
    tl(em, 7, dyn=sLay)
    em(f's_cmp_lg_u32 s{sLay}, 0')
    em('s_cbranch_scc1 DONE')
    if C.OPT.get('l1'):
        em('s_branch DONE')
    em(f's_mov_b32 s{sLay}, 1')
    em('s_barrier')
    em('s_branch GW_LAYER')


WOR = 192
AWB = 32768


def aw_main(em, arrive, wait_start):
    srd(em, SWM, KA_WO, DM * H * DH * 2)
    base_setup(em)
    em(f's_sub_u32 s{sHd}, s{wR}, 192')
    arrive(em)
    em('s_waitcnt lgkmcnt(0)')
    vt, vq, vkm, vvm, vst = 4, 6, 7, 8, 9
    MSK = 12
    ONES = 24
    CC = 28
    KF, QF, KMF = 32, 64, 80
    SC = 96
    A_ = 108
    P01, PM, SUM = 112, 116, 120
    VF, VMF = 32, 64
    O = 124
    OFR = 80
    WA = 156
    ST = 96
    em(f'v_lshrrev_b32 v{vt}, 2, v{vL}')
    em(f'v_mul_u32_u24 v{vt}, 1280, v{vt}')
    em(f'v_and_b32 v{vt + 1}, 3, v{vL}')
    em(f'v_lshl_add_u32 v{vt}, v{vt + 1}, 4, v{vt}')
    em(f's_lshr_b32 s{t0}, s{sW}, 1')
    em(f's_mul_i32 s{t0}, s{t0}, 640')
    em(f'v_add_u32 v{vt}, s{t0}, v{vt}')
    em(f'v_add_u32 v{vt + 1}, {32 * 1280}, v{vt}')
    em(f's_mul_i32 s{t1}, s{sHd}, {128 * 1280}')
    em(f's_mul_i32 s{t3}, s{sW}, 20480')
    em(f's_add_u32 s{t1}, s{t1}, s{t3}')
    for hf in range(2):
        for i in range(5):
            em(f's_add_u32 m0, s{t3}, {4096 * i}')
            em(f's_add_u32 s{t2}, s{t1}, {hf * 81920 + 4096 * i}')
            for k in range(4):
                em.vm(f'buffer_load_dwordx4 v{vL16}, {s(SWM, 4)}, s{t2} offen offset:{1024 * k} lds')
        em.wait_all()
        em('s_barrier')
        for s2 in range(2):
            st = 2 * hf + s2
            for T in range(20):
                for jh in range(2):
                    reg = WOR + (T * 4 + st) * 4 + 2 * jh
                    em.ds(f'ds_read_b64_tr_b16 {r(reg, 2)}, v{vt + s2} offset:{jh * 16 * 1280 + (T >> 1) * 64 + (T & 1) * 8}')
                if T % 6 == 5:
                    em('s_waitcnt lgkmcnt(0)')
        em.wait_all()
        em('s_barrier')
    em(f's_and_b32 s{t0}, s{sW}, 1')
    em(f's_lshl_b32 s{t1}, s{t0}, 4')
    em(f'v_and_b32 v{A_}, 15, v{vL}')
    em(f'v_add_u32 v{A_}, s{t1}, v{A_}')
    em(f'v_lshlrev_b32 v{A_ + 1}, 2, v{vG}')
    em(f'v_mov_b32 v{A_ + 2}, {f32(-1e30)}')
    for t in range(2):
        for i in range(4):
            em(f'v_add_u32 v{A_ + 3}, {16 * t + i}, v{A_ + 1}')
            em(f'v_cmp_gt_u32 vcc, v{A_ + 3}, v{A_}')
            em(f'v_cndmask_b32 v{MSK + 4 * t + i}, 0, v{A_ + 2}, vcc')
    for i in range(4):
        em(f'v_cndmask_b32 v{MSK + 8 + i}, v{A_ + 2}, 0, {s(sMLo32, 2)}')
        em(f'v_mov_b32 v{ONES + i}, 0x3f803f80')
    em(f'v_mov_b32 v{CC}, {f32((DH ** -0.5) * math.log2(math.e))}')
    em(f'v_mov_b32 v{CC + 1}, v{CC}')
    em(f's_lshl_b32 s{t1}, s{t0}, 12')
    em(f'v_add_u32 v{vq}, s{t1}, v{vL16}')
    em(f'v_lshrrev_b32 v{vkm}, 2, v{vL}')
    em(f'v_lshlrev_b32 v{vkm}, 4, v{vkm}')
    em(f'v_and_b32 v{A_}, 1, v{vL}')
    em(f'v_lshl_add_u32 v{vkm}, v{A_}, 3, v{vkm}')
    em(f'v_and_b32 v{vvm}, 15, v{vL}')
    em(f'v_lshlrev_b32 v{vvm}, 4, v{vvm}')
    em(f'v_and_b32 v{A_}, 1, v{vG}')
    em(f'v_lshl_add_u32 v{vvm}, v{A_}, 3, v{vvm}')
    em(f'v_bfe_u32 v{vst}, v{vL}, 2, 2')
    em(f'v_mul_u32_u24 v{vst}, 5120, v{vst}')
    em(f'v_lshl_add_u32 v{vst}, v{vG}, 6, v{vst}')
    em(f'v_and_b32 v{A_}, 3, v{vL}')
    em(f'v_lshl_add_u32 v{vst}, v{A_}, 4, v{vst}')
    em(f's_mul_i32 s{t1}, s{t0}, 20480')
    em(f's_lshr_b32 s{t2}, s{sW}, 1')
    em(f's_mul_i32 s{t2}, s{t2}, 2560')
    em(f's_add_u32 s{t1}, s{t1}, s{t2}')
    em(f'v_add_u32 v{vst}, s{t1}, v{vst}')
    em(f's_lshl_b32 s{sFl}, s{sHd}, 7')
    em(f's_add_u32 s{sFl}, s{sFl}, {WS_HFLAG}')
    em(f's_lshl_b32 s{sC_}, s{sHd}, 2')
    em(f's_add_u32 s{sC_}, s{sC_}, {WS_AWF}')
    em(f's_mov_b32 s{sA}, {WS_K}')
    em(f's_cmp_eq_u32 s{sW}, 1')
    em(f's_cselect_b32 s{sA}, {WS_V}, s{sA}')
    em(f's_cmp_eq_u32 s{sW}, 2')
    em(f's_cselect_b32 s{sA}, {WS_Q}, s{sA}')
    em(f's_cmp_eq_u32 s{sW}, 3')
    em(f's_cselect_b32 s{sA}, {WS_KM}, s{sA}')
    em(f's_cselect_b32 s{t0}, 12, 13')
    em(f's_lshl_b32 s{t1}, s{sHd}, s{t0}')
    em(f's_add_u32 s{sA}, s{sA}, s{t1}')
    em(f's_lshl_b32 s{sB_}, 32, s{t0}')
    em(f's_lshl_b32 s{sF_}, s{sW}, 13')
    em(f's_mul_i32 s{sD_}, s{sHd}, {APB}')
    em(f's_add_u32 s{sD_}, s{sD_}, {WS_AP}')
    tl(em, 1)
    wait_start(em)
    em(f's_mov_b32 s{sNeed}, 1')
    em(f's_mov_b32 s{sIt}, 0')
    em(f's_add_u32 s{sE_}, s{sFl}, 24')
    vb_ = 10
    BQ, BKM, BVM = 188, 189, 190

    def dma(boff):
        for hf in range(2):
            em(f's_add_u32 s{t1}, s{sF_}, s{boff}')
            em(f's_add_u32 m0, s{t1}, {4096 * hf}')
            em(f's_add_u32 s{t0}, s{sA}, {4096 * hf}')
            for k in range(4):
                em(f'buffer_load_dwordx4 v{vL16}, {WSR}, s{t0} offen offset:{1024 * k} sc1 lds')
            if hf == 0:
                yield
        em(f's_add_u32 s{sA}, s{sA}, s{sB_}')

    sRq, sHave = sSeg, sMat
    em(f's_mov_b32 s{sRq}, 0')
    em(f's_mov_b32 s{sHave}, 0')
    NLAST = 64 if C.OPT.get('l1') else 128

    def poll_min(soff, n, need, once=False):
        lp, ok = em.newlabel('AWP'), em.newlabel('AWPOK')
        em(f's_cmp_ge_u32 s{sRq}, s{need}')
        em(f's_cbranch_scc1 {ok}')
        em(f'v_and_b32 v{A_}, 7, v{vL}')
        em(f'v_min_u32 v{A_}, {n - 1}, v{A_}')
        em(f'v_lshlrev_b32 v{A_}, 2, v{A_}')
        em(f's_mov_b32 s{sSpin}, 0')
        em.label(lp)
        em(f'buffer_load_dword v{A_ + 1}, v{A_}, {WSR}, s{soff} offen sc1')
        em(f's_add_u32 s{sSpin}, s{sSpin}, 1')
        em(f's_cmp_gt_u32 s{sSpin}, {SPIN_LIMIT}')
        em('s_cbranch_scc1 ABORT')
        em('s_waitcnt vmcnt(0)')
        if n > 1:
            em(f'v_min_u32_dpp v{A_ + 1}, v{A_ + 1}, v{A_ + 1} quad_perm:[1,0,3,2] row_mask:0xf bank_mask:0xf')
            em(f'v_min_u32_dpp v{A_ + 1}, v{A_ + 1}, v{A_ + 1} quad_perm:[2,3,0,1] row_mask:0xf bank_mask:0xf')
            em(f'v_min_u32_dpp v{A_ + 1}, v{A_ + 1}, v{A_ + 1} row_half_mirror row_mask:0xf bank_mask:0xf')
        em(f'v_readfirstlane_b32 s{sRq}, v{A_ + 1}')
        em('s_nop 1')
        if not once:
            em(f's_cmp_ge_u32 s{sRq}, s{need}')
            em(f's_cbranch_scc1 {ok}')
            em('s_sleep 1')
            em(f's_branch {lp}')
        em.label(ok)

    def prefetch(need, boff, km):
        lab, l3 = em.newlabel('AWQ'), em.newlabel('AWQ3')
        em(f's_cmp_eq_u32 s{sW}, 3')
        em(f's_cbranch_scc1 {l3}')
        poll_min(sFl, 6, need)
        for _ in dma(boff):
            pass
        em(f's_branch {lab}')
        em.label(l3)
        if km:
            poll_min(sE_, 1, need, once=True)
            em(f's_cmp_lt_u32 s{sRq}, s{need}')
            em(f's_cbranch_scc1 {lab}')
            for _ in dma(boff):
                break
            em(f's_add_u32 s{sA}, s{sA}, s{sB_}')
            em(f's_mov_b32 s{sHave}, 1')
        em.label(lab)

    def flag(val):
        lab = em.newlabel('AWF')
        em(f's_cmp_lg_u32 s{sW}, 0')
        em(f's_cbranch_scc1 {lab}')
        em(f's_sub_u32 s{t0}, s{val}, 1')
        em(f's_cbranch_scc1 {lab}')
        em(f's_lshl_b32 s{t0}, s{t0}, 7')
        em(f's_add_u32 s{t0}, s{t0}, {WS_AWC}')
        em(f'v_mov_b32 v{A_ + 2}, 0')
        em(f'v_mov_b32 v{A_ + 3}, 1')
        em('s_mov_b64 exec, 1')
        em(f'buffer_atomic_add v{A_ + 3}, v{A_ + 2}, {WSR}, s{t0} offen sc1')
        em('s_mov_b64 exec, -1')
        em.label(lab)

    prefetch(sNeed, sIt, False)
    em('s_waitcnt vmcnt(0)')
    ph = C.OPT.get('awph')
    if ph:
        for i in range(8):
            em(f's_mov_b32 s{sAcc + i}, 0')
        em('s_memtime s[94:95]')
        em('s_waitcnt lgkmcnt(0)')
    em.label('AW_SEG')
    em.forget()
    em(f'v_add_u32 v{vb_}, s{sIt}, v{vL16}')
    em(f'v_add_u32 v{BQ}, s{sIt}, v{vq}')
    em(f'v_add_u32 v{BKM}, s{sIt}, v{vkm}')
    em(f'v_add_u32 v{BVM}, s{sIt}, v{vvm}')
    em(f's_cmp_lg_u32 s{sW}, 3')
    em('s_cbranch_scc1 AW_FD')
    em(f's_cmp_lg_u32 s{sHave}, 0')
    em('s_cbranch_scc1 AW_FD')
    poll_min(sE_, 1, sNeed)
    stamp(em, 0, ph)
    for _ in dma(sIt):
        break
    em(f's_add_u32 s{sA}, s{sA}, s{sB_}')
    em('s_waitcnt vmcnt(0)')
    em.label('AW_FD')
    em(f's_mov_b32 s{sHave}, 0')
    em('s_barrier')
    stamp(em, 1, ph)
    em(f's_xor_b32 s{sIt}, s{sIt}, {AWB}')
    qt_ = [em.ds(f'ds_read_b128 {v(QF + 4 * st, 4)}, v{BQ} offset:{16384 + 1024 * st}') for st in range(4)]
    kt = {}
    for st in range(4):
        for t in range(2):
            kt[t, st] = em.ds(f'ds_read_b128 {v(KF + 4 * (4 * t + st), 4)}, v{vb_} offset:{4096 * t + 1024 * st}')
    for st in range(4):
        em.wait(l=kt[1, st])
        for t in range(2):
            c = v(MSK + 4 * t, 4) if st == 0 else v(SC + 4 * t, 4)
            em(f'{MF} {v(SC + 4 * t, 4)}, {v(KF + 4 * (4 * t + st), 4)}, {v(QF + 4 * st, 4)}, {c}')
        if st == 0:
            for s2 in range(4):
                em.ds(f'ds_read_b64_tr_b16 {v(KMF + 4 * s2, 2)}, v{BKM} offset:{24576 + 512 * s2}')
                kt[2, s2] = em.ds(f'ds_read_b64_tr_b16 {v(KMF + 4 * s2 + 2, 2)}, v{BKM} offset:{24576 + 512 * s2 + 256}')
    for st in range(4):
        em.wait(l=kt[2, st])
        c = v(MSK + 8, 4) if st == 0 else v(SC + 8, 4)
        em(f'{MF} {v(SC + 8, 4)}, {v(KMF + 4 * st, 4)}, {v(QF + 4 * st, 4)}, {c}')
    vt_ = {}
    for et in range(8):
        em.ds(f'ds_read_b128 {v(VF + 4 * et, 4)}, v{vb_} offset:{8192 + 1024 * et}')
        vt_[et] = em.ds(f'ds_read_b64 {v(VMF + 2 * et, 2)}, v{BVM} offset:{24576 + 2048 + 256 * et}')
    B_ = A_ + 1
    em(f'v_max3_f32 v{A_}, v{SC}, v{SC + 1}, v{SC + 2}')
    for i in range(3, 11, 2):
        em(f'v_max3_f32 v{A_}, v{A_}, v{SC + i}, v{SC + i + 1}')
    em(f'v_max_f32 v{A_}, v{A_}, v{SC + 11}')
    em(f'v_mov_b32 v{B_}, v{A_}')
    em(f'v_permlane32_swap_b32 v{A_}, v{B_}')
    em(f'v_max_f32 v{A_}, v{A_}, v{B_}')
    em(f'v_mov_b32 v{B_}, v{A_}')
    em(f'v_permlane16_swap_b32 v{A_}, v{B_}')
    em(f'v_max_f32 v{A_}, v{A_}, v{B_}')
    em(f'v_mul_f32 v{A_}, v{CC}, v{A_}')
    em(f'v_mov_b32 v{B_}, v{A_}')
    for i in range(0, 12, 2):
        em(f'v_pk_fma_f32 {v(SC + i, 2)}, {v(SC + i, 2)}, {v(CC, 2)}, {v(A_, 2)} neg_lo:[0,0,1] neg_hi:[0,0,1]')
    for i in range(12):
        em(f'v_exp_f32 v{SC + i}, v{SC + i}')
    for i in range(6):
        em(f'v_cvt_pk_bf16_f32 v{P01 + i}, v{SC + 2 * i}, v{SC + 2 * i + 1}')
    em(f'{MF} {v(SUM, 4)}, {v(ONES, 4)}, {v(P01, 4)}, 0')
    for et in range(8):
        em.wait(l=vt_[et])
        em(f'{MF} {v(O + 4 * et, 4)}, {v(VF + 4 * et, 4)}, {v(P01, 4)}, 0')
    em(f'{MF16} {v(SUM, 4)}, {v(ONES, 2)}, {v(PM, 2)}, {v(SUM, 4)}')
    for et in range(8):
        em(f'{MF16} {v(O + 4 * et, 4)}, {v(VMF + 2 * et, 2)}, {v(PM, 2)}, {v(O + 4 * et, 4)}')
    em(f'v_rcp_f32 v{A_}, v{SUM}')
    em('s_nop 0')
    em(f'v_mov_b32 v{B_}, v{A_}')
    for et in range(8):
        for k in range(2):
            em(f'v_pk_mul_f32 {v(O + 4 * et + 2 * k, 2)}, {v(O + 4 * et + 2 * k, 2)}, {v(A_, 2)}')
            em(f'v_cvt_pk_bf16_f32 v{OFR + 2 * et + k}, v{O + 4 * et + 2 * k}, v{O + 4 * et + 2 * k + 1}')
    stamp(em, 2, ph)
    em('s_waitcnt vmcnt(0)')
    em('s_barrier')
    em(f's_sub_u32 s{t2}, s{sNeed}, 1')
    em(f's_cmp_eq_u32 s{t2}, 64')
    em(f's_cselect_b32 s{t2}, 0, s{t2}')
    flag(t2)
    em(f's_and_b32 s{t2}, s{sNeed}, 63')
    em(f's_cmp_eq_u32 s{t2}, 0')
    em('s_cbranch_scc1 AW_NOPF')
    em(f's_add_u32 s{t2}, s{sNeed}, 1')
    prefetch(t2, sIt, True)
    em.label('AW_NOPF')
    stamp(em, 3, ph)
    STG = [O + 4 * i for i in range(8)] + [SC, SC + 4]
    pend = []
    for p in range(10):
        acc = WA + 8 * (p % 4)
        for st in range(4):
            for t in range(2):
                c = '0' if st == 0 else v(acc + 4 * t, 4)
                em(f'{MF} {v(acc + 4 * t, 4)}, {r(WOR + ((2 * p + t) * 4 + st) * 4, 4)}, {v(OFR + 4 * st, 4)}, {c}')
                if st >= 2 and pend:
                    em(pend.pop(0))
        if p == 9:
            em('s_waitcnt vmcnt(0)')
            for k in range(9):
                em(f'buffer_store_dwordx4 {v(STG[k], 4)}, v{vst}, {WSR}, s{sD_} offen offset:{256 * k} sc1')
        pend = [f'v_cvt_pk_bf16_f32 v{STG[p] + k}, v{acc + 2 * k}, v{acc + 2 * k + 1}' for k in range(4)]
    for i in pend:
        em(i)
    em(f'buffer_store_dwordx4 {v(STG[9], 4)}, v{vst}, {WSR}, s{sD_} offen offset:{256 * 9} sc1')
    stamp(em, 4, ph)
    em(f's_add_u32 s{sD_}, s{sD_}, {32 * APB}')
    em(f's_and_b32 s{t2}, s{sNeed}, 63')
    em(f's_cmp_lg_u32 s{t2}, 0')
    em('s_cbranch_scc1 AW_MID')
    em('s_waitcnt vmcnt(0)')
    em('s_barrier')
    flag(sNeed)
    if C.OPT.get('tl'):
        em(f's_sub_u32 s{t0}, s{sNeed}, 1')
        em(f's_lshr_b32 s{t0}, s{t0}, 6')
        tl(em, 4, dyn=t0, va=A_, vb=A_ + 1)
    em(f's_sub_u32 s{sD_}, s{sD_}, {64 * 32 * APB}')
    em(f's_cmp_eq_u32 s{sNeed}, {NLAST}')
    em('s_cbranch_scc1 AW_MID')
    em(f's_add_u32 s{t2}, s{sNeed}, 1')
    prefetch(t2, sIt, False)
    em('s_waitcnt vmcnt(0)')
    em.label('AW_MID')
    stamp(em, 5, ph)
    em(f's_add_u32 s{sNeed}, s{sNeed}, 1')
    em(f's_cmp_le_u32 s{sNeed}, {64 if C.OPT.get("l1") else 128}')
    em('s_cbranch_scc1 AW_SEG')
    if ph:
        em(f's_lshl_b32 s{t0}, s{sHd}, 2')
        em(f's_add_u32 s{t0}, s{t0}, s{sW}')
        em(f's_lshl_b32 s{t0}, s{t0}, 5')
        em(f's_add_u32 s{t0}, s{t0}, {WS_HIST + 0x1a0000}')
        for i in range(8):
            em(f'v_mov_b32 v{A_}, s{sAcc + i}')
            em(f'v_mov_b32 v{A_ + 1}, {4 * i}')
            em(f'buffer_store_dword v{A_}, v{A_ + 1}, {WSR}, s{t0} offen')
    em('s_branch DONE')
```

```python
from emit import *
from layout import *

SWS, SDBG, SWQ, SWK, SWV, SWO, SM0 = 4, 8, 12, 16, 20, 24, 28
sH, sW, sT, sS, sLayer = 40, 41, 42, 43, 44
sMemRd, sMemWr, sMemRst, sPart, sT0, sT1 = 45, 46, 47, 48, 49, 50
sBase = [None, 51, 52, 53]
sStream, sKV, sKM, sVM, sReady, sIsRed = 54, 55, 56, 57, 58, 59
sMaskHi8, sMaskLo32, sC = 60, 62, 64
sOXw = 65
sOXr = [None, 66, 67, 68]
sSpin, sKm0, sFlag, sT2 = 69, 72, 73, 74
sTime = 76
SPIN_LIMIT = 1 << 20

vL16, vIdx, vLW, vPartSt, vPartLd, vMemSt, vTr, vQXw, vTA = 1, 2, 3, 4, 5, 6, 7, 8, 9
T0, T1 = 10, 11
SB = [12, 20, 28]
LB = [36, 44]
AB2, AB3 = 52, 56
accQ, accK, accV = 60, 64, 68
S0, S1, S2, X4 = 72, 76, 80, 84
RBASE = 88

NFR = 80
OPT = {}
FR = []
for m_ in 'qkv':
    for j in range(20):
        FR.append((m_, j))
for p in range(5):
    for x in range(4):
        FR.append(('o', p, x))
FID = {d: i for i, d in enumerate(FR)}
PH1 = []
for j in range(20):
    PH1 += [('q', j), ('k', j)] + ([('v', j)] if j < 17 else [])
SL_ = [[PH1[1], PH1[23], PH1[50], ('o', 1, 1)],
       [PH1[2], PH1[32], ('o', 2, 2)],
       [PH1[14], PH1[41], ('o', 1, 3)]]
LEND = [PH1[32], PH1[41]]
LF_ = [PH1[i] for i in (4, 7, 10, 16, 19, 25, 28, 34, 37)] + \
      [('o', 4, 0), ('o', 0, 0), ('o', 4, 2), ('o', 0, 1), ('o', 0, 3), ('o', 2, 1), ('o', 3, 1), ('o', 3, 2)]
NL1 = 9
SLIST = [[FID[d] for d in l] for l in SL_]
LFR = [FID[d] for d in LF_]
SFR = sum(SLIST, [])
assert len(LFR) == 17 and not set(LFR) & set(SFR)
RFR = [i for i in range(NFR) if i not in LFR and i not in SFR]
assert RBASE + 8 * len(RFR) <= 512, len(RFR)
RREG = {f: RBASE + 8 * n for n, f in enumerate(RFR)}
LSLOT = {f: n for n, f in enumerate(LFR)}
SSLOT = {f: n for n, f in enumerate(SFR)}
FSLOT = {f: n for n, f in enumerate(RFR + LFR)}
NFS = len(FSLOT)
SBUF = {f: b for b, l in enumerate(SLIST) for f in l}
SBR = SB
sSB = 80
sTag = 33
sPP = 30
sC2 = 70

WSR = s(SWS, 4)


def srd(em, d, ka, nbytes, tmp=None):
    em(f's_load_dwordx2 {s(d, 2)}, s[0:1], {ka}')
    em(f's_mov_b32 {s(d + 2)}, {nbytes}')
    em(f's_mov_b32 {s(d + 3)}, 0x20000')


def chain_init(em, hist=False):
    srd(em, SM0, KA_MEM0, M * DM * 2)
    L, G, A_, B_, C_ = 80, 81, 82, 83, 84
    em.l_done = em.l_iss
    em(f'v_lshrrev_b32 v{A_}, 6, v0')
    em(f'v_and_b32 v{L}, 63, v0')
    em(f'v_readfirstlane_b32 s{sW}, v{A_}')
    em(f'v_lshrrev_b32 v{G}, 4, v{L}')
    em(f'v_lshlrev_b32 v{vL16}, 4, v{L}')
    em(f's_mov_b32 s{sMaskHi8}, 0xff00ff00')
    em(f's_mov_b32 s{sMaskHi8 + 1}, 0xff00ff00')
    em(f's_mov_b32 s{sMaskLo32}, -1')
    em(f's_mov_b32 s{sMaskLo32 + 1}, 0')
    import struct, math
    c = struct.unpack('<I', struct.pack('<f', (DH ** -0.5) * math.log2(math.e)))[0]
    em(f's_mov_b32 s{sC}, {hex(c)}')
    em(f's_mov_b32 s{sC2}, {hex(c)}')
    em(f's_mov_b32 s{sC2 + 1}, {hex(c)}')
    em(f'v_mov_b32 v{A_}, 0x4444')
    em(f'v_mov_b32 v{B_}, 0xeeee')
    em(f'v_cndmask_b32 v{vIdx}, v{A_}, v{B_}, {s(sMaskHi8, 2)}')
    em(f's_mul_i32 s{sT0}, s{sW}, {LW_WAVE}')
    em(f's_add_u32 s{sT0}, s{sT0}, {L_W}')
    em(f'v_add_u32 v{vLW}, s{sT0}, v{vL16}')
    em(f's_mul_i32 s{sT0}, s{sW}, {20 * 4096}')
    em(f's_lshl_b32 s{sT1}, s{sH}, 7')
    em(f's_add_u32 s{sT0}, s{sT0}, s{sT1}')
    em(f'v_lshrrev_b32 v{A_}, 3, v{L}')
    em(f'v_lshlrev_b32 v{A_}, 12, v{A_}')
    em(f'v_and_b32 v{B_}, 7, v{L}')
    em(f'v_lshl_add_u32 v{A_}, v{B_}, 4, v{A_}')
    em(f'v_add_u32 v{vPartSt}, s{sT0}, v{A_}')
    em(f's_lshl_b32 s{sT2}, s{sH}, 1')
    em(f's_add_u32 s{sT2}, s{sT2}, s{sW}')
    em(f's_mov_b32 s{sIsRed}, 1')
    em(f's_cmp_lt_u32 s{sW}, 2')
    em(f's_cbranch_scc1 CH_U_OK')
    em(f's_add_u32 s{sT2}, s{sH}, 64')
    em(f's_cmp_eq_u32 s{sW}, 2')
    em(f's_cselect_b32 s{sT0}, 1, 0')
    em(f's_cmp_lt_u32 s{sH}, 16')
    em(f's_cselect_b32 s{sT1}, 1, 0')
    em(f's_and_b32 s{sIsRed}, s{sT0}, s{sT1}')
    em(f's_mul_i32 s{sT2}, s{sT2}, s{sIsRed}')
    em.label('CH_U_OK')
    em(f'v_bfe_u32 v{A_}, v{L}, 3, 1')
    em(f'v_lshl_add_u32 v{B_}, v{A_}, 2, v{G}')
    em(f'v_lshlrev_b32 v{B_}, 7, v{B_}')
    em(f'v_and_b32 v{C_}, 7, v{L}')
    em(f'v_lshl_add_u32 v{B_}, v{C_}, 4, v{B_}')
    em(f's_lshl_b32 s{sT0}, s{sT2}, 12')
    em(f'v_add_u32 v{vPartLd}, s{sT0}, v{B_}')
    em(f's_lshr_b32 s{sT0}, s{sT2}, 2')
    em(f's_lshl_b32 s{sT0}, s{sT0}, 9')
    em(f's_and_b32 s{sT1}, s{sT2}, 1')
    em(f's_lshl_b32 s{sT1}, s{sT1}, 8')
    em(f's_add_u32 s{sT0}, s{sT0}, s{sT1}')
    em(f's_bfe_u32 s{sT1}, s{sT2}, 0x10001')
    em(f's_lshl_b32 s{sT1}, s{sT1}, 6')
    em(f's_add_u32 s{sT0}, s{sT0}, s{sT1}')
    em(f'v_lshl_add_u32 v{A_}, v{G}, 1, v{A_}')
    em(f'v_lshlrev_b32 v{A_}, 4, v{A_}')
    em(f'v_lshrrev_b32 v{B_}, 2, v{C_}')
    em(f'v_lshl_add_u32 v{A_}, v{B_}, 7, v{A_}')
    em(f'v_and_b32 v{B_}, 3, v{C_}')
    em(f'v_lshl_add_u32 v{A_}, v{B_}, 2, v{A_}')
    em(f'v_add_u32 v{A_}, s{sT0}, v{A_}')
    em(f'v_mov_b32 v{B_}, 0x40000000')
    em(f'v_cndmask_b32 v{vMemSt}, v{B_}, v{A_}, {s(sMaskLo32, 2)}')
    em(f'v_lshrrev_b32 v{A_}, 2, v{L}')
    em(f'v_lshlrev_b32 v{A_}, 4, v{A_}')
    em(f'v_and_b32 v{B_}, 1, v{L}')
    em(f'v_lshl_add_u32 v{vTr}, v{B_}, 3, v{A_}')
    em(f'v_lshrrev_b32 v{A_}, 5, v{L}')
    em(f'v_lshlrev_b32 v{A_}, 8, v{A_}')
    em(f'v_and_b32 v{B_}, 15, v{L}')
    em(f'v_lshl_add_u32 v{A_}, v{B_}, 4, v{A_}')
    em(f'v_and_b32 v{B_}, 1, v{G}')
    em(f'v_lshl_add_u32 v{A_}, v{B_}, 3, v{A_}')
    em(f's_lshl_b32 s{sT0}, s{sW}, 9')
    em(f'v_add_u32 v{vQXw}, s{sT0}, v{A_}')
    em(f'v_and_b32 v{B_}, 7, v{L}')
    em(f'v_lshlrev_b32 v{A_}, 7, v{G}')
    em(f'v_lshl_add_u32 v{A_}, v{B_}, 4, v{A_}')
    em(f's_mul_i32 s{sT0}, s{sW}, 2560')
    em(f'v_add_u32 v{vTA}, s{sT0}, v{A_}')
    for x in (1, 2, 3):
        em(f's_add_u32 s{sT1}, s{sW}, {x}')
        em(f's_and_b32 s{sT1}, s{sT1}, 3')
        em(f's_mul_i32 s{sBase[x]}, s{sT1}, 2560')
        em(f's_sub_u32 s{sBase[x]}, s{sBase[x]}, s{sT0}')
        em(f's_lshl_b32 s{sOXr[x]}, s{sT1}, 9')
        em(f's_add_u32 s{sOXr[x]}, s{sOXr[x]}, {L_OX}')
        em(f's_sub_u32 s{sOXr[x]}, s{sOXr[x]}, s{sT0}')
    em(f's_lshl_b32 s{sT1}, s{sW}, 11')
    em(f's_sub_u32 s{sOXw}, {L_OX}, s{sT1}')
    em(f's_add_u32 s{sKm0}, s{sT1}, {L_KS}')
    em(f's_lshl_b32 s{sT0}, s{sH}, 2')
    em(f's_add_u32 s{sT0}, s{sT0}, s{sW}')
    em(f's_mul_i32 s{sT0}, s{sT0}, {len(SFR) * 2048}')
    em(f's_add_u32 s{sStream}, s{sT0}, {WS_STREAM}')
    em(f's_lshl_b32 s{sFlag}, s{sH}, 7')
    em(f's_add_u32 s{sFlag}, s{sFlag}, {WS_HFLAG}')
    em('s_waitcnt lgkmcnt(0)')

    P = 52
    for i in range(4):
        em(f'v_mov_b32 v{P + i}, -1')
    em(f's_cmp_eq_u32 s{sIsRed}, 0')
    em('s_cbranch_scc1 CH_NOPOISON')
    em(f's_mov_b32 s{sT0}, {WS_PART}')
    for n in range(4):
        em(f'buffer_store_dwordx4 {v(P, 4)}, v{vPartLd}, {WSR}, s{sT0} offen offset:{1024 * n}')
    for slot in range(2):
        em(f's_mov_b32 s{sT0}, {WS_MEMB + slot * 10240}')
        em(f'buffer_store_dword v{P}, v{vMemSt}, {WSR}, s{sT0} offen')
    em.label('CH_NOPOISON')
    em(f's_mul_i32 s{sT0}, s{sH}, 10240')
    em(f's_add_u32 s{sT0}, s{sT0}, {WS_MEMB0}')
    em(f'v_bfe_u32 v{A_}, v0, 2, 3')
    em(f'v_mul_u32_u24 v{A_}, 1280, v{A_}')
    em(f'v_bfe_u32 v{B_}, v0, 5, 2')
    em(f'v_and_b32 v{C_}, 3, v0')
    em(f'v_lshl_add_u32 v{B_}, v{B_}, 2, v{C_}')
    em(f'v_lshl_add_u32 v{A_}, v{B_}, 1, v{A_}')
    em(f'v_cmp_gt_u32 vcc, 128, v0')
    em(f'v_lshlrev_b32 v{C_}, 2, v0')

    def colbase(kb):
        wp, jj = divmod(kb, 5)
        return (160 * wp + 64 * (jj >> 1) + 16 * (jj & 1), 32) if jj < 4 else (160 * wp + 128, 16)
    for it in range(10):
        (c0, d0), (c1, d1) = colbase(2 * it), colbase(2 * it + 1)
        for k, (x0, x1) in enumerate(((c0, c1), (c0 + d0, c1 + d1))):
            em(f'v_mov_b32 v{86 + k}, {2 * x0}')
            em(f'v_mov_b32 v{B_}, {2 * x1}')
            em(f'v_cndmask_b32 v{86 + k}, v{B_}, v{86 + k}, vcc')
            em(f'v_add_u32 v{86 + k}, v{86 + k}, v{A_}')
        em(f'buffer_load_ushort v{56 + 2 * it}, v86, {s(SM0, 4)}, 0 offen')
        em(f'buffer_load_ushort v{57 + 2 * it}, v87, {s(SM0, 4)}, 0 offen')
    em('s_waitcnt vmcnt(0)')
    for it in range(10):
        em(f'v_lshl_or_b32 v{56 + 2 * it}, v{57 + 2 * it}, 16, v{56 + 2 * it}')
        em(f's_add_u32 s{sT1}, s{sT0}, {1024 * it}')
        em(f'buffer_store_dword v{56 + 2 * it}, v{C_}, {WSR}, s{sT1} offen')
    em('s_nop 1')
    em(f'v_and_b32 v{A_}, 15, v{L}')
    em(f'v_and_b32 v{B_}, 1, v{A_}')
    em(f'v_lshrrev_b32 v{C_}, 1, v{A_}')
    em(f'v_lshl_add_u32 v{B_}, v{B_}, 2, v{C_}')
    em(f'v_mov_b32 v{C_}, 99')
    em(f'v_cndmask_b32 v{B_}, v{B_}, v{C_}, {s(sMaskHi8, 2)}')
    em(f'v_mov_b32 v{A_}, 0x3f80')
    em(f'v_mov_b32 v{C_}, 0x3f800000')
    for dd in range(4):
        em(f'v_mov_b32 v{56 + dd}, 0')
        em(f'v_cmp_eq_u32 vcc, {2 * dd}, v{B_}')
        em(f'v_cndmask_b32 v{56 + dd}, v{56 + dd}, v{A_}, vcc')
        em(f'v_cmp_eq_u32 vcc, {2 * dd + 1}, v{B_}')
        em(f'v_cndmask_b32 v{56 + dd}, v{56 + dd}, v{C_}, vcc')
    em(f'v_add_u32 v{A_}, {L_SEL}, v{vL16}')
    em(f'ds_write_b128 v{A_}, {v(56, 4)}')
    em.wait_all()


def chain_load_weights(em):
    srd(em, SWQ, KA_WQ, DM * H * DH * 2)
    srd(em, SWK, KA_WK, DM * H * DH * 2)
    srd(em, SWV, KA_WV, DM * H * DH * 2)
    srd(em, SWO, KA_WO, DM * H * DH * 2)
    L, G, A_, B_ = 60, 61, 62, 63
    vSq, vSq2, vSo8, vSo4 = 64, 65, 66, 67
    vTq = [68, 69, 70, 71]
    vTo8, vTo4 = 72, 73
    WLF = {1: ' nt', 2: ' sc1', 3: ' sc1 nt'}.get(OPT.get('wlf'), '')
    RING = 24576
    sA, sB_, sColQ, sColO, sBlk, sFs = 80, 81, 82, 83, 84, 85
    em(f'v_and_b32 v{L}, 63, v0')
    em(f'v_lshrrev_b32 v{G}, 4, v{L}')
    em(f'v_lshrrev_b32 v{A_}, 1, v{G}')
    em(f'v_lshlrev_b32 v{vSq}, 13, v{A_}')
    em(f'v_and_b32 v{B_}, 15, v{L}')
    em(f'v_lshl_add_u32 v{vSq}, v{B_}, 4, v{vSq}')
    em(f'v_and_b32 v{A_}, 1, v{G}')
    em(f'v_lshl_add_u32 v{vSq2}, v{A_}, 17, v{vSq}')
    em(f'v_lshl_add_u32 v{vSq}, v{A_}, 18, v{vSq}')
    em(f'v_lshrrev_b32 v{A_}, 3, v{L}')
    em(f'v_mul_u32_u24 v{vSo8}, 1280, v{A_}')
    em(f'v_and_b32 v{B_}, 7, v{L}')
    em(f'v_lshl_add_u32 v{vSo8}, v{B_}, 4, v{vSo8}')
    em(f'v_lshrrev_b32 v{A_}, 2, v{L}')
    em(f'v_mul_u32_u24 v{vSo4}, 1280, v{A_}')
    em(f'v_and_b32 v{B_}, 3, v{L}')
    em(f'v_lshl_add_u32 v{vSo4}, v{B_}, 4, v{vSo4}')
    em(f'v_bfe_u32 v{A_}, v{L}, 3, 1')
    em(f'v_lshlrev_b32 v{A_}, 5, v{A_}')
    em(f'v_lshl_add_u32 v{A_}, v{B_}, 3, v{A_}')
    em(f'v_bfe_u32 v{B_}, v{L}, 2, 1')
    em(f'v_lshl_add_u32 v{vTq[0]}, v{G}, 2, v{B_}')
    em(f'v_lshl_add_u32 v{vTq[0]}, v{vTq[0]}, 8, v{A_}')
    em(f's_lshl_b32 s{sA}, s{sW}, 6')
    em(f's_add_u32 s{sA}, s{sA}, {RING}')
    em(f'v_add_u32 v{vTq[0]}, s{sA}, v{vTq[0]}')
    for x in (3, 2, 1, 0):
        em(f's_add_u32 s{sA}, s{sW}, {x}')
        em(f's_and_b32 s{sA}, s{sA}, 3')
        em(f's_lshl_b32 s{sA}, s{sA}, 13')
        em(f'v_add_u32 v{vTq[x]}, s{sA}, v{vTq[0]}')
    em(f'v_and_b32 v{vTo8}, 1, v{G}')
    em(f'v_lshlrev_b32 v{vTo8}, 4, v{vTo8}')
    em(f'v_lshrrev_b32 v{vTo4}, 1, v{G}')
    em(f'v_lshl_add_u32 v{vTo8}, v{vTo4}, 2, v{vTo8}')
    em(f'v_add_u32 v{vTo8}, v{vTo8}, v{B_}')
    em(f's_lshl_b32 s{sBlk}, s{sW}, 13')
    em(f's_add_u32 s{sBlk}, s{sBlk}, {RING}')
    em(f'v_add_u32 v{A_}, s{sBlk}, v{A_}')
    em(f'v_lshl_add_u32 v{vTo4}, v{vTo8}, 6, v{A_}')
    em(f'v_lshl_add_u32 v{vTo8}, v{vTo8}, 7, v{A_}')
    em(f's_mul_i32 s{sColQ}, s{sW}, {160 * 8192}')
    em(f's_lshl_b32 s{sA}, s{sH}, 8')
    em(f's_add_u32 s{sColQ}, s{sColQ}, s{sA}')
    em(f's_mul_i32 s{sColO}, s{sH}, {128 * 1280}')
    em(f's_mul_i32 s{sA}, s{sW}, 320')
    em(f's_add_u32 s{sColO}, s{sColO}, s{sA}')
    em(f's_lshl_b32 s{sFs}, s{sH}, 2')
    em(f's_add_u32 s{sFs}, s{sFs}, s{sW}')
    em(f's_mul_i32 s{sFs}, s{sFs}, {len(LFR) * 2048}')
    em(f's_add_u32 s{sFs}, s{sFs}, {WS_FRAG}')
    em('s_waitcnt lgkmcnt(0)')
    rounds = [('w', m_, jj) for jj in range(5) for m_ in 'qkv'] + [('o', x) for x in range(4)] + [('o4',)]
    tok = {}

    def issue(n):
        rd = rounds[n]
        sl = (n % 4) * 32768
        if rd[0] == 'w':
            jj = rd[2]
            rb = 64 * (jj >> 1) + 16 * (jj & 1) if jj < 4 else 128
            sr, va = {'q': SWQ, 'k': SWK, 'v': SWV}[rd[1]], (vSq if jj < 4 else vSq2)
            for i in range(8):
                em(f's_add_u32 m0, s{sBlk}, {sl + 1024 * i}')
                em(f's_add_u32 s{sA}, s{sColQ}, {(rb + 2 * i) * 8192}')
                tok[n] = em.vm(f'buffer_load_dwordx4 v{va}, {s(sr, 4)}, s{sA} offen{WLF} lds')
        else:
            for x in ([rd[1]] if rd[0] == 'o' else range(4)):
                em(f's_add_u32 s{sB_}, s{sW}, {x}')
                em(f's_and_b32 s{sB_}, s{sB_}, 3')
                em(f's_mul_i32 s{sB_}, s{sB_}, {32 * 1280}')
                em(f's_add_u32 s{sB_}, s{sB_}, s{sColO}')
                if rd[0] == 'o':
                    lst = [(4096 * pp + 1024 * i, 128 * pp + 8 * i * 1280, vSo8) for pp in range(2) for i in range(4)]
                else:
                    lst = [(2048 * x + 1024 * i, 256 + 16 * i * 1280, vSo4) for i in range(2)]
                for lo, so, va in lst:
                    em(f's_add_u32 m0, s{sBlk}, {sl + lo}')
                    em(f's_add_u32 s{sA}, s{sB_}, {so}')
                    tok[n] = em.vm(f'buffer_load_dwordx4 v{va}, {s(SWO, 4)}, s{sA} offen{WLF} lds')

    TMP = [12, 20, 28, 36, 44, 52]
    ntmp = [0]
    for n in range(3):
        issue(n)
    for n, rd in enumerate(rounds):
        sl = (n % 4) * 32768
        em.wait(v=tok[n])
        em('s_barrier')
        if n + 3 < len(rounds):
            issue(n + 3)
        outs = []
        if rd[0] == 'w':
            items = [(FID[(rd[1], 5 * x + rd[2])], vTq[x], 4096, 512, 0) for x in range(4)]
        elif rd[0] == 'o':
            items = [(FID[('o', p_, rd[1])], vTo8, 1024, 256, 4096 * (p_ >> 1) + 64 * (p_ & 1)) for p_ in range(4)]
        else:
            items = [(FID[('o', 4, x)], vTo4, 512, 128, 2048 * x) for x in range(4)]
        for f, va, hs, ls, co in items:
            if f in RREG:
                dst = RREG[f]
            else:
                dst = TMP[ntmp[0] % 6]; ntmp[0] += 1
                outs.append((f, dst))
            for q_ in range(4):
                off = sl + (q_ >> 1) * hs + (q_ & 1) * ls + co
                if off < 65536:
                    em.ds(f'ds_read_b64_tr_b16 {r(dst + 2 * q_, 2)}, v{va} offset:{off}')
                else:
                    if q_ == 0:
                        em(f'v_add_u32 v{B_}, 65536, v{va}')
                    em.ds(f'ds_read_b64_tr_b16 {r(dst + 2 * q_, 2)}, v{B_} offset:{off - 65536}')
        em.wait_all(v=False)
        for f, dst in outs:
            if f in SSLOT:
                em(f's_add_u32 s{sA}, s{sStream}, {SSLOT[f] * 2048}')
            else:
                em(f's_add_u32 s{sA}, s{sFs}, {LSLOT[f] * 2048}')
            em(f'buffer_store_dwordx4 {v(dst, 4)}, v{vL16}, {WSR}, s{sA} offen')
            em(f'buffer_store_dwordx4 {v(dst + 4, 4)}, v{vL16}, {WSR}, s{sA} offen offset:1024')
    em.wait_all()
    em('s_barrier')
    em(f's_mul_i32 s{sT2}, s{sW}, {LW_WAVE}')
    em(f's_add_u32 s{sT2}, s{sT2}, {L_W}')
    for i in range(0, 2 * len(LFR), 4):
        em(f's_add_u32 m0, s{sT2}, {1024 * i}')
        em(f's_add_u32 s{sA}, s{sFs}, {1024 * i}')
        for k in range(min(4, 2 * len(LFR) - i)):
            em(f'buffer_load_dwordx4 v{vL16}, {WSR}, s{sA} offen offset:{1024 * k} sc1 lds')
    em.wait_all()


class Op:
    def __init__(self, text):
        self.text = text
        self.tok = None


class Q:
    def __init__(self, em):
        self.em = em
        self.q = []

    def push(self, *texts):
        o = None
        for t in texts:
            o = Op(t)
            self.q.append(o)
        return o

    def issue(self, o):
        t = o.text
        if t.startswith('ds_'):
            o.tok = ('l', self.em.ds(t))
        elif t.startswith('buffer_'):
            k = self.em.vm(t)
            o.tok = ('v', k) if k is not None else ('x', 0)
        else:
            self.em(t)
            o.tok = ('x', 0)

    def drain(self, n=99):
        while n > 0 and self.q:
            self.issue(self.q.pop(0))
            n -= 1

    def now(self, *texts):
        o = None
        for t in texts:
            o = Op(t)
            self.issue(o)
        return o

    def need(self, *ops):
        l = v_ = None
        for o in ops:
            if o is None:
                continue
            while o.tok is None:
                self.drain(1)
            if o.tok[0] == 'l':
                l = max(l or 0, o.tok[1])
            elif o.tok[0] == 'v':
                v_ = max(v_ or 0, o.tok[1])
        self.em.wait(l=l, v=v_)


def sl_txt(f):
    b = SBR[SBUF[f]]
    sl = SSLOT[f]
    o = (sl & 1) * 2048
    if OPT.get('nosl'):
        return ['s_nop 0']
    return [f'buffer_load_dwordx4 {v(b, 4)}, v{vL16}, {WSR}, s{sSB + sl // 2} offen offset:{o}',
            f'buffer_load_dwordx4 {v(b + 4, 4)}, v{vL16}, {WSR}, s{sSB + sl // 2} offen offset:{o + 1024}']


def ll_txt(f, buf):
    return [f'ds_read_b128 {v(buf, 4)}, v{vLW} offset:{LSLOT[f] * 2048}',
            f'ds_read_b128 {v(buf + 4, 4)}, v{vLW} offset:{LSLOT[f] * 2048 + 1024}']


KVT = T1


def kv_check(em, out_of_line):
    lab = em.newlabel('CH_KVOK')
    lp = em.newlabel('CH_KVPOLL')
    em(f's_cmp_lt_u32 s{sReady}, s{sT0}')
    em(f's_cbranch_scc1 {lp}')
    em.label(lab)
    out_of_line.append((lab, lp))


def kv_slow(em, lab, lp):
    em.label(lp)
    em(f's_mov_b32 s{sSpin}, 0')
    em(f'v_accvgpr_write_b32 a255, v{KVT}') if False else None
    em.label(lp + 'L')
    em(f'v_and_b32 v{KVT}, 48, v{vL16}')
    em(f'v_lshrrev_b32 v{KVT}, 2, v{KVT}')
    em(f'buffer_load_dword v{KVT}, v{KVT}, {WSR}, s{sFlag} offen offset:8 sc1')
    em(f's_add_u32 s{sSpin}, s{sSpin}, 1')
    em(f's_cmp_gt_u32 s{sSpin}, {SPIN_LIMIT}')
    em('s_cbranch_scc1 ABORT')
    em('s_waitcnt vmcnt(0)')
    em(f'v_min_u32_dpp v{KVT}, v{KVT}, v{KVT} quad_perm:[1,0,3,2] row_mask:0xf bank_mask:0xf')
    em(f'v_min_u32_dpp v{KVT}, v{KVT}, v{KVT} quad_perm:[2,3,0,1] row_mask:0xf bank_mask:0xf')
    em(f'v_readfirstlane_b32 s{sReady}, v{KVT}')
    em('s_nop 1')
    em(f's_cmp_lt_u32 s{sReady}, s{sT0}')
    em(f's_cbranch_scc1 {lp}L')
    em(f's_branch {lab}')


def k_txt():
    if OPT.get('nokv'):
        return ['s_nop 0']
    return [f's_mov_b32 m0, s{sKm0}',
            f's_add_u32 s{sKV}, s{sKV}, {32 * 8192}',
            f'buffer_load_dwordx4 v{vL16}, {WSR}, s{sKV} offen sc1 nt lds',
            f'buffer_load_dwordx4 v{vL16}, {WSR}, s{sKV} offen offset:1024 sc1 nt lds']


NST = 8
sAcc = 86


def stamp(em, i, on, fine=False):
    if not on:
        return
    if OPT.get('ph2'):
        if not fine:
            i = {0: 0, 1: 6}.get(i, 7)
    elif fine:
        return
    em('s_memrealtime s[96:97]' if OPT.get('abs') else 's_memtime s[96:97]')
    em('s_waitcnt lgkmcnt(0)')
    em.l_done = em.l_iss
    if OPT.get('abs'):
        em(f's_cmp_eq_u32 s{sT}, {OPT["abs"] + (1 if i == 0 and False else 0)}')
        em(f's_cselect_b32 s{sAcc + i}, s96, s{sAcc + i}')
        return
    em('s_sub_u32 s98, s96, s94')
    em(f's_add_u32 s{sAcc + i}, s{sAcc + i}, s98')
    em('s_mov_b32 s94, s96')


WS_TL = WS_HIST + 0x190000


def tl(em, slot, va=10, vb=11, dyn=None):
    if not OPT.get('tl'):
        return
    em('s_memrealtime s[100:101]')
    em('s_lshl_b32 s99, s39, 5')
    em('s_add_u32 s99, s99, s38')
    em('s_lshl_b32 s99, s99, 7')
    em(f's_add_u32 s99, s99, {WS_TL + 4 * slot}')
    if dyn is not None:
        em(f's_lshl_b32 s98, s{dyn}, 6')
        em('s_add_u32 s99, s99, s98')
    em('s_waitcnt lgkmcnt(0)')
    em.l_done = em.l_iss
    em(f'v_mov_b32 v{va}, s100')
    em(f'v_mov_b32 v{vb}, 0')
    em(f'buffer_store_dword v{va}, v{vb}, {WSR}, s99 offen')


def zero_txt(reg, n):
    return [f'v_mov_b64 {v(reg + i, 2)}, 0' for i in range(0, n, 2)]


def chain_main(em, hist=False, nlayers=2, stamps=False, ph=False):
    SM = 'v_smfmac_f32_16x16x64_bf16'
    MF = 'v_mfma_f32_16x16x32_bf16'
    MF16 = 'v_mfma_f32_16x16x16_bf16'
    ool = []
    q = Q(em)
    em(f's_mov_b32 s{sT}, 0')
    em(f's_mov_b32 s{sLayer}, 0')
    em(f's_mov_b32 s{sReady}, 0')
    em(f's_mov_b32 s{sPart}, {WS_PART}')
    em(f's_mov_b32 s{sPP}, {WS_PART + 32768}')
    em(f's_mov_b32 s{sPP + 1}, {WS_PART + 65536}')
    em(f's_lshl_b32 s{sKV}, s{sH}, 13')
    em(f's_lshl_b32 s{sT0}, s{sW}, 11')
    em(f's_add_u32 s{sKV}, s{sKV}, s{sT0}')
    em(f's_add_u32 s{sKV}, s{sKV}, {WS_K - 32 * 8192}')
    em(f's_lshl_b32 s{sKM}, s{sH}, 12')
    em(f's_add_u32 s{sKM}, s{sKM}, {WS_KM}')
    for i in range((len(SFR) + 1) // 2):
        em(f's_add_u32 s{sSB + i}, s{sStream}, {4096 * i}')
    if ph:
        for i in range(NST):
            em(f's_mov_b32 s{sAcc + i}, 0')
        em('s_memtime s[94:95]')
        em('s_waitcnt lgkmcnt(0)')
    em.label('CH_LAYER')
    em(f's_mov_b32 s{sS}, 0')
    em(f's_mul_i32 s{sMemRd}, s{sH}, 10240')
    em(f's_add_u32 s{sMemRd}, s{sMemRd}, {WS_MEMB0}')
    em(f's_lshl_b32 s{sT0}, s{sLayer}, 6')
    em(f's_add_u32 s{sT0}, s{sT0}, 1')
    for b in (0, 1):
        q.now(*sl_txt(SLIST[b][0]))
    tl(em, 2, dyn=sLayer)
    kv_check(em, ool)
    tl(em, 3, dyn=sLayer)
    q.now(*k_txt())
    if stamps:
        em(f's_memtime {s(sTime, 2)}')
        em('s_waitcnt lgkmcnt(0)')
    em(f's_mul_i32 s{sT0}, s{sW}, 2560')
    em(f'v_add_u32 v{T0}, s{sT0}, v{vL16}')
    em(f'v_lshrrev_b32 v{T1}, 1, v{vL16}')
    em(f'v_add_u32 v{T1}, s{sT0}, v{T1}')
    em.label('CH_STEP')
    em('s_barrier')
    em.forget()
    W0 = SB[2]
    m = SB[2] + 4
    TW = 0
    op = {}
    lbuf = {}

    def polls():
        em(f'buffer_load_dwordx4 {v(S1, 4)}, v{vTA}, {WSR}, s{sMemRd} offen sc1')
        em(f'buffer_load_dwordx4 {v(S2, 4)}, v{vTA}, {WSR}, s{sMemRd} offen offset:512 sc1')
        em(f'buffer_load_dwordx4 {v(AB2, 4)}, v{T0}, {WSR}, s{sMemRd} offen offset:1024 sc1')
        em(f'buffer_load_dwordx2 {v(AB3, 2)}, v{T1}, {WSR}, s{sMemRd} offen offset:2048 sc1')

    em.nops(OPT.get('e1', 0))
    polls()
    em(f's_and_b32 s{sTag}, s{sT}, 1')
    em(f's_mul_i32 s{sMemRst}, s{sTag}, 10240')
    em(f's_sub_u32 s{sMemWr}, {WS_MEMB + 10240}, s{sMemRst}')
    em(f's_add_u32 s{sMemRst}, s{sMemRst}, {WS_MEMB}')
    em(f'v_add_u32 v{TW}, 512, v{vTA}')
    em(f'v_cndmask_b32 v{TW}, v{vTA}, v{TW}, {s(sMaskHi8, 2)}')
    for n in range(2):
        op[LFR[n]] = q.now(*ll_txt(LFR[n], LB[n])); lbuf[LFR[n]] = LB[n]
    em(f's_mov_b32 s{sSpin}, 0')
    em.label('CH_POLL2')
    q.now(*zero_txt(accQ, 12))
    if OPT.get('n2'):
        em(f's_add_u32 s{sAcc + 7}, s{sAcc + 7}, 1')
    em('s_waitcnt vmcnt(2)')
    for i in range(4):
        em(f'v_cndmask_b32 v{W0 + i}, v{S1 + i}, v{S2 + i}, {s(sMaskHi8, 2)}')
    em.v_done = em.v_iss
    SM = 'v_smfmac_f32_16x16x64_bf16'
    NSPEC = 3
    spec = []
    for d in PH1[:NSPEC]:
        f = FID[d]
        b = r(RREG[f], 8) if f in RREG else v(SBR[SBUF[f]], 8)
        spec.append(f'{SM} {v({"q": accQ, "k": accK, "v": accV}[d[0]], 4)}, {v(S1, 4)}, {b}, v{vIdx}')
    q.now(f'ds_write_b128 v{TW}, {v(W0, 4)} offset:{L_MEM}')
    em(spec[0])
    em(f'v_max3_u32 v{m}, v{W0}, v{W0 + 1}, v{W0 + 2}')
    em('s_waitcnt vmcnt(0)')
    q.now(f'ds_write_b128 v{T0}, {v(AB2, 4)} offset:{L_MEM + 1024}')
    em(spec[1])
    wl = q.now(f'ds_write_b64 v{T1}, {v(AB3, 2)} offset:{L_MEM + 2048}')
    em(f'v_max3_u32 v{m + 1}, v{AB2}, v{AB2 + 1}, v{AB2 + 2}')
    em(f'v_max3_u32 v{m}, v{m}, v{W0 + 3}, v{AB2 + 3}')
    em(f'v_max3_u32 v{m + 1}, v{m + 1}, v{AB3}, v{AB3 + 1}')
    em(f'v_max_u32 v{m}, v{m}, v{m + 1}')
    em(f'v_cmp_eq_u32 vcc, -1, v{m}')
    em(spec[2])
    em('s_cbranch_vccnz CH_POLL2R')
    stamp(em, 0, ph)
    ACC = {'q': accQ, 'k': accK, 'v': accV}

    def smf(acc, areg, f, aop=None, reload=True):
        if f in RREG:
            b = r(RREG[f], 8)
            q.need(aop)
        elif f in SSLOT:
            q.need(aop, None if OPT.get('nosw') else op.get(f))
            b = v(SBR[SBUF[f]], 8)
        else:
            q.need(aop, op[f])
            b = v(lbuf[f], 8)
        em(f'{SM} {v(acc, 4)}, {v(areg, 4)}, {b}, v{vIdx}')
        if f in SSLOT and reload:
            l = SLIST[SBUF[f]]
            nf = l[(l.index(f) + 1) % len(l)]
            op[nf] = q.push(*sl_txt(nf))

    ABX = [S1, S2, S0, X4]
    abuf = {j: ABX[j % 4] for j in range(20)}
    op[SLIST[2][0]] = q.push(*sl_txt(SLIST[2][0]))
    aop = {0: None, 1: None}

    def apush(j):
        x, jj = j // 5, j % 5
        t = [vTA, T0, T1, T0][x]
        o = q.push(f'ds_read_b128 {v(abuf[j], 4)}, v{t} offset:{L_MEM + 512 * jj}')
        if jj == 4 and x < 3:
            q.push(f'v_add_u32 v{[T0, T1, T0][x]}, s{sBase[x + 1]}, v{vTA}')
        return o

    for j in (2, 3):
        aop[j] = apush(j)
    lq = list(LFR[2:NL1])
    KREG = {}
    kop = {}

    def kpush(reg):
        ks = KORD[len(KREG)]
        KREG[ks] = reg
        kop[ks] = q.push(f'ds_read_b128 {v(reg, 4)}, v{vL16} offset:{L_KS + 1024 * ks}')

    VS = [AB2, AB3]
    hold = [PH1[50]]
    for n, d in enumerate(PH1):
        f = FID[d]
        j = d[1]
        if n < NSPEC:
            if f in SSLOT:
                op[SLIST[SBUF[f]][1]] = q.push(*sl_txt(SLIST[SBUF[f]][1]))
            if n < NSPEC - 1:
                continue
        else:
            smf(ACC[d[0]], abuf[j], f, aop[j], reload=d not in LEND and d not in hold)
        last = n + 1 == len(PH1) or PH1[n + 1][1] != j
        if last:
            if j == 1:
                q.drain()
                q.need(wl)
                stamp(em, 1, ph, True)
                em('s_barrier')
                stamp(em, 2, ph, True)
            if j < 16:
                aop[j + 4] = apush(j + 4)
            if j == 9:
                stamp(em, 3, ph, True)
            if j == OPT.get('vj', 9) and not OPT.get('nokv'):
                q.push(f's_add_u32 s{sT1}, s{sKV}, {WS_V - WS_K}')
                for i in range(2):
                    vsop = q.push(f'buffer_load_dwordx4 {v(VS[i], 4)}, v{vL16}, {WSR}, s{sT1} offen offset:{1024 * i} sc1 nt')
            if j == 13:
                q.push(f's_lshl_b32 s{sT0}, s{sLayer}, 6', f's_add_u32 s{sT0}, s{sT0}, s{sS}', f's_add_u32 s{sT0}, s{sT0}, 2',
                       f's_cmp_eq_u32 s{sS}, {NSEG - 1}', f's_cselect_b32 s{sT0}, 0, s{sT0}')
            if j == OPT.get('kj', 15) and OPT.get('kp', 5) == 4:
                q.drain()
                q.need(*kop.values())
                em('s_barrier')
                kv_check(em, ool)
                q.push(*k_txt())
        if f in LSLOT:
            if lq:
                nf = lq.pop(0)
                op[nf] = q.push(*ll_txt(nf, lbuf[f])); lbuf[nf] = lbuf[f]
            else:
                kpush(lbuf[f]); kpush(lbuf[f] + 4)
        if d in LEND:
            kpush(SBR[SBUF[f]]); kpush(SBR[SBUF[f]] + 4)
        if d in hold:
            q.push(f's_lshl_b32 s{sT2}, s{sLayer}, 6', f's_add_u32 s{sT2}, s{sT2}, s{sS}', f'v_mov_b32 v{SB[0]}, s{sT2}',
                   f'buffer_store_dword v{SB[0]}, off, {WSR}, s{sFlag} offset:24 sc1')
        q.drain(2)
    if OPT.get('nokv'):
        vsop = None
    assert len(KREG) == 8
    stamp(em, 1, ph)
    em.nops(OPT.get('x1', 0))
    smf(accV, abuf[17], FID[('v', 17)])
    q.drain()
    smf(accV, abuf[18], FID[('v', 18)])
    em(f'v_cvt_pk_bf16_f32 v{accQ}, v{accQ}, v{accQ + 1}')
    em(f'v_cvt_pk_bf16_f32 v{accQ + 1}, v{accQ + 2}, v{accQ + 3}')
    q.now(f'ds_write_b64 v{vQXw}, {v(accQ, 2)} offset:{L_QX}')
    em(f'v_cvt_pk_bf16_f32 v{accK}, v{accK}, v{accK + 1}')
    em(f'v_cvt_pk_bf16_f32 v{accK + 1}, v{accK + 2}, v{accK + 3}')
    wq = q.now(f'ds_write_b64 v{vQXw}, {v(accK, 2)} offset:{L_KX}')
    smf(accV, abuf[19], FID[('v', 19)])
    q.now(f'buffer_store_dwordx2 {v(accK, 2)}, v{vQXw}, {WSR}, s{sKM} offen sc1')
    q.need(wq, *kop.values())
    em('s_barrier')

    def trd(reg, base, st):
        return [f'ds_read_b64_tr_b16 {v(reg, 2)}, v{vTr} offset:{base + st * 512}',
                f'ds_read_b64_tr_b16 {v(reg + 2, 2)}, v{vTr} offset:{base + st * 512 + 256}']

    QF = [X4, accQ, accK, KREG[0]]
    qop = [q.now(*trd(QF[st], L_QX, st)) for st in range(3)]
    op[SLIST[0][3]] = q.now(*sl_txt(SLIST[0][3]))
    VM = accV
    em(f'v_cvt_pk_bf16_f32 v{VM}, v{accV}, v{accV + 1}')
    em(f'v_cvt_pk_bf16_f32 v{VM + 1}, v{accV + 2}, v{accV + 3}')
    q.now(f'buffer_store_dwordx2 {v(VM, 2)}, v{vQXw}, {WSR}, s{sKM} offen offset:2048 sc1')
    em(f's_add_u32 s{sKM}, s{sKM}, {32 * 4096}')
    em(f's_cmp_eq_u32 s{sS}, {NSEG - 1}')
    em('s_cbranch_scc1 CH_LAYER_END')
    if OPT.get('kp', 5) == 3:
        kv_check(em, ool)
        q.push(*k_txt())
    KM = [KREG[4], KREG[1], KREG[5], KREG[2]]
    kmop = {}
    for st in range(4):
        q.need(qop[st])
        for t, acc in ((0, S0), (1, S1)):
            c = '0' if st == 0 else v(acc, 4)
            em(f'{MF} {v(acc, 4)}, {v(KREG[4 * t + st], 4)}, {v(QF[st], 4)}, {c}')
            if st == 0 and t == 0:
                qop.append(q.push(*trd(QF[3], L_QX, 3)))
            if st == 0 and t == 1:
                kmop[0] = q.push(*trd(KM[0], L_KX, 0))
            if st == 1:
                kmop[1 + t] = q.push(*trd(KM[1 + t], L_KX, 1 + t))
            if st == 2 and t == 0:
                kmop[3] = q.push(*trd(KM[3], L_KX, 3))
            if st == 3 and t == 1:
                op[SLIST[2][2]] = q.push(*sl_txt(SLIST[2][2]))
            q.drain(2)
    assert {KREG[0], KREG[4]} == {SB[1], SB[1] + 4} and {KREG[3], KREG[7]} == {SB[2], SB[2] + 4}
    ONES = KREG[6]
    A_, B_ = T0, T1
    for st in range(4):
        q.need(kmop[st])
        c = '0' if st == 0 else v(S2, 4)
        em(f'{MF} {v(S2, 4)}, {v(KM[st], 4)}, {v(QF[st], 4)}, {c}')
        em(f'v_mov_b32 v{ONES + st}, 0x3f803f80')
        if st == 2:
            em(f'v_max3_f32 v{A_}, v{S0}, v{S0 + 1}, v{S0 + 2}')
        if st == 3:
            em(f'v_max3_f32 v{A_}, v{A_}, v{S0 + 3}, v{S1}')
    stamp(em, 2, ph)
    op[SLIST[1][2]] = q.now(*sl_txt(SLIST[1][2]))
    KP = OPT.get('kp', 5)
    if KP == 0:
        kv_check(em, ool)
        q.now(*k_txt())
    em(f'v_max3_f32 v{A_}, v{A_}, v{S1 + 1}, v{S1 + 2}')
    em(f'v_max_f32 v{A_}, v{A_}, v{S1 + 3}')
    em(f'v_add_u32 v0, s{sOXw}, v{vTA}')
    WA = [accV, S0, S1, S2, X4]
    em(f'v_mov_b64 {v(X4, 2)}, 0')
    em(f'v_mov_b64 {v(X4 + 2, 2)}, 0')
    em(f'v_mov_b64 {v(accV + 2, 2)}, 0')
    em(f'v_max3_f32 v{A_}, v{A_}, v{S2}, v{S2 + 1}')
    em(f'v_max3_f32 v{A_}, v{A_}, v{S2 + 2}, v{S2 + 3}')
    em(f'v_mov_b32 v{B_}, v{A_}')
    em(f's_mov_b64 vcc, {s(sMaskLo32, 2)}')
    em('s_nop 0')
    em(f'v_permlane32_swap_b32 v{A_}, v{B_}')
    em(f'v_max_f32 v{A_}, v{A_}, v{B_}')
    em(f'v_mov_b32 v{B_}, v{A_}')
    em(f'v_permlane16_swap_b32 v{A_}, v{B_}')
    em(f'v_max_f32 v{A_}, v{A_}, v{B_}')
    em(f'v_mul_f32 v{A_}, s{sC}, v{A_}')
    em(f'v_mov_b32 v{B_}, v{A_}')
    P01 = accK
    PM = accQ
    for i in range(0, 12, 2):
        em(f'v_pk_fma_f32 {v(S0 + i, 2)}, {v(S0 + i, 2)}, {s(sC2, 2)}, {v(A_, 2)} neg_lo:[0,0,1] neg_hi:[0,0,1]')
    for i in range(12):
        em(f'v_exp_f32 v{S0 + i}, v{S0 + i}')
    kt_ = []
    if KP == 1:
        kv_check(em, ool)
        kt_ = k_txt()
    if KP == 5:
        kv_check(em, ool)
        q.now(*k_txt())
    for i in range(4):
        em(f'v_cvt_pk_bf16_f32 v{P01 + i}, v{S0 + 2 * i}, v{S0 + 2 * i + 1}')
    em(f'v_cvt_pk_bf16_f32 v{PM + 2}, v{S2}, v{S2 + 1}')
    em(f'v_cvt_pk_bf16_f32 v{PM + 3}, v{S2 + 2}, v{S2 + 3}')
    O0, O1, SUM = KREG[1], KREG[5], KREG[2]
    zt = zero_txt(S0, 12)
    em(f'{MF} {v(SUM, 4)}, {v(ONES, 4)}, {v(P01, 4)}, 0')
    q.now(*kt_[:1])
    em(f'v_cndmask_b32 v{PM}, 0, v{PM + 2}, vcc')
    em(f'v_cndmask_b32 v{PM + 1}, 0, v{PM + 3}, vcc')
    q.need(vsop)
    em(f'{MF} {v(O0, 4)}, {v(VS[0], 4)}, {v(P01, 4)}, 0')
    em(f'v_xor_b32 v{PM + 2}, v{PM + 2}, v{PM}')
    em(f'v_xor_b32 v{PM + 3}, v{PM + 3}, v{PM + 1}')
    em(f'{MF} {v(O1, 4)}, {v(VS[1], 4)}, {v(P01, 4)}, 0')
    q.now(*kt_[1:3])
    q.now(zt[0])
    em(f'{MF16} {v(SUM, 4)}, {v(ONES, 2)}, {v(PM, 2)}, {v(SUM, 4)}')
    q.now(*kt_[3:])
    q.now(*zt[1:3])
    em(f'{MF16} {v(O0, 4)}, {v(VM, 2)}, {v(PM, 2)}, {v(O0, 4)}')
    q.now(*zt[3:5])
    em(f'{MF16} {v(O1, 4)}, {v(VM, 2)}, {v(PM + 2, 2)}, {v(O1, 4)}')
    q.now(zt[5])
    q.now(*zero_txt(accV, 2))
    em(f'v_rcp_f32 v{A_}, v{SUM}')
    em('s_nop 0')
    em(f'v_mov_b32 v{B_}, v{A_}')
    for o in (O0, O0 + 2, O1, O1 + 2):
        em(f'v_pk_mul_f32 {v(o, 2)}, {v(o, 2)}, {v(A_, 2)}')
    OF = [AB2, AB3, accQ, accK]
    em(f'v_cvt_pk_bf16_f32 v{OF[0]}, v{O0}, v{O0 + 1}')
    em(f'v_cvt_pk_bf16_f32 v{OF[0] + 1}, v{O0 + 2}, v{O0 + 3}')
    em(f'v_cvt_pk_bf16_f32 v{OF[0] + 2}, v{O1}, v{O1 + 1}')
    em(f'v_cvt_pk_bf16_f32 v{OF[0] + 3}, v{O1 + 2}, v{O1 + 3}')
    wo = q.now(f'ds_write_b128 v0, {v(OF[0], 4)}')
    lq = list(LFR[NL1:])
    for n in range(2):
        nf = lq.pop(0)
        op[nf] = q.push(*ll_txt(nf, LB[n])); lbuf[nf] = LB[n]

    def wstep(p, x, aop_=None, nd=2):
        f = FID[('o', p, x)]
        smf(WA[p], OF[x], f, aop_, reload=(f in SSLOT and SBUF[f] < 2 and not OPT.get('nopt')))
        if f in LSLOT and lq:
            nf = lq.pop(0)
            o = Op(None)
            a_, b_ = ll_txt(nf, lbuf[f])
            q.q[0:0] = [Op(a_), Op(b_)]
            op[nf] = q.q[1]; lbuf[nf] = lbuf[f]
        q.drain(nd)

    em(f'v_add_u32 v{T0}, s{sOXr[1]}, v{vTA}')
    wstep(2, 0)
    em(f'v_add_u32 v{T1}, s{sOXr[2]}, v{vTA}')
    wstep(3, 0)
    em(f'v_add_u32 v0, s{sOXr[3]}, v{vTA}')
    q.need(wo)
    em('s_barrier')
    stamp(em, 3, ph)
    em.nops(OPT.get('x3', 0))
    oop = {}
    for x, t_ in ((1, T0), (2, T1), (3, 0)):
        oop[x] = q.now(f'ds_read_b128 {v(OF[x], 4)}, v{t_}')
    if KP == 2:
        kv_check(em, ool)
        q.push(*k_txt())
    wstep(1, 0); wstep(4, 0); wstep(0, 0)

    def cvt2(dst, acc):
        return [f'v_cvt_pk_bf16_f32 v{dst}, v{acc}, v{acc + 1}',
                f'v_cvt_pk_bf16_f32 v{dst + 1}, v{acc + 2}, v{acc + 3}']

    a4 = WA[4]
    tg = lambda reg: f'v_and_or_b32 v{reg}, v{reg}, -2, s{sTag}'
    PSF = {1: ' sc0', 2: ' nt'}.get(OPT.get('psf'), '')
    st4 = lambda reg, so: f'buffer_store_dwordx4 {v(reg, 4)}, v{vPartSt}, {WSR}, s{so} offen{PSF}'
    EPI = {4: cvt2(a4, a4) + [f'v_mov_b64 {v(a4 + 2, 2)}, {v(a4, 2)}',
                              f'v_permlane32_swap_b32 v{a4}, v{a4 + 2}', f'v_permlane32_swap_b32 v{a4 + 1}, v{a4 + 3}',
                              tg(a4), f's_mov_b64 exec, {s(sMaskLo32, 2)}', st4(a4, sPP + 1), 's_mov_b64 exec, -1'],
           0: cvt2(WA[0], WA[0]) + [tg(WA[0])],
           1: cvt2(WA[0] + 2, WA[1]) + [st4(WA[0], sPart)],
           2: cvt2(WA[2], WA[2]) + [tg(WA[2])],
           3: cvt2(WA[2] + 2, WA[3]) + [st4(WA[2], sPP)]}
    SEL = OF[0]
    pend = []
    age = 0
    WSEQ = [(p, x) for p in (4, 0, 1) for x in (1, 2, 3)] + [(2, 1), (2, 2), (3, 1), (2, 3), (3, 2), (3, 3)]
    for p, x in WSEQ:
        if True:
            if p == 1 and x == 1:
                q.need(*[op[SLIST[b][-1]] for b in range(3)])
            wstep(p, x, oop[x])
            if p == 4 and x == 1:
                selop = q.push(f'ds_read_b128 {v(SEL, 4)}, v{vL16} offset:{L_SEL}')
            age += 1
            if age >= 2:
                k = 0
                while pend and (k < 2 or 'exec, -1' in pend[0] or 'buffer_store' in pend[0]):
                    if 'exec, s' in pend[0] and (p, x) < (1, 1) and p != 4 or ('exec, s' in pend[0] and p == 4):
                        break
                    q.now(pend.pop(0)); k += 1
        if x == 3:
            if not pend:
                age = 0
            pend += EPI[p]
    q.drain()
    em(f's_mov_b32 s{sSpin}, 0')
    em(f's_cmp_eq_u32 s{sIsRed}, 0')
    q.need(selop)
    q.now(*pend)
    stamp(em, 4, ph)
    if ph:
        em(f's_cmp_eq_u32 s{sIsRed}, 0')
    em('s_cbranch_scc1 %s' % ('CH_NORED' if OPT.get('stl') else 'CH_RED_DONE'))
    PD = LB[0]
    PLF = {1: 'sc0 sc1', 2: 'nt', 3: 'sc1 nt'}.get(OPT.get('plf'), 'sc1')
    D = OF[1]
    NEG, m = T0, T1
    em(f'v_mov_b32 v{NEG}, -1')
    if OPT.get('ack'):
        em('s_waitcnt vmcnt(0)')
        if OPT.get('abs') or OPT.get('acks'):
            stamp(em, 7, ph)
    em.nops(OPT.get('d1', 0))
    if OPT.get('mp1'):
        MK = [86, 88, 90, 92] if not ph else [12, 14, 16, 18]
        tq = [S0, S0 + 1, S0 + 2, S0 + 3]

        def ld(n):
            em(f'buffer_load_dwordx4 {v(PD + 4 * n, 4)}, v{vPartLd}, {WSR}, s{sPart} offen offset:{1024 * n} sc1')

        def check(base):
            for n in range(4):
                em(f's_waitcnt vmcnt({base - n})')
                c = '0' if n == 0 else v(D, 4)
                em(f'{MF} {v(D, 4)}, {v(SEL, 4)}, {v(PD + 4 * n, 4)}, {c}')
                em(f'v_and_b32 v{tq[n]}, 1, v{PD + 4 * n}')
                em(f'v_cmp_ne_u32 {s(MK[n], 2)}, s{sTag}, v{tq[n]}')
            em(f's_or_b64 vcc, {s(MK[0], 2)}, {s(MK[1], 2)}')
            em(f's_or_b64 {s(34, 2)}, {s(MK[2], 2)}, {s(MK[3], 2)}')
            em(f's_or_b64 vcc, vcc, {s(34, 2)}')

        def reissue():
            for n in range(4):
                em(f's_mov_b64 exec, {s(MK[n], 2)}')
                ld(n)
            em('s_mov_b64 exec, -1')
        for n in range(4):
            ld(n)
        check(3)
        em('s_cbranch_scc1 CH_P1R')
        em.label('CH_P1OK')
        p1ool = (check, reissue)
    else:
        em.label('CH_POLL1')
        for n in range(4):
            em(f'buffer_load_dwordx4 {v(PD + 4 * n, 4)}, v{vPartLd}, {WSR}, s{sPart} offen offset:{1024 * n} {PLF}')
        em(f's_add_u32 s{sSpin}, s{sSpin}, 1')
        em(f's_cmp_gt_u32 s{sSpin}, {SPIN_LIMIT}')
        em('s_cbranch_scc1 ABORT')
        if ph and not OPT.get('ph2') and not OPT.get('abs') and not OPT.get('acks') and not OPT.get('n2'):
            em(f's_add_u32 s{sAcc + 7}, s{sAcc + 7}, 1')
        for n in range(4):
            em(f's_waitcnt vmcnt({3 - n})')
            c = '0' if n == 0 else v(D, 4)
            em(f'{MF} {v(D, 4)}, {v(SEL, 4)}, {v(PD + 4 * n, 4)}, {c}')
            if n == 0:
                em(f'v_xor_b32 v{m}, s{sTag}, v{PD}')
            else:
                em(f'v_bitop3_b32 v{m}, v{m}, v{PD + 4 * n}, s{sTag} bitop3:0xf6')
        em(f'v_and_b32 v{m}, 1, v{m}')
        em(f'v_cmp_ne_u32 vcc, 0, v{m}')
        em('s_cbranch_vccnz CH_POLL1')
    stamp(em, 5, ph)
    for i in range(4):
        em(f'v_add_f32_dpp v{D + i}, v{D + i}, v{D + i} row_ror:8 row_mask:0xf bank_mask:0xf')
    em(f'v_cvt_pk_bf16_f32 v{D}, v{D}, v{D + 1}')
    em(f'v_cvt_pk_bf16_f32 v{D + 1}, v{D + 2}, v{D + 3}')
    em(f'v_cndmask_b32 v{D}, v{D}, v{D + 1}, {s(sMaskHi8, 2)}')
    em(f'v_min_u32 v{D}, -2, v{D}')
    em(f'buffer_store_dword v{D}, v{vMemSt}, {WSR}, s{sMemWr} offen')
    em(f'buffer_store_dword v{NEG}, v{vMemSt}, {WSR}, s{sMemRst} offen')
    if hist:
        em(f's_mul_i32 s{sT0}, s{sT}, 10240')
        em(f's_add_u32 s{sT0}, s{sT0}, {WS_HIST}')
        em(f'buffer_store_dword v{D}, v{vMemSt}, {WSR}, s{sT0} offen')
    em.label('CH_RED_DONE')
    em(f's_mul_i32 s{sT0}, s{sW}, 2560')
    em(f'v_add_u32 v{T0}, s{sT0}, v{vL16}')
    em(f'v_lshrrev_b32 v{T1}, 1, v{vL16}')
    em(f'v_add_u32 v{T1}, s{sT0}, v{T1}')
    em(f's_mov_b32 s{sMemRd}, s{sMemWr}')
    em(f's_add_u32 s{sT}, s{sT}, 1')
    em(f's_add_u32 s{sS}, s{sS}, 1')
    stamp(em, 6, ph)
    em('s_branch CH_STEP')

    em.label('CH_NORED')
    if OPT.get('stl'):
        em('s_memrealtime s[96:97]')
        em(f's_lshl_b32 s98, s{sT}, 2')
        em(f's_lshl_b32 s99, s{sH}, 9')
        em('s_add_u32 s98, s98, s99')
        em(f's_add_u32 s98, s98, {WS_HIST + 0x1b0000}')
        em('s_waitcnt lgkmcnt(0)')
        em(f'v_mov_b32 v{T0}, s96')
        em(f'v_mov_b32 v{T1}, 0')
        em(f'buffer_store_dword v{T0}, v{T1}, {WSR}, s98 offen')
    em('s_branch CH_RED_DONE')
    for lab, lp in ool:
        kv_slow(em, lab, lp)
    em.label('CH_POLL2R')
    polls()
    em(f's_add_u32 s{sSpin}, s{sSpin}, 1')
    em(f's_cmp_gt_u32 s{sSpin}, {SPIN_LIMIT}')
    em('s_cbranch_scc1 ABORT')
    em('s_branch CH_POLL2')
    if OPT.get('mp1'):
        check, reissue = p1ool
        em.label('CH_P1R')
        em.label('CH_P1L')
        reissue()
        em(f's_add_u32 s{sSpin}, s{sSpin}, 1')
        em(f's_cmp_gt_u32 s{sSpin}, {SPIN_LIMIT}')
        em('s_cbranch_scc1 ABORT')
        check(3)
        em('s_cbranch_scc1 CH_P1L')
        em('s_branch CH_P1OK')

    em.label('CH_LAYER_END')
    if KP == 4:
        em(f's_sub_u32 s{sKV}, s{sKV}, {32 * 8192}')
    em(f's_add_u32 s{sLayer}, s{sLayer}, 1')
    em(f's_lshl_b32 s{sT0}, s{sLayer}, 6')
    em(f'v_mov_b32 v{T0}, s{sT0}')
    em(f'v_mov_b32 v{T1}, 24')
    em('s_waitcnt vmcnt(0) lgkmcnt(0)')
    em('s_barrier')
    em(f'buffer_store_dword v{T0}, v{T1}, {WSR}, s{sFlag} offen sc1')
    if OPT.get('tl'):
        em(f's_sub_u32 s{sT0}, s{sLayer}, 1')
        tl(em, 4, dyn=sT0)
    if stamps:
        em(f's_memtime {s(sTime + 2, 2)}')
        em('s_waitcnt lgkmcnt(0)')
        em(f's_sub_u32 s{sT0}, s{sTime + 2}, s{sTime}')
        em(f'v_mov_b32 v{T0}, s{sT0}')
        em(f's_lshl_b32 s{sT0}, s{sLayer}, 2')
        em(f's_add_u32 s{sT0}, s{sT0}, 4')
        em(f'v_mov_b32 v{T1}, s{sT0}')
        em(f'buffer_store_dword v{T0}, v{T1}, {s(SDBG, 4)}, 0 offen')
    em(f's_cmp_lt_u32 s{sLayer}, {nlayers}')
    em('s_cbranch_scc1 CH_LAYER')
    em('s_waitcnt vmcnt(0)')
    if ph:
        em(f's_lshl_b32 s{sT0}, s{sH}, 2')
        em(f's_add_u32 s{sT0}, s{sT0}, s{sW}')
        em(f's_lshl_b32 s{sT0}, s{sT0}, 5')
        em(f's_add_u32 s{sT0}, s{sT0}, {WS_HIST + 0x180000}')
        for i in range(NST):
            em(f'v_mov_b32 v{T0}, s{sAcc + i}')
            em(f'v_mov_b32 v{T1}, {4 * i}')
            em(f'buffer_store_dword v{T0}, v{T1}, {WSR}, s{sT0} offen')
        em('s_waitcnt vmcnt(0)')


KORD = [0, 4, 1, 5, 2, 6, 3, 7]
```

```python
import struct, math
from emit import *
from layout import *
import chain as C
from chain import stamp, sAcc, tl, Q, srd, WSR, SPIN_LIMIT, sSpin

MF = 'v_mfma_f32_16x16x32_bf16'
MF16 = 'v_mfma_f32_16x16x16_bf16'
SX, SWM, SW1, SW2, SB1, SB2, SOUT = 12, 16, 20, 24, 28, 40, 44
wR, sW, sLay = 48, 49, 50
t0, t1, t2, t3, t4, t5 = 51, 52, 53, 54, 55, 56
sIt, sNeed, sHd, sFl, sA, sB_, sC_, sD_ = 57, 58, 59, 60, 61, 62, 63, 64
sMLo32, sE_, sF_ = 66, 68, 70
sSeg, sMat = 71, 72
g1R, g2R, sNw = 73, 74, 75
OPT = {}


def f32(x):
    return hex(struct.unpack('<I', struct.pack('<f', x))[0])


def wait_flags(em, soff, n, need, va, vb, sleep=4):
    lp = em.newlabel('WF')
    ok = em.newlabel('WFOK')
    em(f's_cmp_lg_u32 s{sW}, 0')
    em(f's_cbranch_scc1 {ok}')
    em(f'v_min_u32 v{va}, {n if isinstance(n, str) else n - 1}, v1')
    em(f'v_lshlrev_b32 v{va}, 2, v{va}')
    em(f's_mov_b32 s{sSpin}, 0')
    em.label(lp)
    em(f'buffer_load_dword v{vb}, v{va}, {WSR}, s{soff} offen sc1')
    em(f's_add_u32 s{sSpin}, s{sSpin}, 1')
    em(f's_cmp_gt_u32 s{sSpin}, {SPIN_LIMIT}')
    em('s_cbranch_scc1 ABORT')
    em('s_waitcnt vmcnt(0)')
    em(f'v_cmp_gt_u32 vcc, {need}, v{vb}')
    em(f's_cbranch_vccz {ok}')
    em(f's_sleep {sleep}')
    em(f's_branch {lp}')
    em.label(ok)
    em('s_barrier')


def publish(em, soff, val, va, vb):
    lab = em.newlabel('PUB')
    em.wait_all()
    em('s_barrier')
    em(f's_cmp_lg_u32 s{sW}, 0')
    em(f's_cbranch_scc1 {lab}')
    em(f'v_mov_b32 v{va}, 0')
    em(f'v_mov_b32 v{vb}, {val}')
    em(f'buffer_store_dword v{vb}, v{va}, {WSR}, s{soff} offen sc1')
    em.label(lab)


def rbf(em, dst, src):
    em(f'v_cvt_pk_bf16_f32 v{dst}, v{src}, v{src}')
    em(f'v_and_b32 v{dst}, 0xffff0000, v{dst}')


def xg_sum(em, a_, b_):
    em(f'v_mov_b32 v{b_}, v{a_}')
    em(f'v_permlane32_swap_b32 v{a_}, v{b_}')
    em(f'v_add_f32 v{a_}, v{a_}, v{b_}')
    em(f'v_mov_b32 v{b_}, v{a_}')
    em(f'v_permlane16_swap_b32 v{a_}, v{b_}')
    em(f'v_add_f32 v{a_}, v{a_}, v{b_}')


def xw_sum(em, a_, tmp4, vwr, vrd, off):
    em(f'ds_write_b32 v{vwr}, v{a_} offset:{off}')
    em('s_waitcnt lgkmcnt(0)')
    em('s_barrier')
    em(f'ds_read_b128 {v(tmp4, 4)}, v{vrd} offset:{off}')
    em('s_waitcnt lgkmcnt(0)')
    em(f'v_add_f32 v{a_}, v{tmp4}, v{tmp4 + 1}')
    em(f'v_add_f32 v{tmp4 + 2}, v{tmp4 + 2}, v{tmp4 + 3}')
    em(f'v_add_f32 v{a_}, v{a_}, v{tmp4 + 2}')


def ln_core(em, X, n, P, vwr, vrd, off, lane_sum, maskfix=None):
    a_, b_, T4, M_, R_ = P, P + 1, P + 2, P + 6, P + 8
    em(f'v_pk_add_f32 {v(a_, 2)}, {v(X, 2)}, {v(X + 2, 2)}')
    for i in range(4, n, 2):
        em(f'v_pk_add_f32 {v(a_, 2)}, {v(a_, 2)}, {v(X + i, 2)}')
    em(f'v_add_f32 v{a_}, v{a_}, v{b_}')
    lane_sum(a_, b_)
    xw_sum(em, a_, T4, vwr, vrd, off)
    em(f'v_mul_f32 v{M_}, {f32(-1.0 / DM)}, v{a_}')
    em(f'v_mov_b32 v{M_ + 1}, v{M_}')
    for i in range(0, n, 2):
        em(f'v_pk_add_f32 {v(X + i, 2)}, {v(X + i, 2)}, {v(M_, 2)}')
    if maskfix:
        maskfix()
    em(f'v_pk_mul_f32 {v(a_, 2)}, {v(X, 2)}, {v(X, 2)}')
    for i in range(2, n, 2):
        em(f'v_pk_fma_f32 {v(a_, 2)}, {v(X + i, 2)}, {v(X + i, 2)}, {v(a_, 2)}')
    em(f'v_add_f32 v{a_}, v{a_}, v{b_}')
    lane_sum(a_, b_)
    xw_sum(em, a_, T4, vwr, vrd, off + 256)
    em(f'v_mul_f32 v{a_}, {f32(1.0 / DM)}, v{a_}')
    rbf(em, a_, a_)
    em(f'v_add_f32 v{a_}, {f32(1e-5)}, v{a_}')
    rbf(em, a_, a_)
    em(f'v_sqrt_f32 v{a_}, v{a_}')
    rbf(em, b_, M_)
    rbf(em, a_, a_)
    em(f'v_rcp_f32 v{R_}, v{a_}')
    em(f'v_sub_f32 v{b_}, v{b_}, v{M_}')
    em(f'v_mov_b32 v{R_ + 1}, v{R_}')
    em(f'v_mul_f32 v{M_}, v{b_}, v{R_}')
    em(f'v_mov_b32 v{M_ + 1}, v{M_}')
    for i in range(0, n, 2):
        em(f'v_pk_fma_f32 {v(X + i, 2)}, {v(X + i, 2)}, {v(R_, 2)}, {v(M_, 2)}')
    if maskfix:
        maskfix()


def unpack(em, dst, src, n):
    for i in range(n):
        em(f'v_and_b32 v{dst + 2 * i + 1}, 0xffff0000, v{src + i}')
        em(f'v_lshlrev_b32 v{dst + 2 * i}, 16, v{src + i}')


vL, vL16 = 1, 2
vG = 3
WK = 4
ACCU = 104
W2R = 136
WQR = 352


def base_setup(em):
    em(f'v_and_b32 v{vL}, 63, v0')
    em(f'v_lshrrev_b32 v{vG}, 6, v0')
    em(f'v_lshlrev_b32 v{vL16}, 4, v{vL}')
    em(f'v_readfirstlane_b32 s{sW}, v{vG}')
    em(f'v_lshrrev_b32 v{vG}, 4, v{vL}')
    em(f's_mov_b32 s{sMLo32}, -1')
    em(f's_mov_b32 s{sMLo32 + 1}, 0')


def ln_tile(em, layer0):
    R, X, P, vwr, vrd, va = WK, WK + 20, WK + 60, WK + 70, WK + 71, WK + 72
    em(f'v_and_b32 v{vrd}, 15, v{vL}')
    if layer0:
        em(f'v_mul_u32_u24 v{va}, 1280, v{vrd}')
        em(f'v_lshl_add_u32 v{va}, v{vG}, 4, v{va}')
        em(f's_mul_i32 s{t0}, s{sIt}, {16 * 1280}')
        em(f's_mul_i32 s{t1}, s{sW}, 320')
        em(f's_add_u32 s{t0}, s{t0}, s{t1}')
        for i in range(5):
            em.vm(f'buffer_load_dwordx4 {v(R + 4 * i, 4)}, v{va}, {s(SX, 4)}, s{t0} offen offset:{64 * i}')
    else:
        em(f's_mul_i32 s{t0}, s{sIt}, 20480')
        em(f's_mul_i32 s{t1}, s{sW}, 5120')
        em(f's_add_u32 s{t0}, s{t0}, s{t1}')
        em(f's_add_u32 s{t0}, s{t0}, {WS_X2}')
        em(f's_add_u32 s{t1}, s{t0}, 4096')
        for i in range(5):
            so, o = (t0, 1024 * i) if i < 4 else (t1, 0)
            em.vm(f'buffer_load_dwordx4 {v(R + 4 * i, 4)}, v{vL16}, {WSR}, s{so} offen offset:{o} sc1')
    em(f'v_lshlrev_b32 v{vrd}, 4, v{vrd}')
    em(f's_lshl_b32 s{t2}, s{sW}, 2')
    em(f'v_add_u32 v{vwr}, s{t2}, v{vrd}')
    em.wait_all()
    unpack(em, X, R, 20)
    ln_core(em, X, 40, P, vwr, vrd, 0, lambda a_, b_: xg_sum(em, a_, b_))
    em(f's_mul_i32 s{t0}, s{sIt}, 20480')
    em(f's_mul_i32 s{t1}, s{sW}, 5120')
    em(f's_add_u32 s{t0}, s{t0}, s{t1}')
    em(f's_mul_i32 s{t1}, s{sLay}, {XB}')
    em(f's_add_u32 s{t0}, s{t0}, s{t1}')
    em(f's_add_u32 s{t0}, s{t0}, {WS_H}')
    em(f's_add_u32 s{t1}, s{t0}, 4096')
    for i in range(5):
        for k in range(4):
            em(f'v_cvt_pk_bf16_f32 v{R + 4 * i + k}, v{X + 8 * i + 2 * k}, v{X + 8 * i + 2 * k + 1}')
        so, o = (t0, 1024 * i) if i < 4 else (t1, 0)
        em.vm(f'buffer_store_dwordx4 {v(R + 4 * i, 4)}, v{vL16}, {WSR}, s{so} offen offset:{o} sc1')


def stage_rows128(em, sr, nrows, stride, soff, va):
    assert nrows % 32 == 0
    em(f'v_lshrrev_b32 v{va}, 3, v{vL}')
    em(f's_mov_b32 s{t2}, {stride}')
    em(f'v_mul_lo_u32 v{va}, v{va}, s{t2}')
    em(f'v_and_b32 v{va + 1}, 7, v{vL}')
    em(f'v_lshl_add_u32 v{va}, v{va + 1}, 4, v{va}')
    em(f's_mul_i32 s{t2}, s{sW}, {8 * stride}')
    em(f's_add_u32 s{t2}, s{t2}, s{soff}')
    em(f's_lshl_b32 s{t3}, s{sW}, 10')
    for i in range(nrows // 32):
        em(f's_add_u32 m0, s{t3}, {4096 * i}')
        if i:
            em(f's_add_u32 s{t2}, s{t2}, {32 * stride}')
        else:
            em('s_nop 0')
        em.vm(f'buffer_load_dwordx4 v{va}, {s(sr, 4)}, s{t2} offen lds')
    em.wait_all()
    em('s_barrier')


def gw_init(em):
    va, vt = WK, WK + 2
    em(f's_load_dwordx2 {s(t2, 2) if t2 % 2 == 0 else s(t3, 2)}, s[0:1], {KA_WK}')
    em(f's_load_dwordx2 {s(SWM, 2)}, s[0:1], {KA_WQ}')
    em(f's_load_dwordx2 {s(sD_, 2)}, s[0:1], {KA_WV}')
    em(f's_mov_b32 s{SWM + 2}, {DM * H * DH * 2}')
    em(f's_mov_b32 s{SWM + 3}, 0x20000')
    em(f's_lshr_b32 s{sMat}, s{wR}, 6')
    em('s_waitcnt lgkmcnt(0)')
    pk = t2 if t2 % 2 == 0 else t3
    em(f's_cmp_eq_u32 s{sMat}, 1')
    em(f's_cselect_b64 {s(SWM, 2)}, {s(pk, 2)}, {s(SWM, 2)}')
    em(f's_cmp_eq_u32 s{sMat}, 2')
    em(f's_cselect_b64 {s(SWM, 2)}, {s(sD_, 2)}, {s(SWM, 2)}')
    em(f's_and_b32 s{t0}, s{wR}, 63')
    em(f's_lshl_b32 s{t0}, s{t0}, 7')
    stage_rows128(em, SWM, 640, 8192, t0, va)
    em(f'v_bfe_u32 v{vt}, v{vL}, 2, 2')
    em(f'v_lshl_add_u32 v{vt}, v{vG}, 3, v{vt}')
    em(f'v_lshlrev_b32 v{vt}, 7, v{vt}')
    em(f'v_and_b32 v{vt + 1}, 3, v{vL}')
    em(f'v_lshl_add_u32 v{vt}, v{vt + 1}, 3, v{vt}')
    em(f's_and_b32 s{t0}, s{sW}, 1')
    em(f's_lshl_b32 s{t0}, s{t0}, 6')
    em(f'v_add_u32 v{vt}, s{t0}, v{vt}')
    em(f'v_add_u32 v{vt + 1}, {10 * 4096}, v{vt}')
    for ks in range(20):
        for ct in range(2):
            for jh in range(2):
                reg = WQR + (ks * 2 + ct) * 4 + 2 * jh
                b = vt if ks < 10 else vt + 1
                em.ds(f'ds_read_b64_tr_b16 {r(reg, 2)}, v{b} offset:{(ks % 10) * 4096 + jh * 512 + ct * 32}')
        if ks % 3 == 2:
            em('s_waitcnt lgkmcnt(0)')
    em.wait_all()
    em('s_barrier')


def w2_init(em):
    va, vt, TM = WK, WK + 2, WK + 8
    em(f's_cmp_ge_u32 s{g2R}, 160')
    em('s_cbranch_scc1 GW_NOW2')
    em(f's_and_b32 s{t0}, s{g2R}, 15')
    em(f's_lshl_b32 s{t4}, s{t0}, 8')
    em(f's_lshl_b32 s{t0}, s{t0}, 2')
    em(f's_add_u32 s{t0}, s{t0}, s{sW}')
    em(f's_mul_i32 s{t5}, s{t0}, {54 * 1024}')
    em(f's_add_u32 s{t5}, s{t5}, {WS_W2S}')
    em(f'v_lshlrev_b32 v{va}, 12, v{vG}')
    em(f'v_and_b32 v{va + 1}, 15, v{vL}')
    em(f'v_lshl_add_u32 v{va}, v{va + 1}, 4, v{va}')
    em(f's_lshl_b32 s{t2}, s{sW}, 14')
    em(f's_add_u32 s{t4}, s{t4}, s{t2}')
    em(f's_lshl_b32 s{t3}, s{sW}, 10')
    em(f'v_lshrrev_b32 v{vt}, 2, v{vL}')
    em(f'v_lshlrev_b32 v{vt}, 8, v{vt}')
    em(f'v_and_b32 v{vt + 1}, 3, v{vL}')
    em(f'v_lshl_add_u32 v{vt}, v{vt + 1}, 3, v{vt}')
    em(f's_lshl_b32 s{t0}, s{sW}, 6')
    em(f'v_add_u32 v{vt}, s{t0}, v{vt}')
    em(f'v_add_u32 v{vt + 1}, {6 * 8192}, v{vt}')
    em(f'v_add_u32 v{vt + 2}, {12 * 8192}, v{vt}')
    for rnd in range(3):
        for i in range(36):
            em(f's_add_u32 m0, s{t3}, {4096 * i}')
            em(f's_add_u32 s{t2}, s{t4}, {(576 * rnd + 16 * i) * 4096}')
            em.vm(f'buffer_load_dwordx4 v{va}, {s(SW2, 4)}, s{t2} offen lds')
        em.wait_all()
        em('s_barrier')
        for k in range(18):
            for tt in range(2):
                for jh in range(2):
                    reg = (W2R + (18 * rnd + k) * 4 if tt == 0 else TM + 4 * k) + 2 * jh
                    em.ds(f'ds_read_b64_tr_b16 {r(reg, 2)}, v{vt + k // 6} offset:{(k % 6) * 8192 + jh * 4096 + 32 * tt}')
            if k % 3 == 2:
                em('s_waitcnt lgkmcnt(0)')
        em.wait_all()
        for k in range(18):
            if k % 4 == 0:
                em(f's_add_u32 s{t2}, s{t5}, {(18 * rnd + k) * 1024}')
            em(f'buffer_store_dwordx4 {v(TM + 4 * k, 4)}, v{vL16}, {WSR}, s{t2} offen offset:{1024 * (k % 4)} sc1')
        em('s_barrier')
    em.wait_all()
    em.label('GW_NOW2')


def qkv_phase(em):
    ACC = WK
    HF = WK + 16
    ST = WK + 48
    va, vb, vrd = WK + 56, WK + 57, WK + 58
    sHs, sOut, sProg = sA, sB_, sC_
    em(f's_lshr_b32 s{t0}, s{sW}, 1')
    em(f's_mul_i32 s{t0}, s{t0}, 40960')
    em(f'v_add_u32 v{vrd}, s{t0}, v{vL16}')
    em(f'v_add_u32 v{vrd + 1}, 81920, v{vrd}')
    em(f's_mul_i32 s{sHs}, s{sLay}, {XB}')
    em(f's_mul_i32 s{t0}, s{sW}, 20480')
    em(f's_add_u32 s{sHs}, s{sHs}, s{t0}')
    em(f's_add_u32 s{sHs}, s{sHs}, {WS_H}')
    em(f's_lshl_b32 s{sOut}, s{sMat}, 25')
    em(f's_add_u32 s{sOut}, s{sOut}, {WS_Q}')
    em(f's_lshl_b32 s{t0}, s{sLay}, 24')
    em(f's_add_u32 s{sOut}, s{sOut}, s{t0}')
    em(f's_lshr_b32 s{t0}, s{sW}, 1')
    em(f's_lshl_b32 s{t0}, s{t0}, 18')
    em(f's_add_u32 s{sOut}, s{sOut}, s{t0}')
    em(f's_bfe_u32 s{t0}, s{wR}, 0x50001')
    em(f's_lshl_b32 s{t1}, s{t0}, 13')
    em(f's_add_u32 s{sOut}, s{sOut}, s{t1}')
    em(f's_lshl_b32 s{sProg}, s{t0}, 7')
    em(f's_and_b32 s{t0}, s{wR}, 1')
    em(f's_lshl_b32 s{t1}, s{sMat}, 1')
    em(f's_add_u32 s{t1}, s{t1}, s{t0}')
    em(f's_lshl_b32 s{t1}, s{t1}, 2')
    em(f's_add_u32 s{sProg}, s{sProg}, s{t1}')
    em(f's_add_u32 s{sProg}, s{sProg}, {WS_HFLAG}')
    em(f's_lshl_b32 s{t0}, s{t0}, 1')
    em(f's_and_b32 s{t1}, s{sW}, 1')
    em(f's_add_u32 s{t0}, s{t0}, s{t1}')
    em(f's_cmp_eq_u32 s{sMat}, 2')
    em(f's_cselect_b32 s{t1}, 11, 10')
    em(f's_movk_i32 s{sD_}, 4096')
    em(f's_cselect_b32 s{sD_}, 1024, s{sD_}')
    em(f's_lshl_b32 s{t0}, s{t0}, s{t1}')
    em(f's_add_u32 s{sOut}, s{sOut}, s{t0}')
    em(f's_add_u32 s{sE_}, s{sOut}, s{sD_}')
    em(f's_cmp_eq_u32 s{sLay}, 0')
    em(f's_movk_i32 s{sFl}, {WS_XTF}')
    em(f's_cselect_b32 s{sFl}, {WS_HTF}, s{sFl}')
    em(f's_cselect_b32 s{sNw}, 3, 9')
    em(f's_lshl_b32 s{sNeed}, s{sLay}, 6')
    em(f's_mul_i32 s{sF_}, s{sW}, 20480')

    def fetch(buf):
        wait_flags(em, sFl, f's{sNw}', 1, va, vb)
        em(f's_cmp_eq_u32 s{sLay}, 0')
        em(f's_cselect_b32 s{t0}, 16, {64 * buf}')
        em(f's_add_u32 s{sFl}, s{sFl}, s{t0}')
        for i in range(5):
            em(f's_add_u32 m0, s{sF_}, {buf * 81920 + 4096 * i}')
            em(f's_add_u32 s{t0}, s{sHs}, {4096 * i}')
            for k in range(4):
                em.vm(f'buffer_load_dwordx4 v{vL16}, {WSR}, s{t0} offen offset:{1024 * k} sc1 lds')
        em(f's_add_u32 s{sHs}, s{sHs}, 81920')

    fetch(0)
    em(f's_mov_b32 s{sIt}, 0')
    em.label('QKV_LOOP')
    for buf in range(2):
        em.wait_all()
        em('s_barrier')
        lab = em.newlabel('QKVP')
        em(f's_cmp_lg_u32 s{sW}, 0')
        em(f's_cbranch_scc1 {lab}')
        em(f'v_mov_b32 v{va}, 0')
        em(f'v_mov_b32 v{vb}, s{sNeed}')
        em(f'buffer_store_dword v{vb}, v{va}, {WSR}, s{sProg} offen sc1')
        em.label(lab)
        lab = em.newlabel('QKVN')
        if buf == 1:
            em(f's_cmp_eq_u32 s{sIt}, 30')
            em(f's_cbranch_scc1 {lab}')
        fetch(1 - buf)
        em.label(lab)
        em.forget()
        isv = em.newlabel('QKVV')
        join = em.newlabel('QKVJ')
        em(f's_cmp_eq_u32 s{sMat}, 2')
        em(f's_cbranch_scc1 {isv}')
        for vt_ in range(2):
            if vt_:
                em.label(isv)
                em.forget()
            tok = {}

            def rd(i):
                tt, ks = i & 1, i >> 1
                tok[i] = em.ds(f'ds_read_b128 {v(HF + 4 * (i % 8), 4)}, v{vrd + buf} offset:{tt * 20480 + ks * 1024}')
            for i in range(8):
                rd(i)
            for i in range(40):
                tt, ks = i & 1, i >> 1
                em.wait(l=tok[i])
                for ct in range(2):
                    acc = ACC + 4 * (2 * ct + tt)
                    wf = r(WQR + (ks * 2 + ct) * 4, 4)
                    hf = v(HF + 4 * (i % 8), 4)
                    c = '0' if ks == 0 else v(acc, 4)
                    em(f'{MF} {v(acc, 4)}, {wf}, {hf}, {c}' if vt_ == 0 else f'{MF} {v(acc, 4)}, {hf}, {wf}, {c}')
                if i + 8 < 40:
                    rd(i + 8)
            for o in range(2):
                for k in range(2):
                    acc = ACC + 4 * ((2 * k + o) if vt_ == 0 else (2 * o + k))
                    em(f'v_cvt_pk_bf16_f32 v{ST + 4 * o + 2 * k}, v{acc}, v{acc + 1}')
                    em(f'v_cvt_pk_bf16_f32 v{ST + 4 * o + 2 * k + 1}, v{acc + 2}, v{acc + 3}')
                em(f'buffer_store_dwordx4 {v(ST + 4 * o, 4)}, v{vL16}, {WSR}, s{sOut if o == 0 else sE_} offen sc1')
            if vt_ == 0:
                em(f's_branch {join}')
        em.label(join)
        em(f's_add_u32 s{sOut}, s{sOut}, {2 * 32 * 8192}')
        em(f's_add_u32 s{sE_}, s{sE_}, {2 * 32 * 8192}')
        em(f's_add_u32 s{sNeed}, s{sNeed}, 2')
    em(f's_add_u32 s{sIt}, s{sIt}, 2')
    em(f's_cmp_lt_u32 s{sIt}, 32')
    em('s_cbranch_scc1 QKV_LOOP')
    publish(em, sProg, f's{sNeed}', va, vb)


def red_task(em):
    LD = WK
    D = WK + 64
    AL, AH = WK + 76, WK + 80
    P = WK + 84
    va, vx, vg_, vwr, vrd, vf = WK + 94, WK + 95, WK + 96, WK + 97, WK + 98, WK + 99
    XR = LD
    em(f'v_and_b32 v{va}, 7, v{vL}')
    em(f'v_lshrrev_b32 v{vx}, 1, v{va}')
    em(f'v_and_b32 v{va}, 1, v{va}')
    em(f'v_lshlrev_b32 v{va}, 4, v{va}')
    em(f'v_mov_b32 v{vg_}, 0x3f80')
    em(f'v_lshlrev_b32 v{va}, v{va}, v{vg_}')
    em(f's_mov_b32 s{t0}, 0xff00ff00')
    em(f's_mov_b32 s{t1}, 0xff00ff00')
    assert t0 % 2 == 1
    em(f's_mov_b32 s{t2}, 0xff00ff00')
    for dd in range(4):
        em(f'v_cmp_eq_u32 vcc, {dd}, v{vx}')
        em(f'v_cndmask_b32 v{AL + dd}, 0, v{va}, vcc')
        em(f'v_cndmask_b32 v{AH + dd}, 0, v{AL + dd}, {s(t1, 2)}')
        em(f'v_cndmask_b32 v{AL + dd}, v{AL + dd}, 0, {s(t1, 2)}')
    em(f's_mov_b32 s{t0}, {APB}')
    em(f'v_mul_lo_u32 v{va}, v{vG}, s{t0}')
    em(f'v_and_b32 v{vx}, 15, v{vL}')
    em(f'v_lshl_add_u32 v{va}, v{vx}, 4, v{va}')
    em(f's_mul_i32 s{t3}, s{sSeg}, {16 * APB}')
    em(f's_mul_i32 s{t0}, s{sIt}, 5120')
    em(f's_add_u32 s{t3}, s{t3}, s{t0}')
    em(f's_mul_i32 s{t0}, s{sW}, 1280')
    em(f's_add_u32 s{t3}, s{t3}, s{t0}')
    em(f's_add_u32 s{t3}, s{t3}, {WS_AP}')
    em(f'v_and_b32 v{vrd}, 3, v{vL}')
    em(f'v_bfe_u32 v{vwr}, v{vL}, 2, 2')
    em(f'v_mul_u32_u24 v{vg_}, 1280, v{vrd}')
    em(f'v_lshl_add_u32 v{vg_}, v{vwr}, 4, v{vg_}')
    em(f'v_lshlrev_b32 v{vf}, 8, v{vwr}')
    em(f'v_lshl_add_u32 v{vf}, v{vrd}, 4, v{vf}')
    em(f'v_and_b32 v{vx}, 1, v{vG}')
    em(f'v_lshl_add_u32 v{vg_}, v{vx}, 3, v{vg_}')
    em(f'v_lshl_add_u32 v{vf}, v{vx}, 3, v{vf}')
    em(f'v_lshrrev_b32 v{vx}, 1, v{vG}')
    em(f'v_lshl_add_u32 v{vg_}, v{vx}, 6, v{vg_}')
    em(f'v_lshl_add_u32 v{vf}, v{vx}, 10, v{vf}')
    em(f'v_lshlrev_b32 v{vrd}, 4, v{vrd}')
    em(f's_lshl_b32 s{t0}, s{sW}, 2')
    em(f'v_add_u32 v{vwr}, s{t0}, v{vrd}')
    em(f's_lshl_b32 s{t0}, s{sSeg}, 3')
    em(f's_add_u32 s{t0}, s{t0}, s{sIt}')
    em(f's_mul_i32 s{t4}, s{t0}, 5120')
    em(f's_mul_i32 s{t5}, s{sW}, 320')
    em(f's_add_u32 s{t4}, s{t4}, s{t5}')
    em(f's_lshr_b32 s{t5}, s{t0}, 2')
    em(f's_mul_i32 s{t5}, s{t5}, 20480')
    em(f's_and_b32 s{t0}, s{t0}, 3')
    em(f's_lshl_b32 s{t0}, s{t0}, 6')
    em(f's_add_u32 s{t5}, s{t5}, s{t0}')
    em(f's_mul_i32 s{t0}, s{sW}, 5120')
    em(f's_add_u32 s{t5}, s{t5}, s{t0}')
    em(f's_lshl_b32 s{sFl}, s{sLay}, 6')
    em(f's_add_u32 s{sFl}, s{sFl}, s{sSeg}')
    em(f's_lshl_b32 s{sFl}, s{sFl}, 7')
    em(f's_add_u32 s{sFl}, s{sFl}, {WS_AWC}')
    wait_flags(em, sFl, 1, 16, P, P + 1, sleep=2)
    tok = {}

    def ld(i):
        n, u = divmod(i, 5)
        if u == 0:
            em(f's_add_u32 s{sA}, s{t3}, {4 * n * APB}')
        tok[i] = em.vm(f'buffer_load_dwordx4 {v(LD + 4 * (i % 16), 4)}, v{va}, {WSR}, s{sA} offen offset:{256 * u} sc1')
    for i in range(16):
        ld(i)
    for i in range(20):
        n, u = divmod(i, 5)
        em.wait(v=tok[i])
        d = D + 4 * (u >> 1)
        c = '0' if (n == 0 and u % 2 == 0) else v(d, 4)
        em(f'{MF} {v(d, 4)}, {v(AH if u & 1 else AL, 4)}, {v(LD + 4 * (i % 16), 4)}, {c}')
        if i + 16 < 20:
            ld(i + 16)
    big = P + 2
    em(f'v_mov_b32 v{big}, 0x40000000')
    em(f'v_cndmask_b32 v{va}, v{big}, v{vg_}, {s(sMLo32, 2)}')
    em(f'v_cndmask_b32 v{vx}, v{big}, v{vf}, {s(sMLo32, 2)}')
    l1 = em.newlabel('REDL1')
    j1 = em.newlabel('REDJ')
    em(f's_cmp_lg_u32 s{sLay}, 0')
    em(f's_cbranch_scc1 {l1}')
    for k in range(3):
        em(f'buffer_load_dwordx2 {v(XR + 2 * k, 2)}, v{vg_ if k < 2 else va}, {s(SX, 4)}, s{t4} offen offset:{128 * k}')
    em(f's_branch {j1}')
    em.label(l1)
    em(f's_add_u32 s{t0}, s{t5}, {WS_X2}')
    em(f's_add_u32 s{sA}, s{t0}, 4096')
    for k in range(3):
        em(f'buffer_load_dwordx2 {v(XR + 2 * k, 2)}, v{vf if k < 2 else vx}, {WSR}, s{t0 if k < 2 else sA} offen offset:{2048 * k if k < 2 else 0} sc1')
    em.label(j1)
    X = LD + 8
    PK = LD + 20
    for k in range(6):
        em(f'v_cvt_pk_bf16_f32 v{PK + k}, v{D + 2 * k}, v{D + 2 * k + 1}')
    unpack(em, D, PK, 6)
    em.wait_all()
    unpack(em, X, XR, 6)
    for k in range(0, 12, 2):
        em(f'v_pk_add_f32 {v(X + k, 2)}, {v(X + k, 2)}, {v(D + k, 2)}')
    for k in range(6):
        em(f'v_cvt_pk_bf16_f32 v{PK + k}, v{X + 2 * k}, v{X + 2 * k + 1}')
    em(f's_mul_i32 s{t0}, s{sLay}, {XB}')
    em(f's_add_u32 s{sA}, s{t0}, s{t5}')
    em(f's_add_u32 s{sA}, s{sA}, {WS_X1}')
    em(f's_add_u32 s{sB_}, s{sA}, 4096')
    em(f's_add_u32 s{t4}, s{t4}, s{t0}')
    em(f's_add_u32 s{t4}, s{t4}, {WS_G}')
    for k in range(3):
        em(f'buffer_store_dwordx2 {v(PK + 2 * k, 2)}, v{vf if k < 2 else vx}, {WSR}, s{sA if k < 2 else sB_} offen offset:{2048 * k if k < 2 else 0} sc1')

    def lane_sum(a_, b_):
        em(f'v_add_f32_dpp v{a_}, v{a_}, v{a_} row_ror:4 row_mask:0xf bank_mask:0xf')
        em(f'v_add_f32_dpp v{a_}, v{a_}, v{a_} row_ror:8 row_mask:0xf bank_mask:0xf')
        xg_sum(em, a_, b_)

    def maskfix():
        for k in range(8, 12):
            em(f'v_cndmask_b32 v{X + k}, 0, v{X + k}, {s(sMLo32, 2)}')
    unpack(em, X, PK, 6)
    ln_core(em, X, 12, P, vwr, vrd, 0, lane_sum, maskfix)
    PK2 = LD + 26
    for k in range(6):
        em(f'v_cvt_pk_bf16_f32 v{PK2 + k}, v{X + 2 * k}, v{X + 2 * k + 1}')
    unpack(em, X, PK2, 6)
    ln_core(em, X, 12, P, vwr, vrd, 512, lane_sum, maskfix)
    for k in range(6):
        em(f'v_cvt_pk_bf16_f32 v{PK2 + k}, v{X + 2 * k}, v{X + 2 * k + 1}')
    for k in range(3):
        em(f'buffer_store_dwordx2 {v(PK2 + 2 * k, 2)}, v{vg_ if k < 2 else va}, {WSR}, s{t4} offen offset:{128 * k} sc1')
    em(f's_lshl_b32 s{t0}, s{sLay}, 11')
    em(f's_lshl_b32 s{t1}, s{sSeg}, 5')
    em(f's_add_u32 s{t0}, s{t0}, s{t1}')
    em(f's_lshl_b32 s{t1}, s{sIt}, 2')
    em(f's_add_u32 s{t0}, s{t0}, s{t1}')
    em(f's_add_u32 s{t0}, s{t0}, {WS_GTF}')
    publish(em, t0, 1, P, P + 1)


L_G1G, L_G1W = 1024, 1024 + 32768


def g1_chunk(em):
    va, vb, vga, vwa = WK, WK + 1, WK + 2, WK + 4
    GF, WF = WK + 8, WK + 40
    em(f's_mul_i32 s{t4}, s{g1R}, 9710')
    em(f's_lshr_b32 s{t4}, s{t4}, 18')
    em(f's_mul_i32 s{t0}, s{t4}, 27')
    em(f's_sub_u32 s{t5}, s{g1R}, s{t0}')
    em(f'v_lshrrev_b32 v{va}, 3, v{vL}')
    em(f'v_bfe_u32 v{vb}, v{vL}, 4, 1')
    em(f'v_lshlrev_b32 v{vb}, 1, v{vb}')
    em(f's_and_b32 s{t0}, s{sW}, 1')
    em(f's_lshl_b32 s{t0}, s{t0}, 2')
    em(f'v_or_b32 v{vb}, s{t0}, v{vb}')
    em(f'v_and_b32 v{vga}, 7, v{vL}')
    em(f'v_xor_b32 v{vb}, v{vb}, v{vga}')
    em(f'v_mul_u32_u24 v{va}, 3456, v{va}')
    em(f'v_lshl_add_u32 v{va}, v{vb}, 4, v{va}')
    em(f's_lshr_b32 s{t0}, s{sSeg}, 2')
    em(f's_mul_i32 s{t1}, s{t0}, {128 * 3456}')
    em(f's_mul_i32 s{t2}, s{sW}, {8 * 3456}')
    em(f's_add_u32 s{t1}, s{t1}, s{t2}')
    em(f's_lshl_b32 s{t2}, s{t5}, 7')
    em(f's_add_u32 s{t1}, s{t1}, s{t2}')
    em(f's_lshl_b32 s{t3}, s{sW}, 10')
    for i in range(4):
        em(f's_add_u32 m0, s{t3}, {L_G1W + 4096 * i}')
        em(f's_add_u32 s{t2}, s{t1}, {32 * 3456 * i}')
        em.vm(f'buffer_load_dwordx4 v{va}, {s(SW1, 4)}, s{t2} offen lds')
    em(f'v_lshlrev_b32 v{vb}, 2, v{vG}')
    em(f'v_and_b32 v{va}, 15, v{vL}')
    em(f'v_xor_b32 v{vb}, v{vb}, v{va}')
    em(f'v_mul_u32_u24 v{va}, 1280, v{vG}')
    em(f'v_lshl_add_u32 v{va}, v{vb}, 4, v{va}')
    em(f's_mul_i32 s{t1}, s{t0}, {128 * 1280}')
    em(f's_mul_i32 s{t2}, s{sW}, {4 * 1280}')
    em(f's_add_u32 s{t1}, s{t1}, s{t2}')
    em(f's_lshl_b32 s{t2}, s{t4}, 8')
    em(f's_add_u32 s{t1}, s{t1}, s{t2}')
    em(f's_mul_i32 s{t2}, s{sLay}, {XB}')
    em(f's_add_u32 s{t1}, s{t1}, s{t2}')
    em(f's_add_u32 s{t1}, s{t1}, {WS_G}')
    em(f's_lshl_b32 s{sFl}, s{sLay}, 11')
    em(f's_lshl_b32 s{t0}, s{t0}, 7')
    em(f's_add_u32 s{sFl}, s{sFl}, s{t0}')
    em(f's_add_u32 s{sFl}, s{sFl}, {WS_GTF}')
    wait_flags(em, sFl, 32, 1, vga, vga + 1, sleep=6)
    for i in range(8):
        em(f's_add_u32 m0, s{t3}, {L_G1G + 4096 * i}')
        em(f's_add_u32 s{t2}, s{t1}, {16 * 1280 * i}')
        em.vm(f'buffer_load_dwordx4 v{va}, {WSR}, s{t2} offen sc1 lds')
    em(f'v_bfe_u32 v{vb}, v{vL}, 2, 2')
    em(f'v_lshl_add_u32 v{va}, v{vG}, 3, v{vb}')
    em(f's_and_b32 s{t0}, s{sW}, 1')
    em(f's_lshl_b32 s{t0}, s{t0}, 1')
    for i in range(2):
        em(f's_add_u32 s{t1}, s{t0}, {i}')
        em(f'v_xor_b32 v{vga + i}, s{t1}, v{vb}')
        em(f'v_lshlrev_b32 v{vga + i}, 6, v{vga + i}')
        em(f'v_lshl_add_u32 v{vga + i}, v{va}, 8, v{vga + i}')
        em(f'v_and_b32 v{vwa}, 3, v{vL}')
        em(f'v_lshl_add_u32 v{vga + i}, v{vwa}, 4, v{vga + i}')
    em(f'v_lshrrev_b32 v{vb}, 1, v{vb}')
    em(f'v_and_b32 v{vwa + 1}, 1, v{vG}')
    em(f'v_lshl_add_u32 v{vb}, v{vwa + 1}, 1, v{vb}')
    em(f'v_lshlrev_b32 v{va}, 7, v{va}')
    em(f'v_lshl_add_u32 v{va}, v{vwa}, 3, v{va}')
    em(f's_lshr_b32 s{t0}, s{sW}, 1')
    em(f's_lshl_b32 s{t0}, s{t0}, 1')
    for i in range(2):
        em(f's_add_u32 s{t1}, s{t0}, {i}')
        em(f'v_xor_b32 v{vwa + i}, s{t1}, v{vb}')
        em(f'v_lshl_add_u32 v{vwa + i}, v{vwa + i}, 5, v{va}')
    em.wait_all()
    em('s_barrier')
    toks = {}

    def rd(ks):
        b = ks & 1
        for t in range(2):
            for jh in range(2):
                em.ds(f'ds_read_b64_tr_b16 {v(WF + 8 * b + 4 * t + 2 * jh, 2)}, v{vwa + t} offset:{L_G1W + ks * 4096 + jh * 512}')
        for dt in range(4):
            for jh in range(2):
                toks[ks] = em.ds(f'ds_read_b64_tr_b16 {v(GF + 16 * b + 4 * dt + 2 * jh, 2)}, v{vga + (dt >> 1)} offset:{L_G1G + ks * 8192 + jh * 1024 + 8 * (dt & 1)}')
    rd(0)
    for ks in range(4):
        em.wait(l=toks[ks])
        if ks < 3:
            rd(ks + 1)
        b = ks & 1
        for t in range(2):
            for dt in range(4):
                acc = ACCU + 4 * (4 * t + dt)
                em(f'{MF} {v(acc, 4)}, {v(WF + 8 * b + 4 * t, 4)}, {v(GF + 16 * b + 4 * dt, 4)}, {v(acc, 4)}')
    em('s_barrier')


def g1_final(em):
    va, BI, E, ST = WK, WK + 2, WK + 16, WK + 24
    em(f's_mul_i32 s{t4}, s{g1R}, 9710')
    em(f's_lshr_b32 s{t4}, s{t4}, 18')
    em(f's_mul_i32 s{t0}, s{t4}, 27')
    em(f's_sub_u32 s{t5}, s{g1R}, s{t0}')
    em(f's_lshr_b32 s{t0}, s{sW}, 1')
    em(f's_lshl_b32 s{t1}, s{t5}, 1')
    em(f's_add_u32 s{t1}, s{t1}, s{t0}')
    em(f's_lshl_b32 s{t2}, s{t1}, 6')
    em(f'v_lshlrev_b32 v{va}, 3, v{vG}')
    em(f'buffer_load_dwordx2 {v(BI, 2)}, v{va}, {s(SB1, 4)}, s{t2} offen')
    em(f'buffer_load_dwordx2 {v(BI + 2, 2)}, v{va}, {s(SB1, 4)}, s{t2} offen offset:32')
    em(f's_and_b32 s{t0}, s{sW}, 1')
    em(f's_lshl_b32 s{t0}, s{t0}, 2')
    em(f's_lshl_b32 s{t3}, s{t4}, 3')
    em(f's_add_u32 s{t0}, s{t0}, s{t3}')
    em(f's_mul_i32 s{t0}, s{t0}, 54')
    em(f's_add_u32 s{t0}, s{t0}, s{t1}')
    em(f's_lshl_b32 s{t0}, s{t0}, 10')
    em(f's_mul_i32 s{t1}, s{sLay}, {UB}')
    em(f's_add_u32 s{t0}, s{t0}, s{t1}')
    em(f's_add_u32 s{t0}, s{t0}, {WS_U}')
    k0 = -2.0 * math.sqrt(2.0 / math.pi) * math.log2(math.e)
    em(f's_mov_b32 s{t2}, {f32(k0 * 0.044715)}')
    em(f'v_mov_b32 v{va + 1}, {f32(k0)}')
    em('s_waitcnt vmcnt(0)')
    unpack(em, BI + 4, BI, 4)
    K1, K0, ONE = WK + 32, WK + 34, WK + 36
    for i in range(2):
        em(f'v_mov_b32 v{K1 + i}, s{t2}')
        em(f'v_mov_b32 v{K0 + i}, v{va + 1}')
        em(f'v_mov_b32 v{ONE + i}, 1.0')
    for dt in range(4):
        E8 = WK + 40 + 8 * (dt & 1)
        prs = [(ACCU + 4 * (4 * t + dt) + 2 * k, E8 + 4 * t + 2 * k, BI + 4 + 4 * t + 2 * k) for t in range(2) for k in range(2)]
        for x, e, b in prs:
            em(f'v_pk_add_f32 {v(x, 2)}, {v(x, 2)}, {v(b, 2)}')
        for x, e, b in prs:
            em(f'v_pk_mul_f32 {v(e, 2)}, {v(x, 2)}, {v(x, 2)}')
        for x, e, b in prs:
            em(f'v_pk_fma_f32 {v(e, 2)}, {v(e, 2)}, {v(K1, 2)}, {v(K0, 2)}')
        for x, e, b in prs:
            em(f'v_pk_mul_f32 {v(e, 2)}, {v(e, 2)}, {v(x, 2)}')
        for i in range(8):
            em(f'v_exp_f32 v{E8 + i}, v{E8 + i}')
        for x, e, b in prs:
            em(f'v_pk_add_f32 {v(e, 2)}, {v(e, 2)}, {v(ONE, 2)}')
        for i in range(8):
            em(f'v_rcp_f32 v{E8 + i}, v{E8 + i}')
        for x, e, b in prs:
            em(f'v_pk_mul_f32 {v(e, 2)}, {v(e, 2)}, {v(x, 2)}')
        for k in range(4):
            em(f'v_cvt_pk_bf16_f32 v{ST + 4 * (dt & 1) + k}, v{E8 + 2 * k}, v{E8 + 2 * k + 1}')
        em(f'buffer_store_dwordx4 {v(ST + 4 * (dt & 1), 4)}, v{vL16}, {WSR}, s{t0} offen sc1')
        em(f's_add_u32 s{t0}, s{t0}, {54 * 1024}')
    em(f's_mul_i32 s{t0}, s{sLay}, 640')
    em(f's_lshl_b32 s{t1}, s{t4}, 7')
    em(f's_add_u32 s{t0}, s{t0}, s{t1}')
    em(f's_lshl_b32 s{t1}, s{t5}, 2')
    em(f's_add_u32 s{t0}, s{t0}, s{t1}')
    em(f's_add_u32 s{t0}, s{t0}, {WS_UTF}')
    publish(em, t0, 1, va, va + 1)


def g2_phase(em):
    va, vb, vo = WK, WK + 1, WK + 2
    UF = WK + 4
    WB = WK + 36
    NWB = 11
    XR = WK + 80
    B2 = WK + 96
    E = UF + 8
    sW2 = sB_
    em(f's_and_b32 s{t4}, s{g2R}, 15')
    em(f's_lshr_b32 s{t5}, s{g2R}, 4')
    em(f's_lshl_b32 s{t0}, s{t4}, 2')
    em(f's_add_u32 s{t0}, s{t0}, s{sW}')
    em(f's_mul_i32 s{sW2}, s{t0}, {54 * 1024}')
    em(f's_add_u32 s{sW2}, s{sW2}, {WS_W2S}')
    wt = {}

    def wld(k):
        if k % 4 == 0:
            em(f's_add_u32 s{sC_}, s{sW2}, {k * 1024}')
        wt[k] = em.vm(f'buffer_load_dwordx4 {v(WB + 4 * (k % NWB), 4)}, v{vL16}, {WSR}, s{sC_} offen offset:{1024 * (k % 4)}')
    for k in range(NWB):
        wld(k)
    em(f'v_and_b32 v{va}, 15, v{vL}')
    em(f'v_lshlrev_b32 v{vb}, 1, v{va}')
    em(f's_lshl_b32 s{t0}, s{t0}, 1')
    em(f's_lshl_b32 s{t1}, s{t0}, 5')
    em.vm(f'buffer_load_ushort v{B2}, v{vb}, {s(SB2, 4)}, s{t1} offen')
    em.vm(f'buffer_load_ushort v{B2 + 2}, v{vb}, {s(SB2, 4)}, s{t1} offen offset:32')
    em(f's_mul_i32 s{sE_}, s{t0}, 20480')
    em(f's_lshl_b32 s{t1}, s{t5}, 11')
    em(f's_add_u32 s{sE_}, s{sE_}, s{t1}')
    em(f'v_mul_u32_u24 v{vo}, 1280, v{va}')
    em(f'v_lshl_add_u32 v{vo}, v{vG}, 4, v{vo}')
    em(f's_mul_i32 s{sF_}, s{t0}, {16 * 1280}')
    em(f's_lshl_b32 s{t1}, s{t5}, 7')
    em(f's_add_u32 s{sF_}, s{sF_}, s{t1}')
    em(f's_lshl_b32 s{t0}, s{t5}, 2')
    em(f's_add_u32 s{t0}, s{t0}, s{sW}')
    em(f's_mul_i32 s{sA}, s{t0}, {54 * 1024}')
    em(f's_mul_i32 s{t1}, s{sLay}, {UB}')
    em(f's_add_u32 s{sA}, s{sA}, s{t1}')
    em(f's_add_u32 s{sA}, s{sA}, {WS_U}')
    em(f's_mul_i32 s{t3}, s{sW}, 6144')
    em(f's_mul_i32 s{sFl}, s{sLay}, 640')
    em(f's_lshr_b32 s{t1}, s{t5}, 1')
    em(f's_lshl_b32 s{t1}, s{t1}, 7')
    em(f's_add_u32 s{sFl}, s{sFl}, s{t1}')
    em(f's_add_u32 s{sFl}, s{sFl}, {WS_UTF}')
    em(f'v_add_u32 v{vb}, {2 * 24576}, v{vL16}')
    em(f'v_add_u32 v{vo + 1}, {4 * 24576}, v{vL16}')
    RB = [vL16, vb, vo + 1]
    wait_flags(em, sFl, 27, 1, E, E + 1, sleep=1)
    tl(em, 6, dyn=sLay, va=E, vb=E + 1)
    ct = {}

    def fetch(c):
        for hf in range(2):
            em(f's_add_u32 m0, s{t3}, {(c % 6) * 24576 + hf * 3072}')
            em(f's_add_u32 s{t1}, s{sA}, {c * 6144 + hf * 3072}')
            for k in range(3):
                ct[c] = em.vm(f'buffer_load_dwordx4 v{vL16}, {WSR}, s{t1} offen offset:{1024 * k} sc1 lds')
    for c in range(5):
        fetch(c)
    em(f's_mul_i32 s{t1}, s{sLay}, {XB}')
    em(f's_add_u32 s{t1}, s{t1}, s{sE_}')
    em(f's_add_u32 s{t1}, s{t1}, {WS_X1}')
    em(f's_add_u32 s{t0}, s{t1}, 20480')
    for tt in range(2):
        for p in range(2):
            em.vm(f'buffer_load_dwordx4 {v(XR + 8 * tt + 4 * p, 4)}, v{vL16}, {WSR}, s{t0 if tt else t1} offen offset:{1024 * p} sc1')
    tok = {}

    def rd(i):
        kf, dt = divmod(i, 4)
        c, k = divmod(kf, 6)
        tok[i] = em.ds(f'ds_read_b128 {v(UF + 4 * (i % 8), 4)}, v{RB[(c % 6) // 2]} offset:{(c & 1) * 24576 + dt * 6144 + k * 1024}')
    nrd = 0
    for kf in range(54):
        c, k = divmod(kf, 6)
        if k == 0:
            for cc in ([0, 1] if c == 0 else [c + 1]):
                if cc < 9:
                    em.wait(v=ct[cc])
            em('s_barrier')
            if c in (0, 1, 5):
                tl(em, {0: 9, 1: 10, 5: 11}[c], dyn=sLay, va=B2 + 1, vb=B2 + 3)
            if c >= 1 and c + 4 < 9:
                fetch(c + 4)
            if c == 0:
                for i in range(8):
                    rd(i)
                nrd = 8
        em.wait(v=wt[kf])
        for dt in range(4):
            i = 4 * kf + dt
            if dt % 2 == 0:
                em.wait(l=tok[i + 1])
            for tt in range(2):
                acc = ACCU + 16 * tt + 4 * dt
                cc = '0' if kf == 0 else v(acc, 4)
                b = r(W2R + 4 * kf, 4) if tt == 0 else v(WB + 4 * (kf % NWB), 4)
                em(f'{MF} {v(acc, 4)}, {v(UF + 4 * (i % 8), 4)}, {b}, {cc}')
            if nrd < 216:
                rd(nrd); nrd += 1
        if kf + NWB < 54:
            wld(kf + NWB)
    tl(em, 12, dyn=sLay, va=B2 + 1, vb=B2 + 3)
    em.wait_all()
    for tt in range(2):
        em(f'v_lshlrev_b32 v{B2 + 2 * tt}, 16, v{B2 + 2 * tt}')
        em(f'v_mov_b32 v{B2 + 2 * tt + 1}, v{B2 + 2 * tt}')
    em(f's_add_u32 s{t1}, s{sE_}, {WS_X2}')
    em(f's_add_u32 s{t0}, s{t1}, 20480')
    em(f's_add_u32 s{t2}, s{sF_}, {16 * 1280}')
    l1 = em.newlabel('G2L1')
    for n in range(4):
        acc = ACCU + 8 * n
        for k in range(4):
            em(f'v_cvt_pk_bf16_f32 v{UF + k}, v{acc + 2 * k}, v{acc + 2 * k + 1}')
        unpack(em, acc, UF, 4)
        for k in range(0, 8, 2):
            em(f'v_pk_add_f32 {v(acc + k, 2)}, {v(acc + k, 2)}, {v(B2 + 2 * (n >> 1), 2)}')
        for k in range(4):
            em(f'v_cvt_pk_bf16_f32 v{UF + k}, v{acc + 2 * k}, v{acc + 2 * k + 1}')
        unpack(em, acc, UF, 4)
        unpack(em, E, XR + 4 * n, 4)
        for k in range(0, 8, 2):
            em(f'v_pk_add_f32 {v(acc + k, 2)}, {v(acc + k, 2)}, {v(E + k, 2)}')
        for k in range(4):
            em(f'v_cvt_pk_bf16_f32 v{XR + 4 * n + k}, v{acc + 2 * k}, v{acc + 2 * k + 1}')
    tl(em, 13, dyn=sLay, va=E, vb=E + 1)
    em(f's_cmp_lg_u32 s{sLay}, 0')
    em(f's_cbranch_scc1 {l1}')
    SQ = WB
    for n in range(4):
        unpack(em, ACCU + 8 * n, XR + 4 * n, 4)
    for tt in range(2):
        X = ACCU + 16 * tt
        a_, b_ = UF, UF + 2
        em(f'v_pk_add_f32 {v(a_, 2)}, {v(X, 2)}, {v(X + 2, 2)}')
        em(f'v_pk_mul_f32 {v(b_, 2)}, {v(X, 2)}, {v(X, 2)}')
        em(f'v_pk_fma_f32 {v(b_, 2)}, {v(X + 2, 2)}, {v(X + 2, 2)}, {v(b_, 2)}')
        for i in range(4, 16, 2):
            em(f'v_pk_add_f32 {v(a_, 2)}, {v(a_, 2)}, {v(X + i, 2)}')
            em(f'v_pk_fma_f32 {v(b_, 2)}, {v(X + i, 2)}, {v(X + i, 2)}, {v(b_, 2)}')
        em(f'v_add_f32 v{SQ + 2 * tt}, v{a_}, v{a_ + 1}')
        em(f'v_add_f32 v{SQ + 2 * tt + 1}, v{b_}, v{b_ + 1}')
    for i in range(4):
        xg_sum(em, SQ + i, UF + i)
    em(f'v_cmp_gt_u32 vcc, 16, v{vL}')
    em(f'v_cndmask_b32 v{SQ}, v{SQ + 2}, v{SQ}, vcc')
    em(f'v_cndmask_b32 v{SQ + 1}, v{SQ + 3}, v{SQ + 1}, vcc')
    em(f'v_min_u32 v{SQ}, -2, v{SQ}')
    em(f'v_min_u32 v{SQ + 1}, -2, v{SQ + 1}')
    em(f'v_and_b32 v{va}, 31, v{vL}')
    em(f'v_lshlrev_b32 v{va}, 3, v{va}')
    em(f's_mul_i32 s{t2}, s{t4}, 10240')
    em(f's_lshl_b32 s{t3}, s{sW}, 8')
    em(f's_add_u32 s{t2}, s{t2}, s{t3}')
    em(f's_add_u32 s{t2}, s{t2}, {WS_ST}')
    em(f's_lshl_b32 s{t3}, s{t5}, 10')
    em(f's_add_u32 s{t3}, s{t3}, s{t2}')
    em(f's_mov_b64 exec, {s(sMLo32, 2)}')
    em(f'buffer_store_dwordx2 {v(SQ, 2)}, v{va}, {WSR}, s{t3} offen sc1')
    em('s_mov_b64 exec, -1')
    for n in range(4):
        em(f'buffer_store_dwordx4 {v(XR + 4 * n, 4)}, v{vL16}, {WSR}, s{t0 if n >> 1 else t1} offen offset:{1024 * (n & 1)} sc1')
    em(f'v_lshrrev_b32 v{vb}, 5, v{vL}')
    em(f'v_mul_u32_u24 v{vb}, 5120, v{vb}')
    em(f'v_add_u32 v{vb}, v{vb}, v{va}')
    em(f's_add_u32 s{t3}, s{t2}, 4096')
    em(f's_mov_b32 s{sSpin}, 0')
    PS = WB + 4
    em.label('G2_ST')
    for i in range(5):
        em(f'buffer_load_dwordx2 {v(PS + 2 * i, 2)}, v{vb}, {WSR}, s{t2 if i < 4 else t3} offen offset:{1024 * (i % 4)} sc1')
    em(f's_add_u32 s{sSpin}, s{sSpin}, 1')
    em(f's_cmp_gt_u32 s{sSpin}, {SPIN_LIMIT}')
    em('s_cbranch_scc1 ABORT')
    em('s_waitcnt vmcnt(0)')
    em(f'v_max3_u32 v{UF}, v{PS}, v{PS + 1}, v{PS + 2}')
    for i in range(3, 9, 2):
        em(f'v_max3_u32 v{UF}, v{UF}, v{PS + i}, v{PS + i + 1}')
    em(f'v_max_u32 v{UF}, v{UF}, v{PS + 9}')
    em(f'v_cmp_eq_u32 vcc, -1, v{UF}')
    em('s_cbranch_vccnz G2_ST')
    for i in range(1, 5):
        em(f'v_pk_add_f32 {v(PS, 2)}, {v(PS, 2)}, {v(PS + 2 * i, 2)}')
    em(f'v_mov_b64 {v(UF, 2)}, {v(PS, 2)}')
    em(f'v_permlane32_swap_b32 v{PS}, v{UF}')
    em(f'v_permlane32_swap_b32 v{PS + 1}, v{UF + 1}')
    em(f'v_pk_add_f32 {v(PS, 2)}, {v(PS, 2)}, {v(UF, 2)}')
    mean, var, R_, B_ = PS, PS + 1, PS + 2, PS + 3
    em(f'v_mul_f32 v{mean}, {f32(1.0 / DM)}, v{mean}')
    em(f'v_mul_f32 v{var}, {f32(1.0 / DM)}, v{var}')
    em(f'v_fma_f32 v{var}, -v{mean}, v{mean}, v{var}')
    em(f'v_max_f32 v{var}, 0, v{var}')
    rbf(em, var, var)
    em(f'v_add_f32 v{var}, {f32(1e-5)}, v{var}')
    rbf(em, var, var)
    em(f'v_sqrt_f32 v{var}, v{var}')
    rbf(em, mean, mean)
    rbf(em, var, var)
    em(f'v_rcp_f32 v{R_}, v{var}')
    em('s_nop 0')
    em(f'v_mul_f32 v{B_}, v{mean}, v{R_}')
    em(f'v_mov_b64 {v(UF, 2)}, {v(R_, 2)}')
    em(f'v_permlane16_swap_b32 v{R_}, v{UF}')
    em(f'v_permlane16_swap_b32 v{B_}, v{UF + 1}')
    for tt in range(2):
        src = R_ if tt == 0 else UF
        em(f'v_mov_b32 v{UF + 4}, v{src}')
        em(f'v_mov_b32 v{UF + 5}, v{src}')
        em(f'v_mov_b32 v{UF + 6}, v{src + 1}')
        em(f'v_mov_b32 v{UF + 7}, v{src + 1}')
        X = ACCU + 16 * tt
        for i in range(0, 16, 2):
            em(f'v_pk_fma_f32 {v(X + i, 2)}, {v(X + i, 2)}, {v(UF + 4, 2)}, {v(UF + 6, 2)} neg_lo:[0,0,1] neg_hi:[0,0,1]')
        em(f's_add_u32 s{t3}, s{t0 if tt else t1}, {WS_H + XB - WS_X2}')
        for p in range(2):
            H4 = WB + 16 + 8 * tt + 4 * p
            for k in range(4):
                em(f'v_cvt_pk_bf16_f32 v{H4 + k}, v{X + 8 * p + 2 * k}, v{X + 8 * p + 2 * k + 1}')
            em(f'buffer_store_dwordx4 {v(H4, 4)}, v{vL16}, {WSR}, s{t3} offen offset:{1024 * p} sc1')
    em(f's_lshl_b32 s{t0}, s{t4}, 6')
    em(f's_lshl_b32 s{t1}, s{t5}, 2')
    em(f's_add_u32 s{t0}, s{t0}, s{t1}')
    em(f's_add_u32 s{t0}, s{t0}, {WS_XTF}')
    publish(em, t0, 1, va, vb)
    em('s_branch G2_DONE')
    em.label(l1)
    for n in range(4):
        em(f'buffer_store_dwordx4 {v(XR + 4 * n, 4)}, v{vo}, {s(SOUT, 4)}, s{t2 if n >> 1 else sF_} offen offset:{64 * (n & 1)}')
    em.label('G2_DONE')


def ht_flag(em):
    em(f's_lshl_b32 s{t0}, s{sLay}, 9')
    em(f's_lshl_b32 s{t1}, s{sIt}, 2')
    em(f's_add_u32 s{t0}, s{t0}, s{t1}')
    em(f's_add_u32 s{t0}, s{t0}, {WS_HTF}')
    publish(em, t0, 1, WK, WK + 1)


def gw_main(em, arrive, wait_start):
    for d, ka, nb in ((SX, KA_X, XB), (SW1, KA_W1, S * F * 2), (SW2, KA_W2, S * F * 2), (SB1, KA_B1, F * 2),
                      (SB2, KA_B2, S * 2), (SOUT, KA_OUT, XB)):
        srd(em, d, ka, nb)
    base_setup(em)
    em(f's_mov_b32 s{sLay}, 0')
    em('s_waitcnt lgkmcnt(0)')
    em(f's_sub_u32 s{t0}, s{wR}, 128')
    em(f's_cmp_ge_u32 s{t0}, {WS_FLAG_BYTES // 1024}')
    em('s_cbranch_scc1 GW_NOZ')
    em(f's_lshl_b32 s{t0}, s{t0}, 10')
    em(f'v_lshlrev_b32 v{WK}, 2, v0')
    em(f'v_mov_b32 v{WK + 1}, 0')
    em(f'buffer_store_dword v{WK + 1}, v{WK}, {WSR}, s{t0} offen sc1')
    em.label('GW_NOZ')
    em(f's_cmp_ge_u32 s{wR}, 40')
    em('s_cbranch_scc1 GW_NOP')
    em(f's_lshl_b32 s{t0}, s{wR}, 12')
    em(f's_add_u32 s{t0}, s{t0}, {WS_ST}')
    em(f'v_lshlrev_b32 v{WK}, 4, v0')
    for i in range(4):
        em(f'v_mov_b32 v{WK + 4 + i}, -1')
    em(f'buffer_store_dwordx4 {v(WK + 4, 4)}, v{WK}, {WSR}, s{t0} offen sc1')
    em.label('GW_NOP')
    arrive(em)
    em(f's_mov_b32 s{sIt}, s{wR}')
    em(f's_cmp_ge_u32 s{wR}, 128')
    em('s_cbranch_scc1 GW_NOLN')
    ln_tile(em, True)
    wait_start(em)
    ht_flag(em)
    em('s_barrier')
    em.label('GW_NOLN')
    tl(em, 1)
    gw_init(em)
    wait_start(em)
    em.label('GW_LAYER')
    tl(em, 2, dyn=sLay)
    qkv_phase(em)
    tl(em, 3, dyn=sLay)
    em(f's_cmp_lg_u32 s{sLay}, 0')
    em('s_cbranch_scc1 GW_NOW2')
    em('s_barrier')
    w2_init(em)
    for i in range(0, 32, 2):
        em(f'v_mov_b64 {v(ACCU + i, 2)}, 0')
    em(f's_mov_b32 s{sSeg}, 0')
    em.label('GW_SEG')
    em(f's_mul_i32 s{t0}, s{sSeg}, 43')
    em(f's_lshr_b32 s{t0}, s{t0}, 8')
    em(f's_mul_i32 s{t0}, s{t0}, 6')
    em(f's_sub_u32 s{t0}, s{sSeg}, s{t0}')
    em(f's_sub_u32 s{t1}, s{wR}, 140')
    em(f's_and_b32 s{sIt}, s{t1}, 7')
    em(f's_lshr_b32 s{t1}, s{t1}, 3')
    em(f's_cmp_lg_u32 s{t0}, s{t1}')
    em('s_cbranch_scc1 GW_NORED')
    red_task(em)
    tl(em, 8, dyn=sLay)
    em('s_barrier')
    em.label('GW_NORED')
    em(f's_and_b32 s{t0}, s{sSeg}, 3')
    em(f's_cmp_lg_u32 s{t0}, 3')
    em('s_cbranch_scc1 GW_NOG1')
    em(f's_cmp_ge_u32 s{g1R}, 135')
    em('s_cbranch_scc1 GW_NOG1')
    g1_chunk(em)
    em.label('GW_NOG1')
    em(f's_add_u32 s{sSeg}, s{sSeg}, 1')
    em(f's_cmp_lt_u32 s{sSeg}, 64')
    em('s_cbranch_scc1 GW_SEG')
    tl(em, 4, dyn=sLay)
    em(f's_cmp_ge_u32 s{g1R}, 135')
    em('s_cbranch_scc1 GW_NOG1F')
    g1_final(em)
    em.label('GW_NOG1F')
    tl(em, 5, dyn=sLay)
    em(f's_cmp_ge_u32 s{g2R}, 160')
    em('s_cbranch_scc1 G2_DONE')
    g2_phase(em)
    tl(em, 7, dyn=sLay)
    em(f's_cmp_lg_u32 s{sLay}, 0')
    em('s_cbranch_scc1 DONE')
    if C.OPT.get('l1'):
        em('s_branch DONE')
    em(f's_mov_b32 s{sLay}, 1')
    em('s_barrier')
    em('s_branch GW_LAYER')


WOR = 192
LA_K, LA_V, LA_Q, LA_M, LA_O = 0, 16384, 32768, 49152, 57344


def aw_main(em, arrive, wait_start):
    srd(em, SWM, KA_WO, DM * H * DH * 2)
    base_setup(em)
    em(f's_sub_u32 s{sHd}, s{wR}, 192')
    em(f's_and_b32 s{sNeed}, s{sHd}, 1')
    em(f's_and_b32 s{sHd}, s{sHd}, 30')
    arrive(em)
    em('s_waitcnt lgkmcnt(0)')
    vt, vq, vkm, vvm, vst, vk, vow = 4, 6, 7, 8, 9, 10, 11
    MSK = 12
    ONES = 24
    CC = 28
    KF, QF, KMF = 32, 64, 80
    SC = 96
    A_ = 108
    P01, PM, SUM = 112, 116, 120
    VF, VMF = 32, 64
    O = 124
    OW = 80
    OFR = 32
    WA = 156
    em(f'v_lshrrev_b32 v{vt}, 2, v{vL}')
    em(f'v_mul_u32_u24 v{vt}, 1280, v{vt}')
    em(f'v_and_b32 v{vt + 1}, 3, v{vL}')
    em(f'v_lshl_add_u32 v{vt}, v{vt + 1}, 4, v{vt}')
    em(f's_mul_i32 s{t0}, s{sW}, 320')
    em(f'v_add_u32 v{vt}, s{t0}, v{vt}')
    em(f'v_add_u32 v{vt + 1}, {32 * 1280}, v{vt}')
    em(f'v_add_u32 v{vk}, {64 * 1280}, v{vt}')
    em(f'v_add_u32 v{vow}, {96 * 1280}, v{vt}')
    em(f's_mul_i32 s{t1}, s{sHd}, {128 * 1280}')
    em(f's_mul_i32 s{t3}, s{sW}, 40960')
    em(f's_add_u32 s{t1}, s{t1}, s{t3}')
    for hh in range(2):
        for i in range(10):
            em(f's_add_u32 m0, s{t3}, {4096 * i}')
            em(f's_add_u32 s{t2}, s{t1}, {hh * 163840 + 4096 * i}')
            for k in range(4):
                em.vm(f'buffer_load_dwordx4 v{vL16}, {s(SWM, 4)}, s{t2} offen offset:{1024 * k} lds')
        em.wait_all()
        em('s_barrier')
        for st in range(4):
            for T in range(10):
                for jh in range(2):
                    reg = WOR + ((hh * 10 + T) * 4 + st) * 4 + 2 * jh
                    em.ds(f'ds_read_b64_tr_b16 {r(reg, 2)}, v{[vt, vt + 1, vk, vow][st]} offset:{jh * 16 * 1280 + (T >> 1) * 64 + (T & 1) * 8}')
                if T % 5 == 4:
                    em('s_waitcnt lgkmcnt(0)')
        em.wait_all()
        em('s_barrier')
    em(f's_and_b32 s{t0}, s{sW}, 1')
    em(f's_lshr_b32 s{t4}, s{sW}, 1')
    em(f's_lshl_b32 s{t1}, s{t0}, 4')
    em(f'v_and_b32 v{A_}, 15, v{vL}')
    em(f'v_add_u32 v{A_}, s{t1}, v{A_}')
    em(f'v_lshlrev_b32 v{A_ + 1}, 2, v{vG}')
    em(f'v_mov_b32 v{A_ + 2}, {f32(-1e30)}')
    for t in range(2):
        for i in range(4):
            em(f'v_add_u32 v{A_ + 3}, {16 * t + i}, v{A_ + 1}')
            em(f'v_cmp_gt_u32 vcc, v{A_ + 3}, v{A_}')
            em(f'v_cndmask_b32 v{MSK + 4 * t + i}, 0, v{A_ + 2}, vcc')
    for i in range(4):
        em(f'v_cndmask_b32 v{MSK + 8 + i}, v{A_ + 2}, 0, {s(sMLo32, 2)}')
        em(f'v_mov_b32 v{ONES + i}, 0x3f803f80')
    em(f'v_mov_b32 v{CC}, {f32((DH ** -0.5) * math.log2(math.e))}')
    em(f'v_mov_b32 v{CC + 1}, v{CC}')
    em(f's_lshl_b32 s{t1}, s{t4}, 13')
    em(f'v_add_u32 v{vk}, s{t1}, v{vL16}')
    em(f's_lshl_b32 s{t1}, s{sW}, 12')
    em(f'v_add_u32 v{vq}, s{t1}, v{vL16}')
    em(f's_lshl_b32 s{t1}, s{t4}, 12')
    em(f'v_lshrrev_b32 v{vkm}, 2, v{vL}')
    em(f'v_lshlrev_b32 v{vkm}, 4, v{vkm}')
    em(f'v_and_b32 v{A_}, 1, v{vL}')
    em(f'v_lshl_add_u32 v{vkm}, v{A_}, 3, v{vkm}')
    em(f'v_add_u32 v{vkm}, s{t1}, v{vkm}')
    em(f'v_and_b32 v{vvm}, 15, v{vL}')
    em(f'v_lshlrev_b32 v{vvm}, 4, v{vvm}')
    em(f'v_and_b32 v{A_}, 1, v{vG}')
    em(f'v_lshl_add_u32 v{vvm}, v{A_}, 3, v{vvm}')
    em(f'v_add_u32 v{vvm}, s{t1}, v{vvm}')
    em(f'v_bfe_u32 v{vst}, v{vL}, 2, 2')
    em(f'v_mul_u32_u24 v{vst}, 5120, v{vst}')
    em(f'v_lshl_add_u32 v{vst}, v{vG}, 6, v{vst}')
    em(f'v_and_b32 v{A_}, 3, v{vL}')
    em(f'v_lshl_add_u32 v{vst}, v{A_}, 4, v{vst}')
    em(f's_mul_i32 s{t2}, s{sW}, 1280')
    em(f'v_add_u32 v{vst}, s{t2}, v{vst}')
    em(f's_lshl_b32 s{sFl}, s{sHd}, 7')
    em(f's_add_u32 s{sFl}, s{sFl}, {WS_HFLAG}')
    em(f's_add_u32 s{sE_}, s{sFl}, 24')
    em(f's_mov_b32 s{sA}, {WS_K}')
    em(f's_cmp_eq_u32 s{sW}, 1')
    em(f's_cselect_b32 s{sA}, {WS_V}, s{sA}')
    em(f's_cmp_eq_u32 s{sW}, 2')
    em(f's_cselect_b32 s{sA}, {WS_Q}, s{sA}')
    em(f's_cmp_eq_u32 s{sW}, 3')
    em(f's_cselect_b32 s{sA}, {WS_KM}, s{sA}')
    em(f's_cselect_b32 s{t0}, 12, 13')
    em(f's_lshl_b32 s{t1}, s{sNeed}, 5')
    em(f's_add_u32 s{t1}, s{t1}, s{sHd}')
    em(f's_lshl_b32 s{t1}, s{t1}, s{t0}')
    em(f's_add_u32 s{sA}, s{sA}, s{t1}')
    em(f's_lshl_b32 s{sB_}, 64, s{t0}')
    em(f's_lshl_b32 s{sF_}, s{sW}, 14')
    em(f's_lshl_b32 s{t1}, s{sNeed}, 4')
    em(f's_lshr_b32 s{t2}, s{sHd}, 1')
    em(f's_add_u32 s{t1}, s{t1}, s{t2}')
    em(f's_mul_i32 s{sD_}, s{t1}, {APB}')
    em(f's_add_u32 s{sD_}, s{sD_}, {WS_AP}')
    em(f's_add_u32 s{sNeed}, s{sNeed}, 1')
    tl(em, 1, va=A_, vb=A_ + 1)
    em(f'v_mov_b32 v{A_ + 2}, v{vk}')
    em(f'v_mov_b32 v{A_ + 3}, v{vow}')
    wait_start(em)
    em(f'v_mov_b32 v{vk}, v{A_ + 2}')
    NLAST = 64 if C.OPT.get('l1') else 128

    def poll(soff, n):
        lp, ok = em.newlabel('AWP'), em.newlabel('AWPOK')
        em(f'v_and_b32 v{A_}, 7, v{vL}')
        em(f'v_min_u32 v{A_}, {n - 1}, v{A_}')
        em(f'v_lshlrev_b32 v{A_}, 2, v{A_}')
        em(f'v_and_b32 v{A_ + 1}, 8, v{vL}')
        em(f'v_lshl_add_u32 v{A_}, v{A_ + 1}, 4, v{A_}')
        em(f's_mov_b32 s{sSpin}, 0')
        em.label(lp)
        em(f'buffer_load_dword v{A_ + 1}, v{A_}, {WSR}, s{soff} offen sc1')
        em(f's_add_u32 s{sSpin}, s{sSpin}, 1')
        em(f's_cmp_gt_u32 s{sSpin}, {SPIN_LIMIT}')
        em('s_cbranch_scc1 ABORT')
        em('s_waitcnt vmcnt(0)')
        em(f'v_cmp_gt_u32 vcc, s{sNeed}, v{A_ + 1}')
        em(f's_cbranch_vccz {ok}')
        em('s_sleep 1')
        em(f's_branch {lp}')
        em.label(ok)

    def dma(n4):
        for hf in range(n4):
            em(f's_add_u32 m0, s{sF_}, {4096 * hf}')
            em(f's_add_u32 s{t0}, s{sA}, {4096 * hf}')
            for k in range(4):
                em(f'buffer_load_dwordx4 v{vL16}, {WSR}, s{t0} offen offset:{1024 * k} sc1 lds')

    em.label('AW_SEG')
    em.forget()
    em(f's_cmp_eq_u32 s{sW}, 3')
    em('s_cbranch_scc1 AW_W3')
    poll(sFl, 6)
    dma(4)
    em('s_branch AW_FD')
    em.label('AW_W3')
    poll(sE_, 1)
    dma(2)
    em.label('AW_FD')
    em(f's_add_u32 s{sA}, s{sA}, s{sB_}')
    em.wait_all()
    em('s_barrier')
    [em.ds(f'ds_read_b128 {v(QF + 4 * st, 4)}, v{vq} offset:{LA_Q + 1024 * st}') for st in range(4)]
    kt = {}
    for st in range(4):
        for t in range(2):
            kt[t, st] = em.ds(f'ds_read_b128 {v(KF + 4 * (4 * t + st), 4)}, v{vk} offset:{LA_K + 4096 * t + 1024 * st}')
    for st in range(4):
        em.wait(l=kt[1, st])
        for t in range(2):
            c = v(MSK + 4 * t, 4) if st == 0 else v(SC + 4 * t, 4)
            em(f'{MF} {v(SC + 4 * t, 4)}, {v(KF + 4 * (4 * t + st), 4)}, {v(QF + 4 * st, 4)}, {c}')
            em.ds(f'ds_read_b64_tr_b16 {v(KMF + 4 * st + 2 * t, 2)}, v{vkm} offset:{LA_M + 512 * st + 256 * t}')
            kt[2, st] = em.l_iss
    for st in range(4):
        em.wait(l=kt[2, st])
        c = v(MSK + 8, 4) if st == 0 else v(SC + 8, 4)
        em(f'{MF} {v(SC + 8, 4)}, {v(KMF + 4 * st, 4)}, {v(QF + 4 * st, 4)}, {c}')
        for et in (2 * st, 2 * st + 1):
            em.ds(f'ds_read_b128 {v(VF + 4 * et, 4)}, v{vk} offset:{LA_V + 1024 * et}')
    for et in range(8):
        vlast = em.ds(f'ds_read_b64 {v(VMF + 2 * et, 2)}, v{vvm} offset:{LA_M + 2048 + 256 * et}')
    B_ = A_ + 1
    em(f'v_max3_f32 v{A_}, v{SC}, v{SC + 1}, v{SC + 2}')
    for i in range(3, 11, 2):
        em(f'v_max3_f32 v{A_}, v{A_}, v{SC + i}, v{SC + i + 1}')
    em(f'v_max_f32 v{A_}, v{A_}, v{SC + 11}')
    em(f'v_mov_b32 v{B_}, v{A_}')
    em(f'v_permlane32_swap_b32 v{A_}, v{B_}')
    em(f'v_max_f32 v{A_}, v{A_}, v{B_}')
    em(f'v_mov_b32 v{B_}, v{A_}')
    em(f'v_permlane16_swap_b32 v{A_}, v{B_}')
    em(f'v_max_f32 v{A_}, v{A_}, v{B_}')
    em(f'v_mul_f32 v{A_}, v{CC}, v{A_}')
    em(f'v_mov_b32 v{B_}, v{A_}')
    for i in range(0, 12, 2):
        em(f'v_pk_fma_f32 {v(SC + i, 2)}, {v(SC + i, 2)}, {v(CC, 2)}, {v(A_, 2)} neg_lo:[0,0,1] neg_hi:[0,0,1]')
    for i in range(12):
        em(f'v_exp_f32 v{SC + i}, v{SC + i}')
    for i in range(6):
        em(f'v_cvt_pk_bf16_f32 v{P01 + i}, v{SC + 2 * i}, v{SC + 2 * i + 1}')
    em.wait(l=vlast)
    em(f'{MF} {v(SUM, 4)}, {v(ONES, 4)}, {v(P01, 4)}, 0')
    for et in range(8):
        em(f'{MF} {v(O + 4 * et, 4)}, {v(VF + 4 * et, 4)}, {v(P01, 4)}, 0')
    em(f'{MF16} {v(SUM, 4)}, {v(ONES, 2)}, {v(PM, 2)}, {v(SUM, 4)}')
    for et in range(8):
        em(f'{MF16} {v(O + 4 * et, 4)}, {v(VMF + 2 * et, 2)}, {v(PM, 2)}, {v(O + 4 * et, 4)}')
    em(f'v_rcp_f32 v{A_}, v{SUM}')
    em('s_nop 0')
    em(f'v_mov_b32 v{B_}, v{A_}')
    for et in range(8):
        for k in range(2):
            em(f'v_pk_mul_f32 {v(O + 4 * et + 2 * k, 2)}, {v(O + 4 * et + 2 * k, 2)}, {v(A_, 2)}')
            em(f'v_cvt_pk_bf16_f32 v{OW + 2 * et + k}, v{O + 4 * et + 2 * k}, v{O + 4 * et + 2 * k + 1}')
        if et & 1:
            em.ds(f'ds_write_b128 v{vq}, {v(OW + 4 * (et >> 1), 4)} offset:{LA_O + 1024 * (et >> 1)}')
    em.wait_all(v=False)
    em('s_barrier')
    em(f'v_add_u32 v{A_}, {LA_O}, v{vL16}')
    order = [(hh, qt, st) for qt in range(2) for hh in range(2) for st in range(4)]
    ot = {}
    for hh, qt, st in order[:12]:
        ot[hh, qt, st] = em.ds(f'ds_read_b128 {v(OFR + 4 * (8 * hh + 4 * qt + st), 4)}, v{A_} offset:{4096 * (2 * hh + qt) + 1024 * st}')
    em(f's_add_u32 s{t1}, s{sD_}, 20480')
    STG = [O + 4 * i for i in range(8)] + [SC, SC + 4]
    pend = []
    rest = order[12:]
    n = 0
    for qt in range(2):
        for p in range(5):
            acc = WA + 8 * (n % 4)
            for hh in range(2):
                for st in range(4):
                    em.wait(l=ot[hh, qt, st])
                    for t in range(2):
                        c = '0' if (st == 0 and hh == 0) else v(acc + 4 * t, 4)
                        em(f'{MF} {v(acc + 4 * t, 4)}, {r(WOR + ((hh * 10 + 2 * p + t) * 4 + st) * 4, 4)}, {v(OFR + 4 * (8 * hh + 4 * qt + st), 4)}, {c}')
                        if (hh, st) >= (0, 2) and pend:
                            em(pend.pop(0))
                    if rest and n == 0 and hh == 1:
                        k_ = rest.pop(0)
                        ot[k_] = em.ds(f'ds_read_b128 {v(OFR + 4 * (8 * k_[0] + 4 * k_[1] + k_[2]), 4)}, v{A_} offset:{4096 * (2 * k_[0] + k_[1]) + 1024 * k_[2]}')
            pend = [f'v_cvt_pk_bf16_f32 v{STG[n] + k}, v{acc + 2 * k}, v{acc + 2 * k + 1}' for k in range(4)]
            pend.append(f'buffer_store_dwordx4 {v(STG[n], 4)}, v{vst}, {WSR}, s{t1 if qt else sD_} offen offset:{256 * p} sc1')
            n += 1
    for i in pend:
        em(i)
    em.wait_all()
    em('s_barrier')
    em(f's_cmp_lg_u32 s{sW}, 0')
    em('s_cbranch_scc1 AW_NF')
    em(f's_sub_u32 s{t0}, s{sNeed}, 1')
    em(f's_lshl_b32 s{t0}, s{t0}, 7')
    em(f's_add_u32 s{t0}, s{t0}, {WS_AWC}')
    em(f'v_mov_b32 v{A_ + 2}, 0')
    em(f'v_mov_b32 v{A_ + 3}, 1')
    em('s_mov_b64 exec, 1')
    em(f'buffer_atomic_add v{A_ + 3}, v{A_ + 2}, {WSR}, s{t0} offen sc1')
    em('s_mov_b64 exec, -1')
    em.label('AW_NF')
    if C.OPT.get('tl'):
        em(f's_sub_u32 s{t0}, s{sNeed}, 1')
        em(f's_lshr_b32 s{t0}, s{t0}, 6')
        tl(em, 4, dyn=t0, va=A_, vb=A_ + 1)
    em(f's_add_u32 s{sD_}, s{sD_}, {32 * APB}')
    em(f's_add_u32 s{sNeed}, s{sNeed}, 2')
    em(f's_sub_u32 s{t0}, s{sNeed}, 65')
    em(f's_cmp_lt_u32 s{t0}, 2')
    em(f's_cselect_b32 s{t0}, {64 * 16 * APB}, 0')
    em(f's_sub_u32 s{sD_}, s{sD_}, s{t0}')
    em(f's_cmp_le_u32 s{sNeed}, {NLAST}')
    em('s_cbranch_scc1 AW_SEG')
    em('s_branch DONE')
```

```python
import sys
sys.path.insert(0, 'gen'); sys.path.insert(0, 'mb')
from common import *
import chain as C
import workers as W
NAME = 'interleave_layers__memory_aug_recurrent_mem_tr__mixer_token_mlp__prompt'

def build(opts=(), stamps=False):
    C.OPT.clear()
    C.OPT.update({'ack': 'noack' not in opts})
    for o in opts:
        k_, _, v_ = o.partition('=')
        C.OPT[k_] = int(v_) if v_ else True
    em = Em()
    elect(em)
    C.tl(em, 0)
    em(f's_cmp_eq_u32 s{sXcc}, 0')
    em('s_cbranch_scc1 ROLE_CHAIN')
    em(f's_sub_u32 s36, s{sXcc}, 1')
    em(f's_mul_i32 s{W.wR}, s{sRank}, 7')
    em(f's_add_u32 s{W.wR}, s{W.wR}, s36')
    em(f's_mul_i32 s{W.g1R}, s36, 20')
    em(f's_add_u32 s{W.g1R}, s{W.g1R}, s{sRank}')
    em(f's_cmp_lt_u32 s{sRank}, 20')
    em(f's_cselect_b32 s{W.g1R}, s{W.g1R}, 999')
    em(f's_mul_i32 s{W.g2R}, s36, 23')
    em(f's_add_u32 s{W.g2R}, s{W.g2R}, s{sRank}')
    em(f's_cmp_lt_u32 s{sRank}, 23')
    em(f's_cselect_b32 s{W.g2R}, s{W.g2R}, 999')
    if C.OPT.get('chainonly'):
        arrive(em)
        em('s_branch DONE')
    em(f's_cmp_ge_u32 s{W.wR}, 192')
    em('s_cbranch_scc1 ROLE_AW')
    W.gw_main(em, arrive, wait_start)
    em.label('ROLE_AW')
    W.aw_main(em, arrive, wait_start)
    em.label('ROLE_CHAIN')
    em(f's_mov_b32 s{C.sH}, s{sRank}')
    C.chain_init(em)
    arrive(em)
    C.tl(em, 1)
    if C.OPT.get('twice'):
        em('s_mov_b32 s37, 0')
        em.label('TWICE')
    C.chain_load_weights(em)
    if C.OPT.get('twice'):
        C.tl(em, 8, dyn=37)
        em('s_barrier')
        em('s_add_u32 s37, s37, 1')
        em('s_cmp_lt_u32 s37, 2')
        em('s_cbranch_scc1 TWICE')
    wait_start(em)
    C.chain_main(em, hist=bool(C.OPT.get('hist')), stamps=stamps, nlayers=1 if C.OPT.get('l1') else 2, ph=bool(C.OPT.get('ph')))
    tail(em)
    ref = open(f'cdna_kernels/{NAME}.s.ref').read().split('\n')
    pre = '\n'.join(l for l in ref if l.startswith(';') and '@launch' not in l and 'Override' not in l and 'grid=ceil' not in l) + '\n'
    return header(NAME + '_kernel', pre=pre) + em.text() + footer(NAME + '_kernel')

if __name__ == '__main__':
    out = sys.argv[1]
    txt = build(sys.argv[2:], stamps='stamps' in sys.argv)
    open(out, 'w').write(txt)
    print('bytes', len(txt), 'lines', txt.count('\n'))
    if out.endswith('.s') and 'co' in sys.argv:
        from mblib import assemble
        assemble(txt, NAME + '_kernel', 15, out[:-2] + '.co')
```
